```python
import torch

def _softmax(x, axis=-1):
    return torch.softmax(x, dim=axis)
def _gelu(x):
    return torch.nn.functional.gelu(x, approximate="tanh")
def _silu(x):
    return torch.nn.functional.silu(x)
def _sigmoid(x):
    return torch.sigmoid(x)
def _layernorm(x, axis=-1, eps=1e-5):
    m = x.mean(dim=axis, keepdim=True)
    v = x.var(dim=axis, keepdim=True, unbiased=False)
    return (x - m) / torch.sqrt(v + eps)
def _scatter_add(tgt, idx, src, axis=0):
    return tgt.clone().index_add_(axis, idx, src)
def _segment_sum(src, seg, n):
    out = torch.zeros((n,) + src.shape[1:], dtype=src.dtype)
    return out.index_add_(0, seg, src)
def _pad(x, pw):
    flat = tuple(v for pair in reversed(pw) for v in pair)
    return torch.nn.functional.pad(x, flat)

kernel_name = 'parallel_sum__spectral_fnet__dense_activation_squared_relu__prompt'

def setup_inputs():

    _w = (lambda a: (lambda t: t.to(torch.bfloat16) if t.is_floating_point() else t)(torch.as_tensor(a)))
    def _A_setup():
        B, S, D = 1, 2048, 640
        ns = torch.arange(S)[:, None] * torch.arange(S)[None, :]
        nd = torch.arange(D)[:, None] * torch.arange(D)[None, :]
        Ws_re = torch.cos(-2.0 * torch.pi * ns / S).to(float)
        Ws_im = torch.sin(-2.0 * torch.pi * ns / S).to(float)
        Wd_re = torch.cos(-2.0 * torch.pi * nd / D).to(float)
        Wd_im = torch.sin(-2.0 * torch.pi * nd / D).to(float)
        return {
            "x": _w((lambda *s: torch.randn(*s, dtype=torch.bfloat16) * 0.05)(B, S, D)),
            "dft_seq_re": _w(Ws_re),
            "dft_seq_im": _w(Ws_im),
            "dft_hid_re": _w(Wd_re),
            "dft_hid_im": _w(Wd_im),
        }
    _A_in = _A_setup()

    def _B_setup():
        B, S, D, F = 1, 2048, 640, 1728
        return {
            "x": _w((lambda *s: torch.randn(*s, dtype=torch.bfloat16) * 0.05)(B, S, D)),
            "w1": _w((lambda *s: torch.randn(*s, dtype=torch.bfloat16) * 0.2)(D, F)),
            "b1": _w((lambda *s: torch.randn(*s, dtype=torch.bfloat16) * 0.2)(F)),
            "w2": _w((lambda *s: torch.randn(*s, dtype=torch.bfloat16) * 0.2)(F, D)),
            "b2": _w((lambda *s: torch.randn(*s, dtype=torch.bfloat16) * 0.2)(D)),
        }
    _B_in = _B_setup()

    return {
        "A_x": _A_in["x"],
        "A_dft_seq_re": _A_in["dft_seq_re"],
        "A_dft_seq_im": _A_in["dft_seq_im"],
        "A_dft_hid_re": _A_in["dft_hid_re"],
        "A_dft_hid_im": _A_in["dft_hid_im"],
        "B_x": _B_in["x"],
        "B_w1": _B_in["w1"],
        "B_b1": _B_in["b1"],
        "B_w2": _B_in["w2"],
        "B_b2": _B_in["b2"],
    }

def reference(A_x, A_dft_seq_re, A_dft_seq_im, A_dft_hid_re, A_dft_hid_im, B_x, B_w1, B_b1, B_w2, B_b2):
    def _A_ref(x, dft_seq_re, dft_seq_im, dft_hid_re, dft_hid_im):
        a = torch.einsum("bsd,ed->bse", x, dft_hid_re)
        b = torch.einsum("bsd,ed->bse", x, dft_hid_im)
        y = torch.einsum("ts,bse->bte", dft_seq_re, a) - torch.einsum("ts,bse->bte", dft_seq_im, b)
        return y

    def _B_ref(x, w1, b1, w2, b2):
        h = torch.einsum("bsd,df->bsf", x, w1) + b1
        zero = torch.zeros_like(h)
        r = torch.where(h > zero, h, zero)
        h = r * r
        out = torch.einsum("bsf,fd->bsd", h, w2) + b2
        return out

    x = A_x
    xn = _layernorm(x, axis=-1)
    return x + _A_ref(xn, A_dft_seq_re, A_dft_seq_im, A_dft_hid_re, A_dft_hid_im) + _B_ref(xn, B_w1, B_b1, B_w2, B_b2)
```

```python
class Asm:
    def __init__(self):
        self.lines = []
    def __call__(self, s):
        for l in s.strip("\n").split("\n"):
            self.lines.append(l.strip())
        return self
    def label(self, n):
        self.lines.append(n + ":")
    def text(self):
        return "\n".join(self.lines) + "\n"

def vr(a, n=1):
    return f"v{a}" if n == 1 else f"v[{a}:{a+n-1}]"
def ar(a, n=1):
    return f"a{a}" if n == 1 else f"a[{a}:{a+n-1}]"
def sr(a, n=1):
    return f"s{a}" if n == 1 else f"s[{a}:{a+n-1}]"

def srd(A, d, base, size, off=0):
    if off:
        A(f"s_add_u32 s{d}, s{base}, {off}\ns_addc_u32 s{d+1}, s{base+1}, 0")
    else:
        A(f"s_mov_b32 s{d}, s{base}\ns_mov_b32 s{d+1}, s{base+1}")
    A(f"s_mov_b32 s{d+2}, {size}\ns_mov_b32 s{d+3}, 0x20000")

def kernel(name, body, vgpr=256, sgpr=102, accum=256):
    return f"""
.text
.globl {name}
.p2align 8
.type {name},@function
{name}:
{body}
s_endpgm
.section .rodata,"a"
.p2align 6
.amdhsa_kernel {name}
  .amdhsa_next_free_vgpr {vgpr}
  .amdhsa_next_free_sgpr {sgpr}
  .amdhsa_accum_offset {accum}
  .amdhsa_group_segment_fixed_size 0
  .amdhsa_kernarg_size 104
  .amdhsa_user_sgpr_count 2
  .amdhsa_user_sgpr_kernarg_segment_ptr 1
  .amdhsa_system_sgpr_workgroup_id_x 1
.end_amdhsa_kernel
"""
def module(launches, kernels, header=""):
    s = header
    for (n, g, b, lds) in launches:
        s += f"; @launch kernel={n} grid=({g},1,1) block=({b},1,1) lds={lds}\n"
    s += '.amdgcn_target "amdgcn-amd-amdhsa--gfx950"\n'
    return s + "".join(kernels)
```

```python
import sys, struct
from alib import *

KNAME = "parallel_sum__spectral_fnet__dense_activation_squared_relu__prompt_kernel"
SLOT = 36864; NS = 4
LDS_BYTES = 163840
L_STG = 4*SLOT
L_STG3 = 3*SLOT
M = 155648
L_STAT = M; L_CORR = M + 2048; L_SYNC = M + 7168
SY_ACK, SY_ZW, SY_ZF, SY_FW, SY_P, SY_W2 = 0, 4, 8, 12, 16, 32
ZROW = 272
LW = [0, 35840, 71680, 102400]; L_P = 133120; PROW = 336
KS0 = [0, 14, 28, 41]; NREG = 7
W_FS, W_FW, W_FH, W_FZ, W_FY = 0x1000, 0x2000, 0x3000, 0x4000, 0x5000
W_STAT = 0x10000; W_DBG = 0x20000
W_W2F = 0x100000; W_H = 0x400000; W_Z = 0xB00000; PZ = 0x150000; W_Y = 0xE00000
WS_SIZE = 0x1200000
HC = 54*2048
tA = [[0,192,320,640,768,896,0,192],[512,1024,1216,1344,1472,1600,0,192]]
tB = [[128,160,448,0,0,0,128,160],[480,1152,1184,0,0,0,128,160]]
SCHED = [[0,3,1,2,4,7,5,6,8,9],[0,1,4,2,3,5,8,6,7,9],[1,0,2,5,3,4,6,9,7,8],[2,0,1,3,6,4,5,7,8,9]]
XSH = (0,2,5,7,1)
def fl(x): return "0x%08x" % struct.unpack("<I", struct.pack("<f", x))[0]

class Gen:
    def __init__(self, dbg=True, spin=200000):
        self.A = Asm(); self.dbg = dbg; self.SPIN = spin
        self.nstamp = {"G": 0, "L": 0}; self.names = {}; self.uid = 0
    def lab(self, p):
        self.uid += 1; return f"L_{p}{self.uid}"
    @staticmethod
    def sreg(i): return 86+2*i if i < 8 else 60+2*(i-8)
    def stamp(self, role, name=''):
        if not self.dbg: return
        i = self.nstamp[role]; self.nstamp[role] += 1
        assert i < 11
        self.names.setdefault(role, {})[i] = name
        r = self.sreg(i); self.A(f"s_memtime s[{r}:{r+1}]")
    def dump_stamps(self, role):
        if not self.dbg: return
        A = self.A
        A(f"""s_waitcnt lgkmcnt(0)
        s_lshl_b32 s17, s2, 3
        s_add_u32 s17, s17, s3
        s_lshl_b32 s17, s17, 6
        s_add_u32 s17, s17, {W_DBG}
        v_mov_b32 v1, s17""")
        for i in range(self.nstamp[role]):
            A(f"v_mov_b32 v2, s{self.sreg(i)}\nbuffer_store_dword v2, v1, s[44:47], 0 offen offset:{4*i}")
        A("s_waitcnt vmcnt(0)")
    def spin_guard(self, done):
        if self.SPIN: return f"s_add_u32 s19, s19, 1\ns_cmp_gt_u32 s19, {self.SPIN}\ns_cbranch_scc1 {done}"
        return ""
    def lds_spin(self, vaddr, off, val, vt):
        l = self.lab("sp"); d = l + "d"
        self.A(f"""s_mov_b32 s19, 0
        {l}:
        ds_read_b32 v{vt}, v{vaddr} offset:{off}
        s_waitcnt lgkmcnt(0)
        v_readfirstlane_b32 s27, v{vt}
        {self.spin_guard(d)}
        s_cmp_ge_u32 s27, {val}
        s_cbranch_scc0 {l}
        {d}:""")
    def lds_inc(self, vaddr, off, vt):
        self.A(f"""v_mov_b32 v{vt}, 1
        s_mov_b64 exec, 1
        ds_add_u32 v{vaddr}, v{vt} offset:{off}
        s_mov_b64 exec, -1""")
    def poll(self, dst, n, vaddr, soff, vtag, first_issued=False, setexec=None):
        A = self.A; l = self.lab("po"); d = l + "d"; c = l + "c"
        ld = f"buffer_load_dword{'x%d' % n if n > 1 else ''} {vr(dst, n)}, v{vaddr}, s[44:47], {soff} offen sc1"
        if setexec: A(setexec)
        A("s_mov_b32 s19, 0")
        if first_issued: A(f"s_branch {c}")
        A(f"{l}:\n{ld}\ns_waitcnt vmcnt(0)\n{c}:")
        if n == 1: A(f"v_cmp_ne_u32 vcc, v{vtag}, v{dst}")
        else:
            for i in range(n): A(f"v_xor_b32 v{dst+i}, v{vtag}, v{dst+i}")
            A(f"v_or3_b32 v{dst}, v{dst}, v{dst+1}, v{dst+2}\nv_or_b32 v{dst}, v{dst}, v{dst+3}\nv_cmp_ne_u32 vcc, 0, v{dst}")
        A(self.spin_guard(d) or "s_nop 1")
        A(f"s_cbranch_vccnz {l}\n{d}:")
        if setexec: A("s_mov_b64 exec, -1")

    def prologue(self):
        A = self.A
        A("s_cmp_ge_u32 s2, 256\ns_cbranch_scc1 L_end")
        self.stamp("G", "start"); self.nstamp["L"] = self.nstamp["G"]
        A("""
        s_getpc_b64 s[18:19]
        L_pf:
        s_load_dwordx2 s[4:5], s[0:1], 0
        s_load_dwordx4 s[8:11], s[0:1], 24
        s_load_dwordx2 s[6:7], s[0:1], 48
        s_load_dwordx2 s[12:13], s[0:1], 96
        s_lshr_b32 s21, s2, 3         ; slot
        v_lshlrev_b32 v2, 4, v0
        s_lshl_b32 s17, s21, 10
        v_cmp_gt_u32 vcc, 128, v0
        s_lshl_b32 s17, s17, 1
        s_add_u32 s18, s18, s17
        s_addc_u32 s19, s19, 0
        s_cbranch_vccz L_nopf
        s_cmp_ge_u32 s17, L_end - L_pf
        s_cbranch_scc1 L_nopf
        global_load_dwordx4 v[252:255], v2, s[18:19]
        L_nopf:
        s_load_dwordx2 s[14:15], s[0:1], 56
        s_load_dwordx4 s[80:83], s[0:1], 64
        s_load_dwordx2 s[84:85], s[0:1], 80
        v_lshrrev_b32 v1, 6, v0
        v_and_b32 v0, 63, v0
        s_and_b32 s20, s2, 7          ; xcd
        v_readfirstlane_b32 s3, v1    ; wave 0..7
        s_lshr_b32 s22, s20, 1        ; xr
        s_and_b32 s23, s20, 1         ; xc
        s_lshr_b32 s24, s21, 3        ; rbl
        s_and_b32 s25, s21, 7         ; cbl
        s_lshl_b32 s26, s22, 2
        s_add_u32 s26, s26, s24       ; rb
        s_and_b32 s16, s3, 3          ; wave & 3
        """)
        def pack(t):
            v = 0
            for i, x in enumerate(t): v |= (x//32) << (8*i)
            return v & 0xffffffff, v >> 32
        a0, a1 = pack(tA[0]), pack(tA[1]); b0, b1 = pack(tB[0]), pack(tB[1])
        A(f"""
        s_mov_b32 s28, {a1[0]:#x}
        s_mov_b32 s29, {a1[1]:#x}
        s_mov_b32 s30, {b1[0]:#x}
        s_mov_b32 s31, {b1[1]:#x}
        s_cmp_eq_u32 s23, 0
        s_cselect_b32 s28, {a0[0]:#x}, s28
        s_cselect_b32 s29, {a0[1]:#x}, s29
        s_cselect_b32 s30, {b0[0]:#x}, s30
        s_cselect_b32 s31, {b0[1]:#x}, s31
        s_lshl_b32 s27, s25, 3
        s_lshr_b64 s[28:29], s[28:29], s27
        s_lshr_b64 s[30:31], s[30:31], s27
        s_and_b32 s28, s28, 0xff      ; colA/32
        s_and_b32 s30, s30, 0xff      ; colB/32
        s_lshl_b32 s29, s23, 3
        s_add_u32 s29, s29, s25       ; cb
        s_cmp_ge_u32 s25, 6
        s_cselect_b32 s34, 1, 0       ; isDFT
        s_movk_i32 s35, 3456
        s_cselect_b32 s35, 1280, s35  ; ld
        s_cmp_lt_u32 s25, 3
        s_cselect_b32 s33, 1, s34     ; T5
        s_and_b32 s58, s21, 3
        s_lshl_b32 s27, s23, 2
        s_add_u32 s58, s58, s27
        s_bfe_u32 s31, s21, 0x10002
        s_cmp_lt_u32 s3, 4
        s_cbranch_scc1 L_gstart
        """)
    def common_srds(self):
        A = self.A
        A("s_waitcnt lgkmcnt(0)")
        srd(A, 36, 4, 2048*1280)
        srd(A, 44, 12, WS_SIZE)
        A("s_load_dword s59, s[12:13], 0")
    def get_tag(self):
        self.A("s_waitcnt lgkmcnt(0)\ns_mul_i32 s59, s59, 0x9E3779B1\ns_add_u32 s59, s59, 0x85EBCA6B")
    def w2_task_addr(self, st, so, sd, vo):
        self.A(f"""
        v_lshrrev_b32 v{vo}, 3, v0
        v_mul_u32_u24 v{vo}, 1280, v{vo}
        v_and_b32 v{vo+1}, 7, v0
        v_lshl_add_u32 v{vo}, v{vo+1}, 4, v{vo}
        s_mul_i32 s17, s{st}, 6554
        s_lshr_b32 s17, s17, 16        ; ks
        s_mul_i32 s18, s17, 10
        s_sub_u32 s18, s{st}, s18      ; cl
        s_mul_i32 s{so}, s17, 40960
        s_lshl_b32 s17, s18, 12
        s_add_u32 s{sd}, s{so}, s17
        s_add_u32 s{sd}, s{sd}, {W_W2F}
        s_lshl_b32 s17, s18, 7
        s_add_u32 s{so}, s{so}, s17""")
    def w2_task_dma(self, so, sstg, vo, srd_):
        for n in range(4):
            self.A(f"s_add_u32 m0, s{sstg}, {1024*n}\n" + ("s_nop 0" if n == 0 else f"s_add_u32 s{so}, s{so}, 10240") + f"\nbuffer_load_dwordx4 v{vo}, s[{srd_}:{srd_+3}], s{so} offen lds")
    def w2_task_fin(self, sd, sstg, t, d, wait=None):
        A = self.A
        A(f"""v_bfe_u32 v{t}, v0, 5, 1
        v_lshlrev_b32 v{t}, 4, v{t}
        v_bfe_u32 v{t+1}, v0, 4, 1
        v_lshl_add_u32 v{t}, v{t+1}, 2, v{t}
        v_bfe_u32 v{t+1}, v0, 2, 2
        v_add_u32 v{t}, v{t}, v{t+1}
        v_lshlrev_b32 v{t}, 7, v{t}
        v_and_b32 v{t+1}, 3, v0
        v_lshl_add_u32 v{t}, v{t+1}, 3, v{t}
        v_add_u32 v{t}, s{sstg}, v{t}
        v_lshlrev_b32 v{t+1}, 4, v0""")
        if wait: A(wait)
        for nl in range(4):
            for k in range(2): A(f"ds_read_b64_tr_b16 {vr(d+4*nl+2*k,2)}, v{t} offset:{1024*k + 32*nl}")
        for nl in range(4):
            A(f"s_waitcnt lgkmcnt({6-2*nl})\nbuffer_store_dwordx4 {vr(d+4*nl,4)}, v{t+1}, s[44:47], s{sd} offen offset:{1024*nl} sc1")

    def g_phase0(self):
        A = self.A
        A.label("L_gstart")
        A(f"""
        v_and_b32 v11, 31, v0          ; l'
        v_lshrrev_b32 v12, 5, v0       ; hh
        s_mov_b32 s17, 81920
        v_mul_lo_u32 v13, v12, s17
        v_lshl_add_u32 v13, v11, 4, v13
        s_and_b32 s17, s29, 3
        s_lshl_b32 s17, s17, 2
        s_add_u32 s17, s17, s16
        s_lshl_b32 s48, s17, 1         ; j0 = 8(cb&3)+2g
        s_lshr_b32 s49, s29, 2         ; cb>>2
        s_lshl_b32 s50, s26, 2
        s_add_u32 s50, s50, s49        ; c
        s_lshl_b32 s17, s48, 6
        s_add_u32 s17, s17, s50
        s_mul_i32 s51, s17, 1280
        """)
        self.common_srds()
        A("""
        buffer_load_dwordx4 v[20:23], v13, s[36:39], s51 offen
        buffer_load_dwordx4 v[24:27], v13, s[36:39], s51 offen offset:512
        s_mov_b32 exec_lo, 0xffff
        s_mov_b32 exec_hi, 0xffff
        buffer_load_dwordx4 v[28:31], v13, s[36:39], s51 offen offset:1024
        s_mov_b64 exec, -1
        s_lshl_b32 s52, s16, 8
        s_add_u32 s52, s52, s2
        s_add_u32 s52, s52, 512
        s_cmp_ge_u32 s52, 540
        s_cbranch_scc1 L_g_now2a""")
        srd(A, 40, 80, 1728*1280)
        self.w2_task_addr(52, 55, 57, 17)
        A(f"s_mov_b32 s56, {L_STG3}")
        self.w2_task_dma(55, 56, 17, 40)
        A.label("L_g_now2a")
        self.g_addr_setup()
        for i in range(80): A(f"v_mov_b32 v{self.ACC+i}, 0")
        self.get_tag()
        A("s_cmp_ge_u32 s52, 540\ns_cbranch_scc1 L_g_w0\ns_waitcnt vmcnt(4)\ns_branch L_g_w1\nL_g_w0:\ns_waitcnt vmcnt(0)\nL_g_w1:")
        lo16 = "s_mov_b32 exec_lo, 0xffff\ns_mov_b32 exec_hi, 0xffff"
        for d in range(8): A(f"v_lshlrev_b32 v{32+2*d}, 16, v{20+d}\nv_and_b32 v{33+2*d}, 0xffff0000, v{20+d}")
        A("v_add_f32 v56, v32, v34\nv_add_f32 v57, v33, v35")
        for d in range(2, 8): A(f"v_add_f32 v56, v56, v{32+2*d}\nv_add_f32 v57, v57, v{33+2*d}")
        A(lo16)
        for d in range(8, 12): A(f"v_lshlrev_b32 v{32+2*d}, 16, v{20+d}\nv_and_b32 v{33+2*d}, 0xffff0000, v{20+d}\nv_add_f32 v56, v56, v{32+2*d}\nv_add_f32 v57, v57, v{33+2*d}")
        A("s_mov_b64 exec, -1")
        def allreduce(regs, t):
            for mode in ("quad_perm:[1,0,3,2]", "quad_perm:[2,3,0,1]", "row_half_mirror", "row_mirror"):
                A("s_nop 1" if len(regs) == 1 else "s_nop 0")
                for r in regs: A(f"v_add_f32_dpp v{r}, v{r}, v{r} {mode} row_mask:0xf bank_mask:0xf")
            for k, r in enumerate(regs): A(f"v_mov_b32 v{t+k}, v{r}")
            A("s_nop 1")
            for k, r in enumerate(regs): A(f"v_permlane16_swap_b32 v{r}, v{t+k}")
            A("s_nop 1")
            for k, r in enumerate(regs): A(f"v_add_f32 v{r}, v{r}, v{t+k}")
        allreduce([56, 57], 58)
        A("""v_add_f32 v58, v56, v57
        v_sub_f32 v57, v56, v57        ; alt
        v_mul_f32 v58, 0x3acccccd, v58 ; mean
        v_mov_b32 v59, 0
        v_mov_b32 v60, 0""")
        def sq(d): A(f"v_sub_f32 v{32+2*d}, v{32+2*d}, v58\nv_sub_f32 v{33+2*d}, v{33+2*d}, v58\nv_fmac_f32 v59, v{32+2*d}, v{32+2*d}\nv_fmac_f32 v60, v{33+2*d}, v{33+2*d}")
        for d in range(8): sq(d)
        A(lo16)
        for d in range(8, 12): sq(d)
        A("s_mov_b64 exec, -1\nv_add_f32 v59, v59, v60")
        allreduce([59], 60)
        A(f"""
        v_mul_f32 v59, 0x3acccccd, v59          ; var
        v_cvt_pk_bf16_f32 v59, v59, v59
        v_lshlrev_b32 v59, 16, v59
        v_add_f32 v59, 0x3727c5ac, v59
        v_cvt_pk_bf16_f32 v59, v59, v59
        v_lshlrev_b32 v59, 16, v59
        v_sqrt_f32 v59, v59
        v_cvt_pk_bf16_f32 v32, -v58, -v58       ; rec0 = (-m,-m)
        v_cvt_pk_bf16_f32 v33, v59, 0
        v_lshlrev_b32 v59, 16, v33
        v_rcp_f32 v34, v59                      ; r
        v_add_u32 v36, s48, v12                 ; j
        v_mul_f32 v35, v34, v57
        v_cvt_pk_bf16_f32 v35, v35, v35         ; z320
        s_lshl_b32 s17, s49, 5
        v_add_u32 v37, s17, v36                 ; rho
        v_lshlrev_b32 v38, 3, v37
        v_lshlrev_b32 v39, 2, v37
        s_lshl_b32 s17, s26, 11
        s_add_u32 s17, s17, {W_STAT}
        v_lshrrev_b32 v40, 4, v36
        v_lshlrev_b32 v40, 7, v40
        v_bfe_u32 v41, v36, 2, 1
        v_lshl_add_u32 v40, v41, 6, v40
        v_bfe_u32 v41, v36, 3, 1
        v_lshl_add_u32 v40, v41, 3, v40
        v_and_b32 v41, 3, v36
        v_lshl_add_u32 v40, v41, 1, v40
        s_lshl_b32 s18, s26, 8
        s_lshl_b32 s19, s49, 4
        s_add_u32 s18, s18, s19
        s_add_u32 s18, s18, {W_Z + 320*4096}
        s_mov_b32 exec_lo, 1
        s_mov_b32 exec_hi, 1
        buffer_store_dwordx2 v[32:33], v38, s[44:47], s17 offen sc1
        buffer_store_dword v34, v39, s[44:47], s17 offen offset:1024 sc1
        buffer_store_short v35, v40, s[44:47], s18 offen sc1
        s_mov_b64 exec, -1
        s_cmp_ge_u32 s52, 540
        s_cbranch_scc1 L_g_now2b""")
        self.w2_task_fin(57, 56, 14, 40, wait="s_waitcnt vmcnt(3)")
        A.label("L_g_now2b")

    XA = 2; WA = 6; FR = [16, 40, 64, 88]; ACC = 112; CSA = 192; SEL = 200
    def g_addr_setup(self):
        XA, WA = self.XA, self.WA
        self.A(f"""
        s_lshl_b32 s17, s16, 12
        v_bfe_u32 v60, v11, 1, 3
        v_xor_b32 v60, v60, v12
        v_lshlrev_b32 v60, 4, v60
        v_lshl_add_u32 v60, v11, 7, v60
        v_add_u32 v{XA}, s17, v60
        v_xor_b32 v{XA+1}, 32, v{XA}
        v_xor_b32 v{XA+2}, 64, v{XA}
        v_xor_b32 v{XA+3}, 96, v{XA}
        v_bfe_u32 v60, v0, 2, 2
        v_lshl_add_u32 v61, v12, 3, v60
        v_bfe_u32 v62, v0, 4, 1
        v_lshlrev_b32 v62, 5, v62
        v_and_b32 v63, 3, v0
        v_lshl_add_u32 v62, v63, 3, v62
        v_lshl_add_u32 v{WA+4}, v61, 6, v62
        v_add_u32 v{WA+4}, 32768, v{WA+4}
        v_lshl_add_u32 v62, v61, 8, v62
        v_lshl_add_u32 v62, v60, 6, v62
        v_add_u32 v62, 16384, v62
        """)
        for j in range(4):
            self.A(f"s_add_u32 s17, s16, {j}\ns_and_b32 s17, s17, 3\ns_lshl_b32 s17, s17, 6\nv_xor_b32 v{WA+j}, s17, v62")
        self.A(f"""v_lshrrev_b32 v60, 4, v0
        v_xor_b32 v60, v60, v0
        v_and_b32 v60, 1, v60
        v_cmp_eq_u32 vcc, 0, v60
        v_mov_b32 v61, 0x3f803f80
        s_nop 0""")
        for i in range(4): self.A(f"v_cndmask_b32 v{self.SEL+i}, 0, v61, vcc")
        for i in range(8): self.A(f"v_mov_b32 v{self.CSA+i}, 0")
    def reads(self, u, T, off):
        f = self.FR[u]; L = [f"ds_read_b128 {vr(f,4)}, v{self.XA+u} offset:{off}"]
        for j in range(T):
            for t in range(2):
                o = off + (4096*u + 1024*t if j < 4 else 1024*u + 256*t)
                L.append(f"ds_read_b64_tr_b16 {vr(f+4+4*j+2*t,2)}, v{self.WA+j} offset:{o}")
        return L
    def mfma(self, u, j, swap):
        f = self.FR[u]; a = self.ACC + 16*j
        w, x = vr(f+4+4*j, 4), vr(f, 4)
        if swap: w, x = x, w
        return f"v_mfma_f32_32x32x16_bf16 {vr(a,16)}, {w}, {x}, {vr(a,16)}"
    @staticmethod
    def interleave(ms, rs):
        out = []; n = len(ms); k = 0
        for i, m in enumerate(ms):
            out.append(m)
            cnt = (len(rs) - k + (n - i) - 1) // (n - i)
            out += rs[k:k+cnt]; k += cnt
        return out
    def csm(self, u, T, wv):
        f = self.FR[u]
        L = [f"v_mfma_f32_16x16x32_bf16 {vr(self.CSA,4)}, {vr(self.SEL,4)}, {vr(f+4,4)}, {vr(self.CSA,4)}"]
        if T == 5 and wv == u:
            L.append(f"v_mfma_f32_16x16x32_bf16 {vr(self.CSA+4,4)}, {vr(self.SEL,4)}, {vr(f+20,4)}, {vr(self.CSA+4,4)}")
        return L
    def g_main(self, tag, T, swap):
        A = self.A; NR = 1 + 2*T
        A.label(f"L_g{tag}")
        copies = range(4) if T == 5 else [None]
        if T == 5:
            for wv in range(1, 4): A(f"s_cmp_eq_u32 s16, {wv}\ns_cbranch_scc1 L_g{tag}_e{wv}")
        n0 = self.nstamp["G"]
        for wv in copies:
            t = f"{tag}{wv}"
            self.nstamp["G"] = n0
            A.label(f"L_g{tag}_e{wv}")
            A(f"s_mov_b32 s18, 0\ns_mov_b32 s17, {2*SLOT}")
            A("s_barrier")
            self.stamp("G", "B0")
            A("\n".join(self.reads(0, T, 0) + self.reads(1, T, 0)))
            A(".p2align 3")
            A.label(f"L_g{t}_loop")
            def step(u, nu, off, pre=None):
                ms = [self.mfma(u, j, swap) for j in range(T)] + self.csm(u, T, wv)
                A(f"s_waitcnt lgkmcnt({NR})\ns_nop 0")
                if pre:
                    A(ms[0]); A(pre[0]); A(ms[1]); A(pre[1]); ms = ms[2:]
                A("\n".join(self.interleave(ms, self.reads(nu, T, off))))
            step(0, 2, 0); step(1, 3, 0)
            step(2, 0, SLOT, ("s_add_u32 s18, s18, 1\ns_cmp_eq_u32 s18, 5", "s_barrier\ns_nop 0"))
            step(3, 1, SLOT); step(0, 2, SLOT); step(1, 3, SLOT)
            adv = [f"v_add_u32 v{2+i}, s17, v{2+i}" for i in range(9)]
            step(2, 0, 0, ("\n".join(adv[:5]) + "\ns_nop 0", "\n".join(adv[5:]) + f"\ns_cbranch_scc1 L_g{t}_tail\ns_sub_u32 s17, 0, s17\ns_waitcnt vmcnt(0)\ns_barrier"))
            step(3, 1, 0)
            A(f"s_branch L_g{t}_loop")
            A.label(f"L_g{t}_tail")
            A("\n".join(self.csm(2, T, wv)))
            for j in range(2, T): A(self.mfma(2, j, swap))
            A("s_waitcnt lgkmcnt(0)")
            A("\n".join(self.csm(3, T, wv)))
            if wv is not None and wv < 3: A(f"s_branch L_g{tag}_fin")
        A.label(f"L_g{tag}_fin")
        c = self.CSA
        fill = [
          f"v_and_b32 v11, 31, v0\nv_lshlrev_b32 v12, 4, v11\ns_lshl_b32 s17, s16, 10\ns_add_u32 s17, s17, {L_CORR}\nv_add_u32 v13, s17, v12",
          f"s_lshl_b32 s17, s16, 2\ns_add_u32 s17, s17, {L_CORR + 4096}\nv_add_u32 v14, s17, v12\nv_and_b32 v15, 16, v0\nv_cmp_ne_u32 vcc, 0, v15\ns_nop 0",
          f"v_cndmask_b32 v{c}, v{c}, v{c+1}, vcc\nv_cndmask_b32 v{c+4}, v{c+4}, v{c+5}, vcc\nv_cvt_pk_bf16_f32 v{c+1}, v{c}, v{c}\nv_cvt_pk_bf16_f32 v{c+5}, v{c+4}, v{c+4}\nv_lshlrev_b32 v{c+1}, 16, v{c+1}\nv_lshlrev_b32 v{c+5}, 16, v{c+5}",
          f"v_sub_f32 v{c+2}, v{c}, v{c+1}\nv_sub_f32 v{c+6}, v{c+4}, v{c+5}\nv_cvt_pk_bf16_f32 v{c}, v{c+1}, v{c+2}\nv_cvt_pk_bf16_f32 v{c+4}, v{c+5}, v{c+6}\ns_mov_b32 exec_hi, 0\nds_write_b32 v13, v{c}" + (f"\nds_write_b32 v14, v{c+4}" if T == 5 else "") + "\ns_mov_b32 exec_hi, -1",
          ""]
        for j in range(T):
            A(self.mfma(3, j, swap))
            if fill[j]: A(fill[j])
        A(f"""s_lshl_b32 s17, s16, 8
        s_add_u32 s17, s17, {L_STAT}
        v_lshl_add_u32 v11, v11, 3, s17
        v_lshlrev_b32 v12, 4, v0
        v_add_u32 v12, {L_CORR}, v12
        v_cmp_gt_u32 vcc, 32, v0
        s_waitcnt lgkmcnt(0)
        s_barrier""")
        self.stamp("G", "B10")
        A("ds_read_b64 v[14:15], v11")
        for j in range(T):
            if j < 4: A(f"s_add_u32 s17, s16, {j}\ns_and_b32 s17, s17, 3\ns_lshl_b32 s17, s17, 10\nv_add_u32 v13, s17, v12\nds_read_b128 {vr(20+4*j,4)}, v13")
            else: A(f"ds_read_b128 {vr(20+4*j,4)}, v12 offset:4096")
        A(f"""s_waitcnt lgkmcnt({T})
        v_cndmask_b32 v16, v15, v14, vcc
        v_cndmask_b32 v17, 0, v14, vcc
        v_cndmask_b32 v18, 0, v14, vcc
        v_cndmask_b32 v19, 0, v14, vcc""")
        for j in range(T):
            A(f"s_waitcnt lgkmcnt({T-1-j})" + ("\ns_nop 0" if j == 0 else "")); A(self.mfma(0, j, swap))
    def g_epi_h(self, T):
        A = self.A; ACC = self.ACC
        A(f"""
        v_and_b32 v11, 15, v0
        v_lshlrev_b32 v11, 4, v11
        v_bfe_u32 v12, v0, 4, 1
        v_lshl_add_u32 v11, v12, 10, v11
        v_lshrrev_b32 v12, 5, v0
        v_lshl_add_u32 v11, v12, 8, v11
        s_lshl_b32 s17, s26, 2
        s_add_u32 s17, s17, s16
        s_mul_i32 s17, s17, {HC}
        s_add_u32 s17, s17, {W_H}
        s_lshl_b32 s18, s30, 11
        s_add_u32 s18, s18, s17        ; tile 4
        s_lshl_b32 s19, s28, 11
        s_add_u32 s48, s17, s19        ; tile 0
        s_lshl_b32 s17, s16, 11
        s_add_u32 s17, s17, s48
        s_lshl_b32 s50, s26, 7
        s_lshl_b32 s51, s29, 2
        s_add_u32 s50, s50, s51
        s_add_u32 s50, s50, {W_FH}
        .p2align 3""")
        for j in range(T):
            a = ACC + 16*j; o = 40 + 8*(j & 1); t = 56
            for p in range(8):
                tp = t + 2*(p & 3)
                A(f"v_max_f32 v{tp}, 0, v{a+2*p}\nv_max_f32 v{tp+1}, 0, v{a+2*p+1}")
                if p >= 1:
                    q = p-1; tq = t + 2*(q & 3)
                    A(f"v_pk_mul_f32 {vr(tq,2)}, {vr(tq,2)}, {vr(a+2*q,2)}")
                if p >= 2:
                    q = p-2; tq = t + 2*(q & 3)
                    A(f"v_cvt_pk_bf16_f32 v{o+q}, v{tq}, v{tq+1}")
            A(f"v_pk_mul_f32 {vr(t+6,2)}, {vr(t+6,2)}, {vr(a+14,2)}")
            A(f"v_cvt_pk_bf16_f32 v{o+6}, v{t+4}, v{t+5}\nv_cvt_pk_bf16_f32 v{o+7}, v{t+6}, v{t+7}")
            so = "s18" if j == 4 else "s17"
            A(f"buffer_store_dwordx4 {vr(o,4)}, v11, s[44:47], {so} offen sc1\nbuffer_store_dwordx4 {vr(o+4,4)}, v11, s[44:47], {so} offen offset:512 sc1")
            if j < 3: A(f"s_add_u32 s17, s16, {j+1}\ns_and_b32 s17, s17, 3\ns_lshl_b32 s17, s17, 11\ns_add_u32 s17, s17, s48")
        A(f"v_mov_b32 v10, {L_SYNC}")
    def g_epi_z(self):
        A = self.A; ACC = self.ACC
        A(f"""
        v_lshrrev_b32 v12, 5, v0
        s_lshl_b32 s17, s16, 7
        s_add_u32 s17, s17, {L_STAT + 1024}
        v_lshl_add_u32 v11, v12, 4, s17""")
        for q in range(4): A(f"ds_read_b128 {vr(40+4*q,4)}, v11 offset:{32*q}")
        A(f"""v_and_b32 v11, 31, v0
        v_mul_u32_u24 v11, {ZROW}, v11
        v_lshl_add_u32 v11, v12, 6, v11
        s_lshl_b32 s17, s16, 4
        v_add_u32 v11, s17, v11
        v_mov_b32 v10, {L_SYNC}
        s_waitcnt lgkmcnt(0)
        .p2align 3""")
        for j in range(5):
            a = ACC + 16*j; o = 56 + 8*(j & 1)
            for p in range(8): A(f"v_pk_mul_f32 {vr(a+2*p,2)}, {vr(a+2*p,2)}, {vr(40+2*p,2)}")
            for p in range(8): A(f"v_cvt_pk_bf16_f32 v{o+p}, v{a+2*p}, v{a+2*p+1}")
            if j < 4:
                A(f"s_add_u32 s17, s16, {j}\ns_and_b32 s17, s17, 3\ns_mul_i32 s17, s17, {32*ZROW}\ns_nop 0\nv_add_u32 v13, s17, v11")
                A(f"ds_write_b128 v13, {vr(o,4)}\nds_write_b128 v13, {vr(o+4,4)} offset:128")
            else:
                A(f"ds_write_b128 v11, {vr(o,4)} offset:{j*32*ZROW}\nds_write_b128 v11, {vr(o+4,4)} offset:{j*32*ZROW + 128}")
        A("s_waitcnt lgkmcnt(0)")
        self.lds_inc(10, SY_ZW, 13)
        A(f"""
        v_lshrrev_b32 v12, 4, v0
        s_mul_i32 s17, s16, 40
        v_add_u32 v13, s17, v12
        v_mul_u32_u24 v11, {ZROW}, v13
        v_and_b32 v14, 15, v0
        v_lshl_add_u32 v11, v14, 4, v11
        v_lshlrev_b32 v12, 12, v12
        v_lshl_add_u32 v12, v14, 4, v12
        s_mul_i32 s18, s23, {PZ}
        s_add_u32 s18, s18, {W_Z}
        s_lshl_b32 s48, s26, 8
        s_add_u32 s18, s18, s48
        s_lshl_b32 s48, s28, 5                 ; colA
        s_lshl_b32 s49, s30, 5
        s_sub_u32 s49, s49, 128                ; colB - 128
        s_and_b32 s50, s25, 1
        s_lshl_b32 s50, s50, 7
        s_lshl_b32 s51, s23, 4
        s_add_u32 s51, s51, s26
        s_lshl_b32 s51, s51, 2
        s_add_u32 s50, s50, s51
        s_add_u32 s50, s50, {W_FZ}""")
        self.lds_spin(10, SY_ZW, 4, 13)
        for n in range(10): A(f"ds_read_b128 {vr(112+4*n,4)}, v11 offset:{4*n*ZROW}")
        for n in range(10):
            A(f"""s_add_u32 s52, s17, {4*n}
            s_cmp_lt_u32 s52, 128
            s_cselect_b32 s51, s48, s49
            s_add_u32 s52, s52, s51
            s_lshl_b32 s52, s52, 12
            s_add_u32 s52, s52, s18
            s_waitcnt lgkmcnt({9-n})
            buffer_store_dwordx4 {vr(112+4*n,4)}, v12, s[44:47], s52 offen sc1""")
        self.lds_inc(10, SY_ZF, 13)

    HB = [4, 20]; WR = 36; AC2 = 176
    def g_phase2(self):
        A = self.A; WR, AC2 = self.WR, self.AC2
        A.label("L_g_issued")
        self.stamp("G", "issued")
        A(f"""
        s_lshr_b32 s17, {KS0[0] | KS0[1] << 8 | KS0[2] << 16 | KS0[3] << 24:#x}, 0
        s_lshl_b32 s18, s16, 3
        s_lshr_b32 s17, s17, s18
        s_and_b32 s48, s17, 0xff               ; ks0
        s_mul_i32 s49, s48, 40960
        s_mul_i32 s17, s58, 5120
        s_add_u32 s49, s49, s17
        s_add_u32 s49, s49, {W_W2F}            ; w2f soffset
        s_lshl_b32 s51, s48, 11
        s_lshl_b32 s17, s31, 10
        s_add_u32 s51, s51, s17
        s_add_u32 s51, s51, {W_H}
        s_lshl_b32 s18, s26, 2""")
        for rl in range(4):
            A(f"s_add_u32 s17, s16, {rl}\ns_and_b32 s17, s17, 3\ns_add_u32 s17, s17, s18\ns_mul_i32 s17, s17, {HC}\ns_add_u32 s{52+rl}, s17, s51")
        A(f"""v_lshlrev_b32 v1, 4, v0
        v_mov_b32 v2, s59
        v_mov_b32 v3, s50
        v_mov_b32 v4, 1
        s_waitcnt vmcnt(0)""")
        self.stamp("G", "acked")
        A(f"""s_mov_b64 exec, 1
        ds_add_rtn_u32 v4, v10, v4 offset:{SY_ACK}
        s_waitcnt lgkmcnt(0)
        v_cmp_eq_u32 vcc, 3, v4
        s_and_saveexec_b64 s[56:57], vcc
        s_cbranch_execz L_g_noflag
        buffer_store_dword v2, v3, s[44:47], 0 offen sc1
        L_g_noflag:
        s_mov_b64 exec, -1""")
        self.lds_spin(10, SY_FW, 1, 4)
        for s in range(NREG):
            for nt in range(5):
                if nt == 4: A("s_add_u32 s17, s49, 4096")
                A(f"buffer_load_dwordx4 {vr(WR+20*s+4*nt,4)}, v1, s[44:47], {'s17' if nt == 4 else 's49'} offen offset:{(nt&3)*1024} sc1")
            A("s_add_u32 s49, s49, 40960")
        self.stamp("G", "w2iss")
        A(f"""s_lshl_b32 s17, s26, 7
        s_add_u32 s17, s17, {W_FH}
        v_lshlrev_b32 v3, 2, v0""")
        self.poll(4, 1, 3, "s17", 2, setexec="s_mov_b64 exec, 0x3f3f")
        self.stamp("G", "Hok")
        W = lambda s: WR + 20*s
        buf = {0: 4, 1: 20, 2: 4, 3: W(0), 4: 20, 5: W(1), 6: 4, 7: W(2), 8: W(3), 9: 20, 10: W(4), 11: W(5), 12: 4, 13: W(6)}
        issue_after = {-1: [0, 1], 0: [2, 3], 1: [4, 5], 2: [6, 7], 3: [8], 4: [9, 10], 5: [11], 6: [12, 13]}
        q = []
        def hloads(s):
            L = []
            for rl in range(4):
                L.append(f"buffer_load_dwordx4 {vr(buf[s]+4*rl,4)}, v1, s[44:47], s{52+rl} offen offset:{(s&1)*2048} sc1")
                q.append(s)
            if s & 1:
                L[-1] += "\n" + "\n".join(f"s_add_u32 s{52+rl}, s{52+rl}, 4096" for rl in range(4))
            return L
        def wreads(s):
            b = W(s & 1)
            return [f"ds_read_b128 {vr(b+4*nt,4)}, v2 offset:{(s-NREG)*5120 + nt*1024}" for nt in range(5)]
        A("\n".join(hloads(0) + hloads(1)))
        A(f"""s_mul_i32 s17, s16, 35840
        s_cmp_eq_u32 s16, 3
        s_cselect_b32 s48, {LW[3]}, s17
        v_add_u32 v2, s48, v1""")
        pend = []
        for s in range(14):
            if s == 13: A("s_cmp_ge_u32 s16, 2\ns_cbranch_scc1 L_g_p2done")
            last = max(i for i, e in enumerate(q) if e == s)
            w = f"s_waitcnt vmcnt({len(q)-1-last})"
            if s >= NREG: w += " lgkmcnt(0)"
            A(w + "\n.p2align 3")
            wb = W(s) if s < NREG else W(s & 1)
            ms = []
            for rl in range(4):
                for nt in range(5):
                    a = AC2 + 4*(5*rl + nt)
                    ms.append(f"v_mfma_f32_16x16x32_bf16 {vr(a,4)}, {vr(wb+4*nt,4)}, {vr(buf[s]+4*rl,4)}, {'0' if s == 0 else vr(a,4)}")
            fill = list(pend); pend = []
            if s == NREG-1:
                fill.append("SPIN")
            if NREG-1 <= s < 13:
                if s == 12: pass
                fill += wreads(s+1)
            for t in issue_after.get(s-1, []) if s >= 1 else []:
                fill += hloads(t)
            out = self.interleave(ms, fill)
            for o in out:
                if o == "SPIN":
                    A(f"s_lshl_b32 s17, s16, 2\nv_mov_b32 v3, s17\nv_add_u32 v3, {L_SYNC + SY_W2}, v3")
                    self.lds_spin(3, 0, 1, 3+0) if False else None
                    l = self.lab("sp"); d = l + "d"
                    A(f"""s_mov_b32 s19, 0
                    {l}:
                    ds_read_b32 v0, v3
                    s_waitcnt lgkmcnt(0)
                    v_readfirstlane_b32 s27, v0
                    {self.spin_guard(d)}
                    s_cmp_ge_u32 s27, 1
                    s_cbranch_scc0 {l}
                    {d}:
                    v_lshrrev_b32 v0, 4, v1
                    .p2align 3""")
                else: A(o)
        A.label("L_g_p2done")
        self.stamp("G", "p2done")
        A("s_waitcnt vmcnt(0) lgkmcnt(0)\ns_nop 7")
        for rl in range(1, 4):
            for nt in range(5):
                A(f"ds_write_b128 v2, {vr(AC2+4*(5*rl+nt),4)} offset:{(rl-1)*5120 + nt*1024}")
        for rl in range(1, 4):
            A(f"""s_sub_u32 s17, s16, {rl}
            s_and_b32 s17, s17, 3
            s_mul_i32 s18, s17, 35840
            s_cmp_eq_u32 s17, 3
            s_cselect_b32 s18, {LW[3]}, s18
            s_add_u32 s18, s18, {(rl-1)*5120}
            v_add_u32 v{3+rl}, s18, v1""")
        A(f"""v_and_b32 v8, 15, v0              ; jl
        v_lshrrev_b32 v9, 4, v0                 ; g
        s_lshl_b32 s17, s16, 4
        v_add_u32 v10, s17, v8
        v_mul_u32_u24 v10, {PROW}, v10
        v_lshl_add_u32 v10, v9, 4, v10
        v_add_u32 v10, {L_P}, v10               ; p address
        s_lshl_b32 s17, s16, 5
        s_lshl_b32 s18, s31, 4
        s_add_u32 s17, s17, s18
        s_lshl_b32 s17, s17, 2
        s_add_u32 s17, s17, {L_STAT + 1024}
        v_lshl_add_u32 v11, v8, 2, s17          ; r address
        ds_read_b32 v12, v11
        s_add_u32 s48, s48, 15360
        v_mul_u32_u24 v13, 176, v8
        v_lshl_add_u32 v13, v9, 3, v13
        v_add_u32 v13, s48, v13""")
        for n in range(3):
            A(f"""v_add_u32 v20, {64*n}, v0
            v_mul_u32_u24 v21, 6554, v20
            v_lshrrev_b32 v21, 16, v21
            v_mul_u32_u24 v22, 10, v21
            v_sub_u32 v22, v20, v22
            v_lshlrev_b32 v22, 4, v22
            v_mul_u32_u24 v23, 176, v21
            v_add3_u32 v{14+n}, v23, v22, s48
            v_mul_u32_u24 v21, 0x14000, v21
            v_add_u32 v{17+n}, v21, v22""")
        srd(A, 40, 84, 2048*1280)
        A(f"""s_lshl_b32 s17, s31, 10
        s_lshl_b32 s18, s26, 2
        s_add_u32 s17, s17, s18
        s_add_u32 s17, s17, s16
        s_mul_i32 s17, s17, 1280
        s_mul_i32 s18, s58, 160
        s_add_u32 s49, s17, s18
        s_waitcnt lgkmcnt(0)
        v_mul_f32 v12, v12, v12
        s_barrier""")
        self.stamp("G", "B15")
        for nt in range(5):
            for rl in range(1, 4): A(f"ds_read_b128 {vr(32+16*nt+4*(rl-1),4)}, v{3+rl} offset:{nt*1024}")
            A(f"ds_read_b128 {vr(32+16*nt+12,4)}, v10 offset:{nt*64}")
        for nt in range(5):
            a = AC2 + 4*nt; b = 32 + 16*nt
            A(f"s_waitcnt lgkmcnt({min(15, 4*(4-nt))})")
            for h in range(2):
                A(f"v_pk_add_f32 {vr(a+2*h,2)}, {vr(a+2*h,2)}, {vr(b+2*h,2)}\nv_pk_add_f32 {vr(b+4+2*h,2)}, {vr(b+4+2*h,2)}, {vr(b+8+2*h,2)}")
            for h in range(2):
                A(f"v_pk_add_f32 {vr(a+2*h,2)}, {vr(a+2*h,2)}, {vr(b+4+2*h,2)}")
            for h in range(2):
                A(f"v_pk_fma_f32 {vr(a+2*h,2)}, {vr(a+2*h,2)}, v[12:13], {vr(b+12+2*h,2)} op_sel_hi:[1,0,1]")
            A(f"v_cvt_pk_bf16_f32 v{b}, v{a}, v{a+1}\nv_cvt_pk_bf16_f32 v{b+1}, v{a+2}, v{a+3}\nds_write_b64 v13, {vr(b,2)} offset:{nt*32}")
        A("s_waitcnt lgkmcnt(0)")
        for n in range(3): A(f"ds_read_b128 {vr(20+4*n,4)}, v{14+n}")
        for n in range(3):
            if n == 2: A("s_mov_b32 exec_hi, 0")
            A(f"s_waitcnt lgkmcnt({2-n})\nbuffer_store_dwordx4 {vr(20+4*n,4)}, v{17+n}, s[40:43], s49 offen")
        A("s_mov_b64 exec, -1")
        self.stamp("G", "end")

    def l_setup(self):
        A = self.A
        def pk(r):
            v = 0
            for i, x in enumerate(r): v |= x << (4*i)
            return v & 0xffffffff, v >> 32
        A(f"""
        v_lshrrev_b32 v11, 3, v0
        s_lshl_b32 s17, s16, 3
        v_add_u32 v12, s17, v11
        s_mov_b32 s18, 81920
        v_mul_lo_u32 v2, v12, s18
        v_and_b32 v13, 7, v0
        v_lshrrev_b32 v14, 4, v0
        v_xor_b32 v13, v13, v14
        s_and_b32 s17, s16, 1
        s_lshl_b32 s17, s17, 2
        v_xor_b32 v13, s17, v13
        v_lshl_add_u32 v2, v13, 4, v2   ; x voffset
        v_mul_lo_u32 v3, v14, s35
        v_bfe_u32 v13, v0, 2, 2
        v_xor_b32 v15, v13, v14
        v_lshl_add_u32 v3, v15, 6, v3
        v_and_b32 v13, 3, v0
        v_lshl_add_u32 v3, v13, 4, v3   ; w voffset
        v_lshrrev_b32 v14, 2, v0
        v_mul_lo_u32 v4, v14, s35
        v_lshl_add_u32 v4, v13, 4, v4
        s_mul_i32 s48, s26, 5120
        s_lshl_b32 s17, s16, 4
        s_mul_i32 s49, s17, s35
        s_lshl_b32 s52, s30, 6
        s_add_u32 s52, s49, s52
        s_cmp_eq_u32 s33, 1
        s_cselect_b32 s52, s52, 0x40000000
        s_lshl_b32 s17, s28, 6
        s_add_u32 s49, s49, s17
        s_lshl_b32 s53, s35, 2
        s_lshl_b32 s54, s35, 6
        s_lshl_b32 s55, s16, 10
        s_add_u32 s73, s24, s25
        s_and_b32 s73, s73, 3           ; group""")
        for g in range(4):
            lo, hi = pk(SCHED[g])
            if g == 0: A(f"s_mov_b32 s56, {lo:#x}\ns_mov_b32 s57, {hi:#x}")
            else: A(f"s_cmp_eq_u32 s73, {g}\ns_cselect_b32 s56, {lo:#x}, s56\ns_cselect_b32 s57, {hi:#x}, s57")
        t = XSH[0] | XSH[1] << 4 | XSH[2] << 8 | XSH[3] << 12
        A(f"""s_lshl_b32 s27, s22, 2
        s_lshr_b32 s32, {t:#x}, s27
        s_and_b32 s32, s32, 15
        s_mul_i32 s27, s23, {XSH[4]}
        s_add_u32 s32, s32, s27
        s_mov_b32 s67, 0""")
        self.common_srds()
        A("""
        s_cmp_eq_u32 s23, 0
        s_cselect_b32 s8, s8, s10
        s_cselect_b32 s9, s9, s11
        s_cmp_eq_u32 s34, 1
        s_cselect_b32 s40, s8, s6
        s_cselect_b32 s41, s9, s7
        s_mov_b32 s42, 2211840
        s_cselect_b32 s42, 819200, s42
        s_mov_b32 s43, 0x20000""")
    def l_issue(self):
        A = self.A
        A(f"""
        s_and_b32 s66, s56, 15
        s_lshr_b64 s[56:57], s[56:57], 4
        s_add_u32 s66, s66, s32
        s_cmp_ge_u32 s66, 10
        s_cselect_b32 s27, 10, 0
        s_sub_u32 s66, s66, s27
        s_lshl_b32 s68, s66, 7
        s_add_u32 s68, s68, s48
        s_mul_i32 s69, s66, s54
        s_add_u32 s70, s69, s52
        s_add_u32 s69, s69, s49
        s_add_u32 s71, s67, s55
        s_lshl_b32 s72, s55, 2
        s_add_u32 s72, s72, s67""")
        for i in range(4):
            A(f"s_add_u32 m0, s71, {i*4096 - i*1280}\ns_nop 0\nbuffer_load_dwordx4 v2, s[36:39], s68 offen offset:{i*1280} lds")
        for i in range(4):
            A(f"s_add_u32 m0, s72, {16384 + i*1024}")
            A("s_nop 0" if i == 0 else "s_add_u32 s69, s69, s53")
            A("buffer_load_dwordx4 v3, s[40:43], s69 offen lds")
        A(f"""s_add_u32 m0, s71, 32768
        s_add_u32 s67, s67, {SLOT}
        buffer_load_dwordx4 v4, s[40:43], s70 offen lds
        s_cmp_eq_u32 s67, {NS*SLOT}
        s_cselect_b32 s67, 0, s67""")
    F1 = 64; TC = 76; TS = 92; F2 = 108
    def const_slices(self):
        F1, TC, TS, F2 = self.F1, self.TC, self.TS, self.F2
        S = []
        K8 = [0,1,2,3,8,9,10,11]
        def trig(arg_mul, arg_base, k, c, s):
            return f"v_fmamk_f32 v30, v{arg_mul}, {fl(k)}, v{arg_base}\nv_cos_f32 v{c}, v30\nv_sin_f32 v{s}, v30"
        s = f"""v_and_b32 v20, 15, v0
        s_and_b32 s17, s16, 1
        s_lshl_b32 s17, s17, 4
        v_add_u32 v22, s17, v20
        v_cvt_f32_u32 v22, v22            ; t1
        v_cvt_f32_u32 v20, v20            ; jl
        v_lshrrev_b32 v21, 4, v0
        v_lshlrev_b32 v23, 2, v21
        v_cvt_f32_u32 v23, v23            ; 4*G4
        v_lshrrev_b32 v24, 1, v21
        v_lshlrev_b32 v24, 4, v24
        v_and_b32 v21, 1, v21
        v_lshl_add_u32 v24, v21, 2, v24
        v_cvt_f32_u32 v24, v24            ; base0
        v_mul_f32 v25, {fl(1/32)}, v22
        v_mul_f32 v26, v25, v24
        """
        for jj in range(8): s += trig(25, 26, K8[jj], 32+jj, 40+jj) + "\n"
        s += "s_nop 0\n"
        for p in range(4):
            s += f"v_cvt_pk_bf16_f32 v{F1+p}, v{32+2*p}, v{33+2*p}\nv_cvt_pk_bf16_f32 v{F1+4+p}, v{40+2*p}, v{41+2*p}\nv_xor_b32 v{F1+8+p}, 0x80008000, v{F1+4+p}\n"
        S.append(s)
        s = f"v_mul_f32 v25, {fl(1/2048)}, v22\nv_mul_f32 v26, v25, v23\n"
        for a4 in range(4):
            for i in range(4): s += trig(25, 26, 16*a4+i, TC+4*a4+i, TS+4*a4+i) + "\n"
        S.append(s)
        for T in range(2):
            for v in range(2):
                s = f"v_fmaak_f32 v25, 2.0, v20, {fl(T)}\nv_mul_f32 v25, {fl(1/64)}, v25\nv_mul_f32 v26, v25, v23\n"
                for jj in range(8): s += trig(25, 26, 32*v + 16*(jj>>2) + (jj&3), 32+jj, 40+jj) + "\n"
                s += "s_nop 0\n"
                for p in range(4):
                    c = F2 + 8*T + 4*v + p; sn = c + 16
                    s += f"v_cvt_pk_bf16_f32 v{c}, v{32+2*p}, v{33+2*p}\nv_cvt_pk_bf16_f32 v{sn}, v{40+2*p}, v{41+2*p}\nv_xor_b32 v{c+32}, 0x80000000, v{c}\nv_xor_b32 v{sn+32}, 0x80000000, v{sn}\n"
                S.append(s)
        return S
    def l_phase1(self):
        A = self.A
        self.stamp("L", "pre-issue")
        self.l_issue()
        srd(A, 76, 14, 1728*2)
        A(f"""
        v_and_b32 v8, 31, v0
        v_lshlrev_b32 v8, 1, v8
        s_add_u32 s17, s28, s16
        s_lshl_b32 s17, s17, 6
        s_lshl_b32 s18, s30, 6
        s_cmp_eq_u32 s34, 1
        s_cselect_b32 s17, 0x40000000, s17
        s_cselect_b32 s18, 0x40000000, s18
        buffer_load_ushort v14, v8, s[76:79], s17 offen
        buffer_load_ushort v13, v8, s[76:79], s18 offen
        s_lshl_b32 s74, s16, 8
        s_add_u32 s74, s74, s2""")
        self.w2_task_addr(74, 75, 51, 5)
        A(f"s_lshl_b32 s50, s16, 12\ns_add_u32 s50, s50, {L_STG}\ns_cmp_ge_u32 s16, 2\ns_cselect_b32 s73, 7, s73")
        srd(A, 76, 80, 1728*1280)
        self.l_issue()
        def w2dma(g):
            l = self.lab("w2d")
            A(f"s_cmp_eq_u32 s73, {g}\ns_cbranch_scc0 {l}")
            self.w2_task_dma(75, 50, 5, 76)
            A.label(l)
        w2dma(0)
        self.get_tag()
        A(f"""
        v_mov_b32 v55, s59
        s_lshl_b32 s17, s26, 7
        s_add_u32 s74, s17, {W_FS}
        s_lshl_b32 s18, s29, 2
        s_add_u32 s18, s18, s74
        v_mov_b32 v52, s18
        s_lshl_b32 s18, s2, 2
        s_add_u32 s18, s18, {W_FW}
        v_mov_b32 v53, s18
        v_lshlrev_b32 v8, 4, v0
        v_lshlrev_b32 v7, 2, v0
        v_add_u32 v9, {L_CORR}, v8
        v_add_u32 v10, s55, v9
        v_cmp_le_u32 vcc, 32, v0
        v_mov_b32 v17, 0
        v_mov_b32 v18, 0
        v_mov_b32 v19, 0
        v_mov_b32 v12, {L_SYNC}
        """)
        S = self.const_slices()
        def flagstore(v):
            l = self.lab("fs")
            A(f"s_cmp_eq_u32 s16, 0\ns_cbranch_scc0 {l}\ns_mov_b64 exec, 1\nbuffer_store_dword v55, v{v}, s[44:47], 0 offen sc1\ns_mov_b64 exec, -1\n{l}:")
        for i in range(10):
            if i == 7: A("s_cmp_eq_u32 s16, 2\ns_cbranch_scc1 L_l_w7\ns_waitcnt vmcnt(9)\nL_l_w7:\ns_waitcnt vmcnt(10)")
            elif i == 9: A("s_cmp_eq_u32 s16, 2\ns_cbranch_scc1 L_l_w9\ns_waitcnt vmcnt(0)\nL_l_w9:\ns_waitcnt vmcnt(2)")
            else: A("s_waitcnt vmcnt(9)")
            A("s_barrier")
            if i in (0, 9): self.stamp("L", f"B{i}")
            if i == 2: flagstore(52)
            if i == 7: flagstore(53)
            if i == 5:
                A("s_cmp_ge_u32 s16, 2\ns_cbranch_scc1 L_l_n5")
                self.w2_task_fin(51, 50, 30, 32)
                A.label("L_l_n5")
            if i == 6:
                A("s_cmp_eq_u32 s16, 2\ns_cbranch_scc0 L_l_n6\ns_mov_b64 exec, 0xffff\nbuffer_load_dword v54, v7, s[44:47], s74 offen sc1\ns_mov_b64 exec, -1\nL_l_n6:")
            if i < 8: self.l_issue()
            if i < 3: w2dma(i+1)
            if i == 0:
                A(f"""v_cndmask_b32 v16, 0, v14, vcc
                ds_write_b128 v10, v[16:19]
                s_cmp_eq_u32 s16, 0
                s_cbranch_scc0 L_l_n0
                v_cndmask_b32 v16, 0, v13, vcc
                ds_write_b128 v9, v[16:19] offset:4096
                v_add_u32 v16, v12, v7
                ds_write_b32 v16, v17
                L_l_n0:
                s_waitcnt lgkmcnt(0)""")
            sl = {0: 0, 1: 1, 2: 2, 3: 3, 4: 4, 6: 5}.get(i)
            if sl is not None: A(S[sl])
            if i == 8:
                A("s_cmp_eq_u32 s16, 2\ns_cbranch_scc0 L_l_nchk")
                self.poll(54, 1, 7, "s74", 55, first_issued=True, setexec="s_mov_b64 exec, 0xffff")
                A(f"""s_lshl_b32 s17, s26, 11
                s_add_u32 s17, s17, {W_STAT}
                s_mov_b32 m0, {L_STAT}
                s_nop 0
                buffer_load_dwordx4 v8, s[44:47], s17 offen sc1 lds
                buffer_load_dwordx4 v8, s[44:47], s17 offen offset:1024 sc1 lds
                L_l_nchk:""")
        A(f"s_mov_b32 s17, {W_FW}\nbuffer_load_dwordx4 v[56:59], v8, s[44:47], s17 offen sc1\ns_waitcnt vmcnt(1)\ns_barrier")
    def l_gap(self):
        A = self.A
        A("s_waitcnt vmcnt(0)")
        self.poll(56, 4, 8, "s17", 55, first_issued=True)
        A(f"v_mov_b32 v16, 1\nds_write_b32 v12, v16 offset:{SY_FW}")
        self.stamp("L", "FWok")
        A("s_cmp_eq_u32 s34, 1\ns_cbranch_scc0 L_l_go\ns_cmp_lt_u32 s16, 2\ns_cbranch_scc0 L_l_go")
        self.lds_spin(12, SY_ZF, 4, 16)
        A.label("L_l_go")
        A(f"""
        s_lshl_b32 s18, s16, 3
        s_lshr_b32 s17, {KS0[0] | KS0[1] << 8 | KS0[2] << 16 | KS0[3] << 24:#x}, s18
        s_and_b32 s17, s17, 0xff
        s_add_u32 s17, s17, {NREG}
        s_mul_i32 s49, s17, 40960
        s_mul_i32 s17, s58, 5120
        s_add_u32 s49, s49, s17
        s_add_u32 s49, s49, {W_W2F}
        s_mul_i32 s17, s16, 35840
        s_cmp_eq_u32 s16, 3
        s_cselect_b32 s48, {LW[3]}, s17
        s_cmp_ge_u32 s16, 2
        s_cselect_b32 s18, 6, 7
        L_l_dma:
        s_mov_b32 m0, s48
        s_add_u32 s17, s49, 4096""")
        for nt in range(4): A(f"buffer_load_dwordx4 v8, s[44:47], s49 offen offset:{1024*nt} sc1 lds")
        A(f"""s_add_u32 m0, s48, 4096
        s_add_u32 s48, s48, 5120
        buffer_load_dwordx4 v8, s[44:47], s17 offen sc1 lds
        s_add_u32 s49, s49, 40960
        s_sub_u32 s18, s18, 1
        s_cmp_lg_u32 s18, 0
        s_cbranch_scc1 L_l_dma""")
        self.stamp("L", "w2iss")
        srd(A, 76, 82, 640*2)
        A(f"""s_lshl_b32 s17, s31, 10
        s_lshl_b32 s18, s26, 2
        s_add_u32 s17, s17, s18
        s_mul_i32 s17, s17, 1280
        s_mul_i32 s49, s58, 160
        s_add_u32 s48, s17, s49
        s_lshl_b32 s17, s16, 6""")
        for k in range(3):
            A(f"""v_add_u32 v20, s17, v0
            v_add_u32 v20, {256*k}, v20
            v_mul_u32_u24 v21, 6554, v20
            v_lshrrev_b32 v21, 16, v21
            v_mul_u32_u24 v22, 10, v21
            v_sub_u32 v22, v20, v22             ; piece
            v_lshlrev_b32 v{27+k}, 4, v22       ; b2 voffset
            v_mul_u32_u24 v23, {PROW}, v21
            v_lshl_add_u32 v{24+k}, v22, 5, v23 ; p address (-L_P)
            v_and_b32 v23, 15, v21
            v_mul_u32_u24 v23, 0x14000, v23
            v_lshrrev_b32 v21, 4, v21
            v_mul_u32_u24 v21, 1280, v21
            v_add3_u32 v23, v23, v21, v{27+k}""")
            if k == 2: A("s_cmp_ge_u32 s16, 2\ns_cbranch_scc1 L_l_px2")
            A(f"buffer_load_dwordx4 {vr(172+8*k,4)}, v23, s[36:39], s48 offen\nbuffer_load_dwordx4 {vr(176+8*k,4)}, v{27+k}, s[76:79], s49 offen")
        A.label("L_l_px2")
        A(f"""s_lshl_b32 s17, s16, 2
        v_add_u32 v16, s17, v12
        v_mov_b32 v17, 1
        s_waitcnt vmcnt(0)
        ds_write_b32 v16, v17 offset:{SY_W2}""")
        self.stamp("L", "w2land")
        for k in range(3):
            if k == 2: A("s_cmp_ge_u32 s16, 2\ns_cbranch_scc1 L_l_px3")
            x = 172 + 8*k; b = x + 4
            for d in range(4):
                A(f"""v_lshlrev_b32 v{32+2*d}, 16, v{x+d}
                v_and_b32 v{33+2*d}, 0xffff0000, v{x+d}
                v_lshlrev_b32 v40, 16, v{b+d}
                v_and_b32 v41, 0xffff0000, v{b+d}
                v_add_f32 v{32+2*d}, v{32+2*d}, v40
                v_add_f32 v{33+2*d}, v{33+2*d}, v41""")
            A(f"v_add_u32 v{24+k}, {L_P}, v{24+k}\nds_write_b128 v{24+k}, v[32:35]\nds_write_b128 v{24+k}, v[36:39] offset:16")
        A.label("L_l_px3")
        A("s_waitcnt lgkmcnt(0)")
        self.lds_inc(12, SY_P, 16)
    def l_fft(self):
        A = self.A; F1, TC, TS, F2 = self.F1, self.TC, self.TS, self.F2
        Z = 172; D1 = 204; P = 172; D3 = 236
        A(f"""s_lshr_b32 s17, s16, 1
        s_lshl_b32 s17, s17, 8
        s_add_u32 s48, s17, s2              ; job e
        s_cmp_gt_u32 s48, 320
        s_cbranch_scc1 L_l_nofft
        s_cmp_ge_u32 s48, 160
        s_cselect_b32 s17, 128, 0
        s_add_u32 s17, s17, {W_FZ}""")
        self.poll(16, 1, 7, "s17", 55, setexec="s_mov_b32 exec_hi, 0")
        self.stamp("L", "Zok")
        A(f"""v_bfe_u32 v16, v0, 2, 2
        v_lshlrev_b32 v16, 8, v16
        v_lshrrev_b32 v17, 4, v0
        v_lshl_add_u32 v16, v17, 6, v16
        v_and_b32 v18, 3, v0
        v_lshl_add_u32 v16, v18, 4, v16     ; z voffset
        s_lshl_b32 s49, s48, 12
        s_add_u32 s49, s49, {W_Z}
        s_add_u32 s50, s49, {PZ}
        s_cmp_eq_u32 s48, 320
        s_cselect_b32 s50, 0x40000000, s50""")
        for a4 in range(4):
            A(f"buffer_load_dwordx4 {vr(Z+4*a4,4)}, v16, s[44:47], s49 offen offset:{1024*a4} sc1")
            A(f"buffer_load_dwordx4 {vr(Z+16+4*a4,4)}, v16, s[44:47], s50 offen offset:{1024*a4} sc1")
        A(f"""v_and_b32 v18, 15, v0
        v_lshlrev_b32 v18, 4, v18
        v_lshl_add_u32 v18, v17, 9, v18
        s_lshl_b32 s49, s48, 13
        s_and_b32 s17, s16, 1
        s_lshl_b32 s18, s17, 11
        s_add_u32 s49, s49, s18
        s_add_u32 s49, s49, {W_Y}
        s_add_u32 s50, s49, 4096
        s_lshl_b32 s18, s48, 1
        s_add_u32 s18, s18, s17
        s_lshl_b32 s18, s18, 2
        s_add_u32 s18, s18, {W_FY}
        v_mov_b32 v19, s18""")
        mf = "v_mfma_f32_16x16x32_bf16"
        for a4 in range(4):
            zr, zi = vr(Z+4*a4,4), vr(Z+16+4*a4,4); re, im = vr(D1+4*a4,4), vr(D1+16+4*a4,4)
            A(f"""s_waitcnt vmcnt({6-2*a4})
            {mf} {re}, {zr}, {vr(F1,4)}, 0
            {mf} {im}, {zi}, {vr(F1,4)}, 0
            {mf} {re}, {zi}, {vr(F1+4,4)}, {re}
            {mf} {im}, {zr}, {vr(F1+8,4)}, {im}""")
        A("s_nop 1")
        for a4 in range(4):
            if a4 == 3: A("s_nop 0")
            for i in range(4):
                r = D1+4*a4+i; m = r+16; c = TC+4*a4+i; s = TS+4*a4+i
                A(f"""v_mul_f32 v{32+i}, v{r}, v{c}
                v_mul_f32 v{36+i}, v{m}, v{c}
                v_fmac_f32 v{32+i}, v{m}, v{s}
                v_fma_f32 v{36+i}, -v{r}, v{s}, v{36+i}""")
            pr = P + 4*(a4 >> 1) + 2*(a4 & 1); pi = pr + 8
            A(f"""v_cvt_pk_bf16_f32 v{pr}, v32, v33
            v_cvt_pk_bf16_f32 v{pr+1}, v34, v35
            v_cvt_pk_bf16_f32 v{pi}, v36, v37
            v_cvt_pk_bf16_f32 v{pi+1}, v38, v39""")
        A("s_nop 1")
        for k in range(4):
            for T in range(2):
                for jh in range(2):
                    d = vr(D3 + 8*T + 4*jh, 4)
                    f = F2 + 32*jh + 16*(k >> 1) + 8*T + 4*(k & 1)
                    A(f"{mf} {d}, {vr(P+4*k,4)}, {vr(f,4)}, {'0' if k == 0 else d}")
        A("s_nop 4")
        for T in range(2):
            for jh in range(2):
                if T == 1 and jh == 1: A("s_nop 1")
                A(f"buffer_store_dwordx4 {vr(D3+8*T+4*jh,4)}, v18, s[44:47], {'s49' if T == 0 else 's50'} offen offset:{256*jh} sc1")
        A("s_waitcnt vmcnt(0)\ns_mov_b64 exec, 1\nbuffer_store_dword v55, v19, s[44:47], 0 offen sc1\ns_mov_b64 exec, -1")
        A.label("L_l_nofft")
        self.stamp("L", "fftdone")
    def l_y(self):
        A = self.A
        A(f"""v_and_b32 v16, 15, v0               ; jl
        v_lshrrev_b32 v17, 4, v0                  ; e sub
        s_mul_i32 s17, s16, 20
        v_add_u32 v18, s17, v17                   ; e_loc(n=0)
        v_mul_u32_u24 v20, {PROW}, v16
        v_lshl_add_u32 v20, v18, 2, v20
        v_add_u32 v20, {L_P}, v20
        s_mul_i32 s48, s58, 80
        s_add_u32 s48, s48, s17
        s_cmp_ge_u32 s58, 4
        s_cbranch_scc1 L_l_mir
        v_add_u32 v21, {16*PROW}, v20
        v_add_u32 v22, {32*PROW}, v20
        v_add_u32 v23, {48*PROW}, v20
        v_lshlrev_b32 v24, 13, v17
        v_lshl_add_u32 v24, v16, 4, v24
        s_lshl_b32 s49, s48, 13
        s_lshl_b32 s17, s26, 9
        s_lshl_b32 s18, s31, 8
        s_add_u32 s17, s17, s18
        s_add_u32 s49, s49, s17
        s_add_u32 s49, s49, {W_Y}
        s_mov_b32 s50, 32768
        s_lshl_b32 s51, s48, 3
        s_branch L_l_mird
        L_l_mir:
        v_add_u32 v21, {48*PROW}, v20
        v_add_u32 v22, {32*PROW}, v20
        v_add_u32 v23, {16*PROW}, v20
        v_sub_u32 v26, 3, v17
        v_lshlrev_b32 v26, 13, v26                ; (3 - esub)*8192
        v_sub_u32 v24, 15, v16
        v_lshl_add_u32 v24, v24, 4, v26
        s_cmp_eq_u32 s26, 0
        s_cselect_b32 s17, 32, 31
        s_lshl_b32 s18, s31, 4
        s_sub_u32 s17, s17, s18
        v_sub_u32 v25, s17, v16
        v_and_b32 v25, 31, v25
        v_lshl_add_u32 v25, v25, 4, v26
        s_sub_u32 s17, 637, s48
        s_lshl_b32 s49, s17, 13
        s_add_u32 s49, s49, {W_Y}
        s_sub_u32 s17, 16, s26
        s_and_b32 s17, s17, 15
        s_lshl_b32 s17, s17, 9
        s_add_u32 s52, s49, s17
        s_sub_u32 s17, 15, s26
        s_lshl_b32 s17, s17, 9
        s_sub_u32 s18, 1, s31
        s_lshl_b32 s18, s18, 8
        s_add_u32 s17, s17, s18
        s_add_u32 s49, s49, s17
        s_mov_b32 s50, -32768
        s_sub_u32 s51, 621, s48
        s_lshl_b32 s51, s51, 3
        L_l_mird:
        s_add_u32 s51, s51, {W_FY}""")
        self.lds_spin(12, SY_P, 4, 16)
        for n in range(5):
            for i in range(4): A(f"ds_read_b32 v{172+4*n+i}, v{20+i} offset:{16*n}")
        self.poll(16, 1, 7, "s51", 55, setexec="s_mov_b32 exec_hi, 0xff")
        self.stamp("L", "Yok")
        for n in range(5):
            A(f"buffer_load_dwordx4 {vr(192+4*n,4)}, v24, s[44:47], s49 offen sc1\ns_add_u32 s49, s49, s50")
        A("s_cmp_ge_u32 s58, 4\ns_cbranch_scc0 L_l_noex")
        for n in range(5):
            A(f"buffer_load_dword v{212+n}, v25, s[44:47], s52 offen sc1\ns_add_u32 s52, s52, s50")
        A("s_waitcnt vmcnt(0)")
        for n in range(5): A(f"v_mov_b32 v{192+4*n}, v{212+n}")
        A.label("L_l_noex")
        A("s_waitcnt vmcnt(0) lgkmcnt(0)")
        for n in range(5):
            for i in range(4): A(f"v_add_f32 v{172+4*n+i}, v{172+4*n+i}, v{192+4*n+i}\nds_write_b32 v{20+i}, v{172+4*n+i} offset:{16*n}")
        A("s_waitcnt lgkmcnt(0)")
        self.stamp("L", "ydone")
        A("s_barrier")
        A("""s_or_b32 s17, s2, s16
        s_cmp_eq_u32 s17, 0
        s_cbranch_scc0 L_l_noep
        v_mov_b32 v8, 0
        s_mov_b64 exec, 1
        buffer_store_dword v55, v8, s[44:47], 0 offen sc1
        s_mov_b64 exec, -1
        L_l_noep:""")

    def build(self):
        A = self.A
        self.prologue()
        self.l_setup(); self.l_phase1(); self.l_gap(); self.l_fft(); self.l_y()
        self.dump_stamps("L")
        A("s_endpgm")
        self.g_phase0()
        A("s_cmp_eq_u32 s34, 1\ns_cbranch_scc1 L_gD\ns_cmp_eq_u32 s33, 0\ns_cbranch_scc1 L_g4")
        n0 = self.nstamp["G"]
        self.g_main("5", 5, False); self.g_epi_h(5); A("s_branch L_g_issued")
        self.nstamp["G"] = n0
        self.g_main("D", 5, True); self.g_epi_z(); A("s_branch L_g_issued")
        self.nstamp["G"] = n0
        self.g_main("4", 4, False); self.g_epi_h(4)
        self.g_phase2()
        self.dump_stamps("G")
        A.label("L_end")
        hdr = open("cdna_kernels/" + KNAME[:-7] + ".s.ref").read().split("; Override")[0]
        s = hdr + f"; @launch grid=(256,1,1) block=(512,1,1) lds={LDS_BYTES}\n" + '.amdgcn_target "amdgcn-amd-amdhsa--gfx950"\n'
        return s + kernel(KNAME, A.text(), vgpr=256, accum=256).replace("s_endpgm\n.section .rodata", "s_endpgm\n.fill 512, 4, 0xbf810000\n.section .rodata")

if __name__ == "__main__":
    g = Gen(); open("megaB.s", "w").write(g.build()); print(g.names)
    open("megaB_rel.s", "w").write(Gen(dbg=False).build())
```

```python
import sys, struct
from alib import *

KNAME = "parallel_sum__spectral_fnet__dense_activation_squared_relu__prompt_kernel"
SLOT = 36864; NS = 4; DS = 28672
LDS_BYTES = 163840
L_STG = 4*SLOT
L_STG3 = 3*SLOT
M = 155648
L_CORR = M; L_STAT = M + 5120; L_SYNC = M + 7168
L_CST = 3*SLOT + 4096
SY_ACK, SY_ZW, SY_ZF, SY_FW, SY_P, SY_H, SY_ZI, SY_W2, SY_ZOK, SY_FD = 0, 4, 8, 12, 16, 20, 24, 32, 48, 56
SY_G = 28; SY_FL = 64; SY_WI = 68; SY_H2 = 72
SY_ST = 256
ZROW = 272; ZB = 3*DS
LW = [0, 35840, 73728, 104448]; L_P = 135168; PROW = 320
KS0 = [24, 32, 40, 47]; NREG = 7
FTM = lambda f: f + 24 if f < 20 else f - 20 if f < 32 else f + 12 if f < 42 else f - 30
W_F0, W_F1, W_FY = 0x40000, 0x48000, 0x50000
W_STAT = 0x10000; W_DBG = 0x20000
W_W2F = 0x100000; W_H = 0x400000; W_Z = 0xB00000; PZ = 0x150000; W_Y = 0xE00000
WS_SIZE = 0x1200000
HC = 54*2048
tA = [[0,192,320,640,768,896,0,192],[512,1024,1216,1344,1472,1600,0,192]]
tB = [[128,160,448,0,0,0,128,160],[480,1152,1184,0,0,0,128,160]]
SCHED = [[0,3,1,2,4,7,5,6,8,9],[0,1,4,2,3,5,8,6,7,9],[1,0,2,5,3,4,6,9,7,8],[2,0,1,3,6,4,5,7,8,9]]
XSH = (0,2,5,7,1)
def fl(x): return "0x%08x" % struct.unpack("<I", struct.pack("<f", x))[0]

class Gen:
    def __init__(self, dbg=True, spin=200000, mode='', lprio=0, noslice=False, ysleep=16, zsleep=8, zret=8, zbound=0, dfirst=1, wprio=0, wgate=3, npw=5, h2at=3, yret=6, yprio=3, map2=0, nbd=4, nbc=0, bgate=0, spf=0, nb0=0, voff=1, skew=0, roles=None, hsleep=10, nb=0, dpf=0, zsleep4=12, zsleepd=0, ystep=11, ngate=4, touch=False, sched=None, xsh=None, gbit=10, rmul=0, npre=0, la=3, pfi=()):
        self.A = Asm(); self.dbg = dbg; self.SPIN = spin; self.mode = mode; self.lprio = lprio; self.noslice = noslice; self.la = la; self.yprio = yprio; self.yret = yret; self.h2at = h2at; self.bgate = bgate; self.nbc = nbc; self.nbd = nbd; self.map2 = map2; self.npw = npw; self.spf = spf; self.wgate = wgate; self.nb0 = nb0; self.voff = voff; self.skew = skew
        roles = roles or [(0,0,0),(0,1,0),(0,2,0),(0,3,0),(1,0,0),(1,1,0),(1,2,0),(1,3,0)]
        self.rolemap = sum(((g << 3) | (jh << 2) | e) << (4*i) for i, (jh, e, g) in enumerate(roles)); self.hsleep = hsleep; self.nb = nb; self.dpf = dpf; self.wprio = wprio; self.dfirst = dfirst; self.zsleep4 = zsleep4; self.zsleepd = zsleepd; self.ystep = ystep; self.zbound = zbound; self.ngate = ngate; self.sched = sched or SCHED; self.xsh = xsh or XSH; self.touch = touch; self.zret = zret; self.pfi = pfi; self.gbit = gbit; self.rmul = rmul; self.npre = npre; self.ysleep = ysleep; self.zsleep = zsleep
        self.nstamp = {"G": 0, "L": 0}; self.names = {}; self.uid = 0
    def lab(self, p):
        self.uid += 1; return f"L_{p}{self.uid}"
    @staticmethod
    def sreg(i): return 86+2*i if i < 8 else [60, 62, 14][i-8]
    def stamp(self, role, name=''):
        if not self.dbg: return
        sel = {"": {"G": ["start","B0","B10","issued","acked","Hok","p2done","end"], "L": ["B9","w2iss","Zok","fftdone","w2land","Yok","ydone"]},
               "lb": {"G": ["start","B0","B10","issued","acked","w2iss","Hok"], "L": ["B1","B3","B5","B6","B7","B9"]},
               "l2": {"G": ["start","B0","B10","issued","acked","w2iss","Hok","B15"], "L": ["B5","W6","B6","W7","B7","W8","B8"]},
               "l1": {"G": ["start","B0","B10","issued","acked","w2iss","Hok","B15"], "L": ["B0","W1","B1","W2","B2","W3","B3"]},
               "fl": {"G": ["start","B10","issued","acked","flagack","w2iss","Hok","B15"], "L": ["B9","zpoll","Zok","zland","fftst","fftdone"]},
               "nv": {"G": ["start","B10","issued","acked","w2iss","Hok","p2done"], "L": ["Zok","fftdone","w2iss","w2land","Yok","ydone"]},
               "p2": {"G": ["start","Hok","S0","S1","S4","S7","S10","p2done"], "L": ["Zok","fftdone","w2iss","w2land","Yok","ydone"]},
               "st": {"G": ["start","B10","zw","issued","acked","w2iss","Hok","B15"], "L": ["pre-issue","B9","zland","fftst","w2iss"]}}[self.mode]
        if name not in sel[role]: return
        i = self.nstamp[role]; self.nstamp[role] += 1
        assert i < 8, name
        self.names.setdefault(role, {})[i] = name
        r = self.sreg(i); self.A(f"s_memtime s[{r}:{r+1}]")
    def dump_stamps(self, role):
        if not self.dbg: return
        A = self.A
        A(f"""s_waitcnt lgkmcnt(0)
        s_lshl_b32 s17, s2, 3
        s_add_u32 s17, s17, s3
        s_lshl_b32 s17, s17, 6
        s_add_u32 s17, s17, {W_DBG}
        v_mov_b32 v1, s17""")
        for i in range(self.nstamp[role]):
            A(f"v_mov_b32 v2, s{self.sreg(i)}\nbuffer_store_dword v2, v1, s[44:47], 0 offen offset:{4*i}")
        A("s_memrealtime s[72:73]\ns_waitcnt lgkmcnt(0)\nv_mov_b32 v2, s70\nbuffer_store_dword v2, v1, s[44:47], 0 offen offset:32\nv_mov_b32 v2, s72\nbuffer_store_dword v2, v1, s[44:47], 0 offen offset:36\ns_getreg_b32 s72, hwreg(HW_REG_XCC_ID)\nv_mov_b32 v2, s72\nbuffer_store_dword v2, v1, s[44:47], 0 offen offset:40\ns_getreg_b32 s72, hwreg(HW_REG_HW_ID)\nv_mov_b32 v2, s72\nbuffer_store_dword v2, v1, s[44:47], 0 offen offset:44")
        A("s_waitcnt vmcnt(0)")
    def spin_guard(self, done):
        if self.SPIN: return f"s_add_u32 s19, s19, 1\ns_cmp_gt_u32 s19, {self.SPIN}\ns_cbranch_scc1 {done}"
        return ""
    def lds_spin(self, vaddr, off, val, vt, bound=None):
        l = self.lab("sp"); d = l + "d"
        self.A(f"""s_mov_b32 s19, 0
        {l}:
        ds_read_b32 v{vt}, v{vaddr} offset:{off}
        s_waitcnt lgkmcnt(0)
        v_readfirstlane_b32 s27, v{vt}
        {self.spin_guard(d) if bound is None else f"s_add_u32 s19, s19, 1; s_cmp_gt_u32 s19, {bound}; s_cbranch_scc1 {d}".replace("; ", chr(10))}
        s_cmp_ge_u32 s27, {val}
        s_cbranch_scc1 {d}
        s_sleep 1
        s_branch {l}
        {d}:""")
    def lw(self, sd, sk):
        self.A(f"s_mul_i32 s{sd}, s{sk}, 35840\ns_cmp_ge_u32 s{sk}, 2\ns_cselect_b32 s27, 2048, 0\ns_add_u32 s{sd}, s{sd}, s27\ns_cmp_eq_u32 s{sk}, 3\ns_cselect_b32 s{sd}, {LW[3]}, s{sd}")
    def lds_set(self, vaddr, off, vt):
        self.A(f"v_mov_b32 v{vt}, 1\nds_write_b32 v{vaddr}, v{vt} offset:{off}")
    def lds_inc(self, vaddr, off, vt):
        self.A(f"""v_mov_b32 v{vt}, 1
        s_mov_b64 exec, 1
        ds_add_u32 v{vaddr}, v{vt} offset:{off}
        s_mov_b64 exec, -1""")
    def poll(self, loads, vtag, first_issued=False, sleep=4):
        A = self.A; l = self.lab("po"); d = l + "d"; c = l + "c"
        A("s_mov_b32 s19, 0")
        if first_issued: A(f"s_branch {c}")
        A(f"{l}:")
        for (dst, n, va, so, ex) in loads:
            if ex: A(ex)
            A(f"buffer_load_dword{'x%d' % n if n > 1 else ''} {vr(dst, n)}, v{va}, s[44:47], {so} offen sc1")
            if ex and len(loads) > 1: A("s_mov_b64 exec, -1")
        A(f"s_waitcnt vmcnt(0)\n{c}:")
        for k, (dst, n, va, so, ex) in enumerate(loads):
            if ex: A(ex)
            if n == 1: A(f"v_cmp_ne_u32 vcc, v{vtag}, v{dst}")
            else:
                for i in range(n): A(f"v_xor_b32 v{dst+i}, v{vtag}, v{dst+i}")
                A(f"v_or3_b32 v{dst}, v{dst}, v{dst+1}, v{dst+2}\nv_or_b32 v{dst}, v{dst}, v{dst+3}\nv_cmp_ne_u32 vcc, 0, v{dst}")
            A("s_mov_b64 exec, -1")
            if len(loads) > 1:
                A("s_nop 0\ns_mov_b64 s[64:65], vcc" if k == 0 else "s_nop 0\ns_or_b64 vcc, vcc, s[64:65]")
        A(self.spin_guard(d) or "s_nop 1")
        A(f"s_cbranch_vccz {d}\ns_sleep {sleep}\ns_branch {l}\n{d}:")

    def spoll(self, base, loads, words, soff, first_issued=False, sleep=2, issue_only=False):
        A = self.A
        ld = "\n".join(f"s_load_dwordx{n} s[{d}:{d+n-1}], s[12:13], {soff} offset:{base+imm} glc" for d, n, imm in loads)
        if issue_only: A(ld); return
        l = self.lab("sq"); d_ = l + "d"; c = l + "c"
        A("s_mov_b32 s19, 0")
        if first_issued: A(f"s_branch {c}")
        A(f"{l}:\n{ld}\n{c}:\ns_waitcnt lgkmcnt(0)")
        w = list(words); f = w[0]
        A(f"s_xor_b32 s27, s{f}, s14")
        for x in w[1:]: A(f"s_xor_b32 s{x}, s{x}, s14\ns_or_b32 s27, s27, s{x}")
        A(self.spin_guard(d_))
        A(f"s_cmp_eq_u32 s27, 0\ns_cbranch_scc1 {d_}\ns_sleep {sleep}\ns_branch {l}\n{d_}:")

    def prologue(self):
        A = self.A
        A("s_cmp_ge_u32 s2, 256\ns_cbranch_scc1 L_end")
        self.stamp("G", "start"); self.nstamp["L"] = self.nstamp["G"]
        if self.dbg: A("s_memrealtime s[70:71]")
        A("""
        s_getpc_b64 s[18:19]
        L_pf:
        s_load_dwordx2 s[4:5], s[0:1], 0
        s_load_dwordx4 s[8:11], s[0:1], 24
        s_load_dwordx2 s[6:7], s[0:1], 48
        s_load_dwordx2 s[12:13], s[0:1], 96
        s_lshr_b32 s21, s2, 3         ; slot
        v_lshlrev_b32 v2, 4, v0
        s_lshl_b32 s17, s21, 10
        v_cmp_gt_u32 vcc, 128, v0
        s_lshl_b32 s17, s17, 1
        s_add_u32 s18, s18, s17
        s_addc_u32 s19, s19, 0
        s_cbranch_vccz L_nopf
        s_cmp_ge_u32 s17, L_end - L_pf
        s_cbranch_scc1 L_nopf
        global_load_dwordx4 v[252:255], v2, s[18:19]
        L_nopf:
        s_load_dwordx2 s[62:63], s[0:1], 56
        s_load_dwordx4 s[80:83], s[0:1], 64
        s_load_dwordx2 s[84:85], s[0:1], 80
        v_lshrrev_b32 v1, 6, v0
        v_and_b32 v0, 63, v0
        s_and_b32 s20, s2, 7          ; xcd
        v_readfirstlane_b32 s3, v1    ; wave 0..7
        s_lshr_b32 s22, s20, 1        ; xr
        s_and_b32 s23, s20, 1         ; xc
        s_lshr_b32 s24, s21, 3        ; rbl
        s_and_b32 s25, s21, 7         ; cbl
        s_lshl_b32 s26, s22, 2
        s_add_u32 s26, s26, s24       ; rb
        s_and_b32 s16, s3, 3          ; wave & 3
        """)
        def pack(t):
            v = 0
            for i, x in enumerate(t): v |= (x//32) << (8*i)
            return v & 0xffffffff, v >> 32
        a0, a1 = pack(tA[0]), pack(tA[1]); b0, b1 = pack(tB[0]), pack(tB[1])
        A(f"""
        s_mov_b32 s28, {a1[0]:#x}
        s_mov_b32 s29, {a1[1]:#x}
        s_mov_b32 s30, {b1[0]:#x}
        s_mov_b32 s31, {b1[1]:#x}
        s_cmp_eq_u32 s23, 0
        s_cselect_b32 s28, {a0[0]:#x}, s28
        s_cselect_b32 s29, {a0[1]:#x}, s29
        s_cselect_b32 s30, {b0[0]:#x}, s30
        s_cselect_b32 s31, {b0[1]:#x}, s31
        s_lshl_b32 s27, s25, 3
        s_lshr_b64 s[28:29], s[28:29], s27
        s_lshr_b64 s[30:31], s[30:31], s27
        s_and_b32 s28, s28, 0xff      ; colA/32
        s_and_b32 s30, s30, 0xff      ; colB/32
        s_lshl_b32 s29, s23, 3
        s_add_u32 s29, s29, s25       ; cb
        s_cmp_ge_u32 s25, 6
        s_cselect_b32 s34, 1, 0       ; isDFT
        s_movk_i32 s35, 3456
        s_cselect_b32 s35, 1280, s35  ; ld
        s_cmp_lt_u32 s25, 3
        s_cselect_b32 s33, 1, s34     ; T5
        ROLE
        s_lshl_b32 s27, s26, 1
        s_add_u32 s27, s27, s23       ; rb*2+xc
        s_mul_i32 s21, s27, 3
        s_add_u32 s21, s21, s25
        s_add_u32 s21, s21, 61
        s_cmp_lt_u32 s25, 3
        s_cselect_b32 s64, 99, 0
        s_add_u32 s21, s21, s64
        s_lshl_b32 s27, s27, 1
        s_add_u32 s27, s27, s25
        s_sub_u32 s27, s27, 6
        s_cmp_eq_u32 s34, 1
        s_cselect_b32 s21, s27, s21   ; p'
        s_cmp_lt_u32 s3, 4
        s_cbranch_scc1 L_gstart
        """.replace("ROLE", """s_mov_b32 s15, s25            ; eb
        s_and_b32 s31, s24, 1         ; jh
        s_lshr_b32 s20, s24, 1
        s_lshl_b32 s27, s23, 1
        s_add_u32 s20, s20, s27
        s_lshl_b32 s27, s22, 2
        s_add_u32 s20, s20, s27       ; rb2""" if self.map2 else """s_and_b32 s15, s21, 3
        s_lshl_b32 s27, s23, 2
        s_add_u32 s15, s15, s27
        s_bfe_u32 s31, s21, 0x10002
        s_mov_b32 s20, s26"""))
    def common_srds(self):
        A = self.A
        A("s_waitcnt lgkmcnt(0)")
        srd(A, 36, 4, 2048*1280)
        srd(A, 44, 12, WS_SIZE)
        A("s_load_dword s14, s[12:13], 0")
    def get_tag(self):
        self.A("s_waitcnt lgkmcnt(0)\ns_mul_i32 s14, s14, 0x9E3779B1\ns_add_u32 s14, s14, 0x85EBCA6B")
    def w2_task_addr(self, st, so, sd, vo):
        self.A(f"""
        v_lshrrev_b32 v{vo}, 3, v0
        v_mul_u32_u24 v{vo}, 1280, v{vo}
        v_and_b32 v{vo+1}, 7, v0
        v_lshl_add_u32 v{vo}, v{vo+1}, 4, v{vo}
        s_mul_i32 s17, s{st}, 6554
        s_lshr_b32 s17, s17, 16        ; ks
        s_mul_i32 s18, s17, 10
        s_sub_u32 s18, s{st}, s18      ; cl
        s_mul_i32 s{so}, s17, 40960
        s_cmp_lt_u32 s17, 42
        s_cselect_b32 s27, 12, -30
        s_cmp_lt_u32 s17, 32
        s_cselect_b32 s27, -20, s27
        s_cmp_lt_u32 s17, 20
        s_cselect_b32 s27, 24, s27
        s_add_u32 s17, s17, s27
        s_mul_i32 s{sd}, s17, 40960
        s_lshl_b32 s17, s18, 12
        s_add_u32 s{sd}, s{sd}, s17
        s_add_u32 s{sd}, s{sd}, {W_W2F}
        s_lshl_b32 s17, s18, 7
        s_add_u32 s{so}, s{so}, s17""")
    def w2_task_dma(self, so, sstg, vo, srd_):
        for n in range(4):
            self.A(f"s_add_u32 m0, s{sstg}, {1024*n}\n" + ("s_nop 0" if n == 0 else f"s_add_u32 s{so}, s{so}, 10240") + f"\nbuffer_load_dwordx4 v{vo}, s[{srd_}:{srd_+3}], s{so} offen lds")
    def w2_task_fin(self, sd, sstg, t, d, wait=None):
        A = self.A
        A(f"""v_bfe_u32 v{t}, v0, 5, 1
        v_lshlrev_b32 v{t}, 4, v{t}
        v_bfe_u32 v{t+1}, v0, 4, 1
        v_lshl_add_u32 v{t}, v{t+1}, 2, v{t}
        v_bfe_u32 v{t+1}, v0, 2, 2
        v_add_u32 v{t}, v{t}, v{t+1}
        v_lshlrev_b32 v{t}, 7, v{t}
        v_and_b32 v{t+1}, 3, v0
        v_lshl_add_u32 v{t}, v{t+1}, 3, v{t}
        v_add_u32 v{t}, s{sstg}, v{t}
        v_lshlrev_b32 v{t+1}, 4, v0""")
        if wait: A(wait)
        for nl in range(4):
            for k in range(2): A(f"ds_read_b64_tr_b16 {vr(d+4*nl+2*k,2)}, v{t} offset:{1024*k + 32*nl}")
        for nl in range(4):
            A(f"s_waitcnt lgkmcnt({6-2*nl})\nbuffer_store_dwordx4 {vr(d+4*nl,4)}, v{t+1}, s[44:47], s{sd} offen offset:{1024*nl} sc1")

    def g_phase0(self):
        A = self.A
        A.label("L_gstart")
        A(f"""
        v_and_b32 v11, 31, v0          ; l'
        v_lshrrev_b32 v12, 5, v0       ; hh
        s_mov_b32 s17, 81920
        v_mul_lo_u32 v13, v12, s17
        v_lshl_add_u32 v13, v11, 4, v13
        s_and_b32 s17, s29, 3
        s_lshl_b32 s17, s17, 2
        s_add_u32 s17, s17, s16
        s_lshl_b32 s48, s17, 1         ; j0 = 8(cb&3)+2g
        s_lshr_b32 s49, s29, 2         ; cb>>2
        s_lshl_b32 s50, s26, 2
        s_add_u32 s50, s50, s49        ; c
        s_lshl_b32 s17, s48, 6
        s_add_u32 s17, s17, s50
        s_mul_i32 s51, s17, 1280
        """)
        self.common_srds()
        A("""
        buffer_load_dwordx4 v[20:23], v13, s[36:39], s51 offen
        buffer_load_dwordx4 v[24:27], v13, s[36:39], s51 offen offset:512
        s_mov_b32 exec_lo, 0xffff
        s_mov_b32 exec_hi, 0xffff
        buffer_load_dwordx4 v[28:31], v13, s[36:39], s51 offen offset:1024
        s_mov_b64 exec, -1
        """)
        self.g_addr_setup()
        self.g_consts()
        for i in range(80): A(f"v_mov_b32 v{self.ACC+i}, 0")
        self.get_tag()
        A("s_waitcnt vmcnt(0)")
        lo16 = "s_mov_b32 exec_lo, 0xffff\ns_mov_b32 exec_hi, 0xffff"
        for d in range(8): A(f"v_lshlrev_b32 v{32+2*d}, 16, v{20+d}\nv_and_b32 v{33+2*d}, 0xffff0000, v{20+d}")
        A("v_add_f32 v56, v32, v34\nv_add_f32 v57, v33, v35")
        for d in range(2, 8): A(f"v_add_f32 v56, v56, v{32+2*d}\nv_add_f32 v57, v57, v{33+2*d}")
        A(lo16)
        for d in range(8, 12): A(f"v_lshlrev_b32 v{32+2*d}, 16, v{20+d}\nv_and_b32 v{33+2*d}, 0xffff0000, v{20+d}\nv_add_f32 v56, v56, v{32+2*d}\nv_add_f32 v57, v57, v{33+2*d}")
        A("s_mov_b64 exec, -1")
        def allreduce(regs, t):
            for mode in ("quad_perm:[1,0,3,2]", "quad_perm:[2,3,0,1]", "row_half_mirror", "row_mirror"):
                A("s_nop 1" if len(regs) == 1 else "s_nop 0")
                for r in regs: A(f"v_add_f32_dpp v{r}, v{r}, v{r} {mode} row_mask:0xf bank_mask:0xf")
            for k, r in enumerate(regs): A(f"v_mov_b32 v{t+k}, v{r}")
            A("s_nop 1")
            for k, r in enumerate(regs): A(f"v_permlane16_swap_b32 v{r}, v{t+k}")
            A("s_nop 1")
            for k, r in enumerate(regs): A(f"v_add_f32 v{r}, v{r}, v{t+k}")
        allreduce([56, 57], 58)
        A("""v_add_f32 v58, v56, v57
        v_sub_f32 v57, v56, v57        ; alt
        v_mul_f32 v58, 0x3acccccd, v58 ; mean
        v_mov_b32 v59, 0
        v_mov_b32 v60, 0""")
        def sq(d): A(f"v_sub_f32 v{32+2*d}, v{32+2*d}, v58\nv_sub_f32 v{33+2*d}, v{33+2*d}, v58\nv_fmac_f32 v59, v{32+2*d}, v{32+2*d}\nv_fmac_f32 v60, v{33+2*d}, v{33+2*d}")
        for d in range(8): sq(d)
        A(lo16)
        for d in range(8, 12): sq(d)
        A("s_mov_b64 exec, -1\nv_add_f32 v59, v59, v60")
        allreduce([59], 60)
        A(f"""
        v_mul_f32 v59, 0x3acccccd, v59          ; var
        v_cvt_pk_bf16_f32 v59, v59, v59
        v_lshlrev_b32 v59, 16, v59
        v_add_f32 v59, 0x3727c5ac, v59
        v_cvt_pk_bf16_f32 v59, v59, v59
        v_lshlrev_b32 v59, 16, v59
        v_sqrt_f32 v59, v59
        v_mov_b32 v35, s14
        v_cvt_pk_bf16_f32 v32, -v58, v59        ; (-m, sd)
        v_and_b32 v59, 0xffff0000, v32
        v_rcp_f32 v33, v59                      ; r
        s_lshl_b32 s17, s16, 1
        v_mul_f32 v34, v33, v57                 ; z320
        v_add_u32 v36, s17, v12                 ; i = 2g + hh
        v_lshlrev_b32 v37, 4, v36
        v_add_u32 v37, {L_SYNC + SY_ST}, v37
        s_mov_b32 exec_lo, 1
        s_mov_b32 exec_hi, 1
        ds_write_b128 v37, v[32:35]
        s_mov_b64 exec, -1
        """)
        A("s_waitcnt lgkmcnt(0)")

    XA = 2; WA = 6; FR = [16, 40, 64, 88]; ACC = 112; CSA = 192; SEL = 200
    def g_addr_setup(self):
        XA, WA = self.XA, self.WA
        self.A(f"""
        s_lshl_b32 s17, s16, 12
        v_bfe_u32 v60, v11, 1, 3
        v_xor_b32 v60, v60, v12
        v_lshlrev_b32 v60, 4, v60
        v_lshl_add_u32 v60, v11, 7, v60
        v_add_u32 v{XA}, s17, v60
        v_xor_b32 v{XA+1}, 32, v{XA}
        v_xor_b32 v{XA+2}, 64, v{XA}
        v_xor_b32 v{XA+3}, 96, v{XA}
        v_bfe_u32 v60, v0, 2, 2
        v_lshl_add_u32 v61, v12, 3, v60
        v_bfe_u32 v62, v0, 4, 1
        v_lshlrev_b32 v62, 5, v62
        v_and_b32 v63, 3, v0
        v_lshl_add_u32 v62, v63, 3, v62
        v_lshl_add_u32 v{WA+4}, v61, 6, v62
        v_add_u32 v{WA+4}, 32768, v{WA+4}
        v_lshl_add_u32 v62, v61, 8, v62
        v_lshl_add_u32 v62, v60, 6, v62
        v_add_u32 v62, 16384, v62
        """)
        for j in range(4):
            self.A(f"s_add_u32 s17, s16, {j}\ns_and_b32 s17, s17, 3\ns_lshl_b32 s17, s17, 6\nv_xor_b32 v{WA+j}, s17, v62")
        self.A(f"""v_lshrrev_b32 v60, 4, v0
        v_xor_b32 v60, v60, v0
        v_and_b32 v60, 1, v60
        v_cmp_eq_u32 vcc, 0, v60
        v_mov_b32 v61, 0x3f803f80
        s_nop 0""")
        for i in range(4): self.A(f"v_cndmask_b32 v{self.SEL+i}, 0, v61, vcc")
        for i in range(8): self.A(f"v_mov_b32 v{self.CSA+i}, 0")
    def reads(self, u, T, off):
        f = self.FR[u]; L = [f"ds_read_b128 {vr(f,4)}, v{self.XA+u} offset:{off}"]
        for j in range(T):
            for t in range(2):
                o = off + (4096*u + 1024*t if j < 4 else 1024*u + 256*t)
                L.append(f"ds_read_b64_tr_b16 {vr(f+4+4*j+2*t,2)}, v{self.WA+j} offset:{o}")
        return L
    def mfma(self, u, j, swap):
        f = self.FR[u]; a = self.ACC + 16*j
        w, x = vr(f+4+4*j, 4), vr(f, 4)
        if swap: w, x = x, w
        return f"v_mfma_f32_32x32x16_bf16 {vr(a,16)}, {w}, {x}, {vr(a,16)}"
    @staticmethod
    def interleave(ms, rs):
        out = []; n = len(ms); k = 0
        for i, m in enumerate(ms):
            out.append(m)
            cnt = (len(rs) - k + (n - i) - 1) // (n - i)
            out += rs[k:k+cnt]; k += cnt
        return out
    def csm(self, u, T, wv):
        f = self.FR[u]
        L = [f"v_mfma_f32_16x16x32_bf16 {vr(self.CSA,4)}, {vr(self.SEL,4)}, {vr(f+4,4)}, {vr(self.CSA,4)}"]
        if T == 5 and wv == u:
            L.append(f"v_mfma_f32_16x16x32_bf16 {vr(self.CSA+4,4)}, {vr(self.SEL,4)}, {vr(f+20,4)}, {vr(self.CSA+4,4)}")
        return L
    def g_main(self, tag, T, swap):
        A = self.A; NR = 1 + 2*T
        A.label(f"L_g{tag}")
        copies = range(4) if T == 5 else [None]
        if T == 5:
            for wv in range(1, 4): A(f"s_cmp_eq_u32 s16, {wv}\ns_cbranch_scc1 L_g{tag}_e{wv}")
        n0 = self.nstamp["G"]
        for wv in copies:
            t = f"{tag}{wv}"
            self.nstamp["G"] = n0
            A.label(f"L_g{tag}_e{wv}")
            A(f"s_mov_b32 s18, 0\ns_mov_b32 s17, {2*SLOT}")
            A("s_barrier")
            self.stamp("G", "B0")
            A("\n".join(self.reads(0, T, 0) + self.reads(1, T, 0)))
            A(".p2align 3")
            A.label(f"L_g{t}_loop")
            def step(u, nu, off, pre=None):
                ms = [self.mfma(u, j, swap) for j in range(T)] + self.csm(u, T, wv)
                A(f"s_waitcnt lgkmcnt({NR})\ns_nop 0")
                if pre:
                    A(ms[0]); A(pre[0]); A(ms[1]); A(pre[1]); ms = ms[2:]
                A("\n".join(self.interleave(ms, self.reads(nu, T, off))))
            step(0, 2, 0); step(1, 3, 0)
            step(2, 0, SLOT, ("s_add_u32 s18, s18, 1\ns_cmp_eq_u32 s18, 5", "s_barrier\ns_nop 0"))
            step(3, 1, SLOT); step(0, 2, SLOT); step(1, 3, SLOT)
            adv = [f"v_add_u32 v{2+i}, s17, v{2+i}" for i in range(9)]
            step(2, 0, 0, ("\n".join(adv[:5]) + "\ns_nop 0", "\n".join(adv[5:]) + f"\ns_cbranch_scc1 L_g{t}_tail\ns_sub_u32 s17, 0, s17\ns_nop 0\ns_barrier"))
            step(3, 1, 0)
            A(f"s_branch L_g{t}_loop")
            A.label(f"L_g{t}_tail")
            A("\n".join(self.csm(2, T, wv)))
            for j in range(2, T): A(self.mfma(2, j, swap))
            A("s_waitcnt lgkmcnt(0)")
            A("\n".join(self.csm(3, T, wv)))
            if wv is not None and wv < 3: A(f"s_branch L_g{tag}_fin")
        A.label(f"L_g{tag}_fin")
        c = self.CSA
        fill = [
          f"v_and_b32 v11, 31, v0\nv_lshlrev_b32 v12, 4, v11\ns_lshl_b32 s17, s16, 10\ns_add_u32 s17, s17, {L_CORR}\nv_add_u32 v13, s17, v12",
          f"s_lshl_b32 s17, s16, 2\ns_add_u32 s17, s17, {L_CORR + 4096}\nv_add_u32 v14, s17, v12\nv_and_b32 v15, 16, v0\nv_cmp_ne_u32 vcc, 0, v15\ns_nop 0",
          f"v_cndmask_b32 v{c}, v{c}, v{c+1}, vcc\nv_cndmask_b32 v{c+4}, v{c+4}, v{c+5}, vcc\nv_cvt_pk_bf16_f32 v{c+1}, v{c}, v{c}\nv_cvt_pk_bf16_f32 v{c+5}, v{c+4}, v{c+4}\nv_lshlrev_b32 v{c+1}, 16, v{c+1}\nv_lshlrev_b32 v{c+5}, 16, v{c+5}",
          f"v_sub_f32 v{c+2}, v{c}, v{c+1}\nv_sub_f32 v{c+6}, v{c+4}, v{c+5}\nv_cvt_pk_bf16_f32 v{c}, v{c+1}, v{c+2}\nv_cvt_pk_bf16_f32 v{c+4}, v{c+5}, v{c+6}\ns_mov_b32 exec_hi, 0\nds_write_b32 v13, v{c}" + (f"\nds_write_b32 v14, v{c+4}" if T == 5 else "") + "\ns_mov_b32 exec_hi, -1",
          ""]
        for j in range(T):
            A(self.mfma(3, j, swap))
            if fill[j]: A(fill[j])
        A(f"""s_lshl_b32 s17, s16, 8
        s_add_u32 s17, s17, {L_STAT}
        v_lshl_add_u32 v11, v11, 3, s17
        v_lshlrev_b32 v12, 4, v0
        v_add_u32 v12, {L_CORR}, v12
        v_cmp_gt_u32 vcc, 32, v0
        s_waitcnt lgkmcnt(0)
        s_barrier""")
        self.stamp("G", "B10")
        A("ds_read_b64 v[14:15], v11")
        for j in range(T):
            if j < 4: A(f"s_add_u32 s17, s16, {j}\ns_and_b32 s17, s17, 3\ns_lshl_b32 s17, s17, 10\nv_add_u32 v13, s17, v12\nds_read_b128 {vr(20+4*j,4)}, v13")
            else: A(f"ds_read_b128 {vr(20+4*j,4)}, v12 offset:4096")
        A(f"""s_waitcnt lgkmcnt({T})
        v_cndmask_b32 v16, v15, v14, vcc
        v_cndmask_b32 v17, 0, v14, vcc
        v_cndmask_b32 v18, 0, v14, vcc
        v_cndmask_b32 v19, 0, v14, vcc""")
        for j in range(T):
            A(f"s_waitcnt lgkmcnt({T-1-j})" + ("\ns_nop 0" if j == 0 else "")); A(self.mfma(0, j, swap))
    def g_main_d(self):
        A = self.A; XA = self.XA; WU = 6; XB = 88; WB = 92; ACC = self.ACC
        RAW = [16, 24]; XF = [32, 36]; WF = [40, 60]; T = 80
        A.label("L_gD")
        A(f"""s_lshl_b32 s17, s16, 12
        s_sub_u32 s17, 16384, s17""")
        for u in range(4): A(f"v_add_u32 v{WU+u}, s17, v{XA+u}\nv_add_u32 v{XB+u}, {DS}, v{XA+u}\nv_add_u32 v{WB+u}, {DS}, v{WU+u}")
        A(f"""s_bitcmp1_b32 s25, 0
        s_cselect_b32 s48, -1.0, 1.0
        s_mov_b32 s18, 0
        s_mov_b32 s49, 0xffff0000
        s_mov_b32 s50, 0
        s_mov_b32 s51, 1
        s_barrier""")
        self.stamp("G", "B0")
        raw = lambda u: [f"ds_read_b128 {vr(RAW[u&1],4)}, v{XA+u}", f"ds_read_b128 {vr(RAW[u&1]+4,4)}, v{XB+u}"]
        wrd = lambda u: [f"ds_read_b128 {vr(WF[u&1]+4*j,4)}, v{(WU if j < 3 else WB)+u} offset:{4096*(j if j < 3 else j-3)}" for j in range(5)]
        def fold(u):
            L = []; r = RAW[u&1]
            for h in range(2):
                d, e = 2*h, 2*h+1; t = T; w = T + 4
                L += [f"v_lshlrev_b32 v{t}, 16, v{r+d}", f"v_lshlrev_b32 v{t+2}, 16, v{r+4+d}", f"v_and_b32 v{t+1}, s49, v{r+d}", f"v_and_b32 v{t+3}, s49, v{r+4+d}",
                      f"v_lshlrev_b32 v{w}, 16, v{r+e}", f"v_lshlrev_b32 v{w+2}, 16, v{r+4+e}", f"v_fmac_f32 v{t}, s48, v{t+2}", f"v_fmac_f32 v{t+1}, s48, v{t+3}",
                      f"v_and_b32 v{w+1}, s49, v{r+e}", f"v_and_b32 v{w+3}, s49, v{r+4+e}", f"v_fmac_f32 v{w}, s48, v{w+2}", f"v_cvt_pk_bf16_f32 v{XF[u&1]+d}, v{t}, v{t+1}",
                      f"v_fmac_f32 v{w+1}, s48, v{w+3}", ("DEFER", f"v_cvt_pk_bf16_f32 v{XF[u&1]+e}, v{w}, v{w+1}")]
            out = []; pend = None
            for k, x in enumerate(L):
                if isinstance(x, tuple):
                    if k < len(L)-1: pend = [x[1], 2]
                    else: out += ["s_nop 0", x[1]]
                    continue
                out.append(x)
                if pend:
                    pend[1] -= 1
                    if pend[1] == 0: out.append(pend[0]); pend = None
            return out
        mf = lambda u, j: f"v_mfma_f32_32x32x16_bf16 {vr(ACC+16*j,16)}, {vr(XF[u&1],4)}, {vr(WF[u&1]+4*j,4)}, {vr(ACC+16*j,16)}"
        A("\n".join(raw(0) + raw(1) + wrd(0)))
        A("s_waitcnt lgkmcnt(7)")
        A("\n".join(fold(0)))
        A("s_barrier")
        A.label("L_gD_loop")
        for u in range(3):
            A("s_waitcnt lgkmcnt(0)\ns_nop 0")
            f = fold(u+1)
            rd = wrd(u+1) + (raw(u+2) if u < 2 else [])
            A(mf(u, 0)); A("\n".join(rd[:4])); A(mf(u, 1)); A("\n".join(rd[4:] + f[:4]))
            if u == 2:
                A(f"""s_add_u32 s18, s18, 1
                s_add_u32 s50, s50, 2
                s_cmp_ge_u32 s50, 5
                s_mov_b32 s52, {2*DS}
                s_cselect_b32 s52, {-3*DS & 0xffffffff:#x}, s52
                s_cselect_b32 s17, 5, 0
                s_sub_u32 s50, s50, s17
                s_add_u32 s51, s51, 2
                s_cmp_ge_u32 s51, 5
                s_mov_b32 s53, {2*DS}
                s_cselect_b32 s53, {-3*DS & 0xffffffff:#x}, s53
                s_cselect_b32 s17, 5, 0
                s_sub_u32 s51, s51, s17""")
            A("\n".join(self.interleave([mf(u, j) for j in range(2, 5)], f[4:])))
        A("s_waitcnt lgkmcnt(0)\ns_cmp_eq_u32 s18, 5\ns_cbranch_scc1 L_gD_last")
        A(mf(3, 0))
        for i in range(8): A(f"v_add_u32 v{2+i}, s52, v{2+i}\nv_add_u32 v{XB+i}, s53, v{XB+i}")
        A(mf(3, 1))
        A("s_barrier")
        A("\n".join(raw(0) + raw(1)))
        A(mf(3, 2))
        A("\n".join(wrd(0)))
        A(mf(3, 3))
        A("s_waitcnt lgkmcnt(7)")
        f = fold(0)
        A("\n".join(f[:7])); A(mf(3, 4)); A("\n".join(f[7:]))
        A("s_branch L_gD_loop")
        A.label("L_gD_last")
        for j in range(5): A(mf(3, j))
        A.label("L_gD_fin")
        A(f"""v_and_b32 v11, 31, v0
        s_lshl_b32 s17, s16, 8
        s_add_u32 s17, s17, {L_STAT}
        v_lshl_add_u32 v11, v11, 3, s17
        s_cmp_eq_u32 s29, 6
        s_cselect_b32 s17, 0x4420, 0
        v_mov_b32 v20, 0
        v_mov_b32 v21, 0
        v_mov_b32 v22, 0
        v_mov_b32 v23, 0
        v_writelane_b32 v20, s17, 0
        v_mov_b32 v17, 0
        v_mov_b32 v18, 0
        v_mov_b32 v19, 0
        s_barrier""")
        self.stamp("G", "B10")
        A(f"""ds_read_b32 v16, v11
        s_waitcnt lgkmcnt(0)
        v_mfma_f32_32x32x16_bf16 {vr(ACC,16)}, v[16:19], v[20:23], {vr(ACC,16)}""")
    def g_epi_h(self, T):
        A = self.A; ACC = self.ACC
        A(f"""
        v_and_b32 v11, 15, v0
        v_lshlrev_b32 v11, 4, v11
        v_bfe_u32 v12, v0, 4, 1
        v_lshl_add_u32 v11, v12, 10, v11
        v_lshrrev_b32 v12, 5, v0
        v_lshl_add_u32 v11, v12, 8, v11
        s_lshl_b32 s17, s26, 2
        s_add_u32 s17, s17, s16
        s_mul_i32 s17, s17, {HC}
        s_add_u32 s17, s17, {W_H}
        s_cmp_lt_u32 s28, 42
        s_cselect_b32 s27, 12, -30
        s_cmp_lt_u32 s28, 32
        s_cselect_b32 s27, -20, s27
        s_cmp_lt_u32 s28, 20
        s_cselect_b32 s27, 24, s27
        s_lshl_b32 s27, s27, 11
        s_add_u32 s17, s17, s27
        s_lshl_b32 s18, s30, 11
        s_add_u32 s18, s18, s17        ; tile 4
        s_lshl_b32 s19, s28, 11
        s_add_u32 s48, s17, s19        ; tile 0
        s_lshl_b32 s17, s16, 11
        s_add_u32 s17, s17, s48
        .p2align 3""")
        for j in range(T):
            a = ACC + 16*j; o = 40 + 8*(j & 1); t = 56
            for p in range(8):
                tp = t + 2*(p & 3)
                A(f"v_max_f32 v{tp}, 0, v{a+2*p}\nv_max_f32 v{tp+1}, 0, v{a+2*p+1}")
                if p >= 1:
                    q = p-1; tq = t + 2*(q & 3)
                    A(f"v_pk_mul_f32 {vr(tq,2)}, {vr(tq,2)}, {vr(a+2*q,2)}")
                if p >= 2:
                    q = p-2; tq = t + 2*(q & 3)
                    A(f"v_cvt_pk_bf16_f32 v{o+q}, v{tq}, v{tq+1}")
            A(f"v_pk_mul_f32 {vr(t+6,2)}, {vr(t+6,2)}, {vr(a+14,2)}")
            A(f"v_cvt_pk_bf16_f32 v{o+6}, v{t+4}, v{t+5}\nv_cvt_pk_bf16_f32 v{o+7}, v{t+6}, v{t+7}")
            so = "s18" if j == 4 else "s17"
            A(f"buffer_store_dwordx4 {vr(o,4)}, v11, s[44:47], {so} offen sc1\nbuffer_store_dwordx4 {vr(o+4,4)}, v11, s[44:47], {so} offen offset:512 sc1")
            if j < 3: A(f"s_add_u32 s17, s16, {j+1}\ns_and_b32 s17, s17, 3\ns_lshl_b32 s17, s17, 11\ns_add_u32 s17, s17, s48")
        A(f"v_mov_b32 v10, {L_SYNC}")
        self.stamp("G", "zw")
        self.lds_inc(10, SY_ZF, 13)
    def g_epi_z(self):
        A = self.A; ACC = self.ACC
        A(f"""
        v_lshrrev_b32 v12, 5, v0
        s_lshl_b32 s17, s16, 7
        s_add_u32 s17, s17, {L_STAT + 1024}
        v_lshl_add_u32 v11, v12, 4, s17""")
        for q in range(4): A(f"ds_read_b128 {vr(40+4*q,4)}, v11 offset:{32*q}")
        A(f"""v_and_b32 v11, 31, v0
        v_mul_u32_u24 v11, {ZROW}, v11
        v_lshl_add_u32 v11, v12, 6, v11
        s_lshl_b32 s17, s16, 4
        s_add_u32 s17, s17, {ZB}
        v_add_u32 v11, s17, v11
        v_mov_b32 v10, {L_SYNC}
        s_waitcnt lgkmcnt(0)
        .p2align 3""")
        for j in (1, 2, 3, 4, 0):
            a = ACC + 16*j; o = 56 + 8*(j & 1 if j else 1)
            for p in range(8): A(f"v_pk_mul_f32 {vr(a+2*p,2)}, {vr(a+2*p,2)}, {vr(40+2*p,2)}")
            for p in range(8): A(f"v_cvt_pk_bf16_f32 v{o+p}, v{a+2*p}, v{a+2*p+1}")
            A(f"ds_write_b128 v11, {vr(o,4)} offset:{j*32*ZROW}\nds_write_b128 v11, {vr(o+4,4)} offset:{j*32*ZROW + 128}")
        A("s_waitcnt lgkmcnt(0)")
        self.lds_inc(10, SY_ZW, 13)
        A(f"""
        v_lshrrev_b32 v12, 4, v0
        s_mul_i32 s17, s16, 40
        v_add_u32 v13, s17, v12
        v_mul_u32_u24 v11, {ZROW}, v13
        v_and_b32 v14, 15, v0
        v_lshl_add_u32 v11, v14, 4, v11
        v_add_u32 v11, {ZB}, v11
        v_lshlrev_b32 v12, 13, v12
        v_lshl_add_u32 v12, v14, 4, v12
        s_mul_i32 s18, s23, {PZ}
        s_add_u32 s18, s18, {W_Z}
        s_lshl_b32 s48, s26, 8
        s_add_u32 s18, s18, s48
        s_and_b32 s48, s25, 1
        s_lshl_b32 s48, s48, 12
        s_lshl_b32 s49, s17, 13
        s_add_u32 s48, s48, s49
        s_add_u32 s52, s48, s18
        s_cmp_eq_u32 s29, 6
        s_cbranch_scc0 L_g_no320
        s_cmp_eq_u32 s16, 3
        s_cbranch_scc0 L_g_no320
        v_and_b32 v20, 3, v0
        v_lshlrev_b32 v20, 7, v20
        v_bfe_u32 v21, v0, 3, 1
        v_lshl_add_u32 v20, v21, 6, v20
        v_bfe_u32 v21, v0, 2, 1
        v_lshl_add_u32 v20, v21, 4, v20
        v_add_u32 v20, {L_STAT + 1536}, v20
        ds_read_b128 v[24:27], v20
        ds_read_b128 v[28:31], v20 offset:32
        s_add_u32 s50, s18, {320*4096}
        s_waitcnt lgkmcnt(0)
        v_cvt_pk_bf16_f32 v24, v24, v25
        v_cvt_pk_bf16_f32 v25, v26, v27
        v_cvt_pk_bf16_f32 v26, v28, v29
        v_cvt_pk_bf16_f32 v27, v30, v31
        s_mov_b64 exec, 0xffff
        buffer_store_dwordx4 v[24:27], v12, s[44:47], s50 offen sc1
        s_mov_b64 exec, -1
        L_g_no320:""")
        self.lds_spin(10, SY_ZW, 4, 13)
        self.stamp("G", "zw")
        for n in range(10): A(f"ds_read_b128 {vr(112+4*n,4)}, v11 offset:{4*n*ZROW}")
        for n in range(10):
            A(f"""s_waitcnt lgkmcnt({9-n})
            buffer_store_dwordx4 {vr(112+4*n,4)}, v12, s[44:47], s52 offen sc1
            s_add_u32 s52, s52, 32768""")
        self.lds_inc(10, SY_ZF, 13)

    HB = [4, 20]; WR = 36; AC2 = 176
    def g_phase2(self):
        A = self.A; WR, AC2 = self.WR, self.AC2
        A.label("L_g_issued")
        self.stamp("G", "issued")
        A(f"""
        s_lshl_b32 s18, s16, 3
        s_lshr_b32 s17, {KS0[0] | KS0[1] << 8 | KS0[2] << 16 | KS0[3] << 24:#x}, s18
        s_and_b32 s57, s17, 0xff
        s_mul_i32 s48, s16, 6
        s_sub_u32 s57, s57, s48
        s_sub_u32 s57, s57, 6
        s_lshl_b32 s58, s57, 11
        s_mul_i32 s57, s57, 40960
        s_mul_i32 s49, s48, 40960
        s_mul_i32 s17, s15, 5120
        s_add_u32 s49, s49, s17
        s_add_u32 s49, s49, {W_W2F}            ; w2f soffset
        s_add_u32 s51, s49, 4096
        s_lshl_b32 s19, s48, 11
        s_lshl_b32 s17, s31, 10
        s_add_u32 s19, s19, s17
        s_add_u32 s19, s19, {W_H}
        s_lshl_b32 s18, s20, 2
        v_lshlrev_b32 v1, 4, v0""")
        for rl in range(4):
            A(f"s_add_u32 s17, s16, {rl}\ns_and_b32 s17, s17, 3\ns_add_u32 s17, s17, s18\ns_mul_i32 s17, s17, {HC}\ns_add_u32 s{52+rl}, s17, s19")
        self.lw(48, 16)
        A(f"""v_mov_b32 v2, s14
        v_lshlrev_b32 v3, 2, v0
        s_lshl_b32 s56, s26, 11
        s_add_u32 s56, s56, {W_F1}
        s_lshl_b32 s50, s29, 7
        s_add_u32 s50, s50, s56
        v_mov_b32 v4, 1
        s_waitcnt vmcnt(0)""")
        self.stamp("G", "acked")
        A(f"""s_mov_b64 exec, 1
        ds_add_rtn_u32 v4, v10, v4 offset:{SY_ACK}
        s_waitcnt lgkmcnt(0)
        v_readfirstlane_b32 s17, v4
        s_cmp_eq_u32 s17, 3
        s_cbranch_scc0 L_g_noflag
        s_mov_b32 exec_lo, -1
        buffer_store_dword v2, v3, s[44:47], s50 offen sc1
        ds_write_b32 v10, v10 offset:{SY_FL}
        L_g_noflag:
        s_mov_b64 exec, -1
        v_add_u32 v2, s48, v1
        v_mov_b32 v3, v10""")
        self.lds_spin(3, SY_FL, 1, 4)
        A("s_cmp_eq_u32 s34, 1\ns_cbranch_scc0 L_g_fwok")
        self.lds_spin(3, SY_FW, 1, 4)
        A("L_g_fwok:")
        R = [WR + 20*i for i in range(7)]
        wbuf = {}; hbuf = {}; q = []
        def wl(s):
            L = [f"buffer_load_dwordx4 {vr(wbuf[s]+4*nt,4)}, v1, s[44:47], {'s51' if nt == 4 else 's49'} offen offset:{(nt&3)*1024} sc1" for nt in range(5)]
            L[-1] += "\ns_add_u32 s49, s49, 40960\ns_add_u32 s51, s51, 40960"
            if s == 5: L[-1] += "\ns_add_u32 s49, s49, s57\ns_add_u32 s51, s51, s57"
            q.extend([("w", s)]*5); return L
        def hl(s):
            L = [f"buffer_load_dwordx4 {vr(hbuf[s]+4*rl,4)}, v1, s[44:47], s{52+rl} offen offset:{(s&1)*2048} sc1" for rl in range(4)]
            if s & 1: L[-1] += "\n" + "\n".join(f"s_add_u32 s{52+rl}, s{52+rl}, 4096" for rl in range(4))
            if s == 5: L[-1] += "\n" + "\n".join(f"s_add_u32 s{52+rl}, s{52+rl}, s58" for rl in range(4))
            if s == 6: L[0] = "SPIN2\n" + L[0]
            q.extend([("h", s)]*4); return L
        npw = self.npw
        for s in range(npw):
            wbuf[s] = R[s]
            if s == self.wgate: self.lds_inc(3, SY_WI, 4)
            A("\n".join(wl(s)))
        if self.wgate >= npw: self.lds_inc(3, SY_WI, 4)
        self.stamp("G", "w2iss")
        self.lds_spin(3, SY_H, 1, 4)
        self.stamp("G", "Hok")
        init = [4, 20] + R[npw:]
        nh = len(init)
        for s in range(nh): hbuf[s] = init[s]; A("\n".join(hl(s)))
        free = []; nxh = nh; nxw = npw
        for s in range(14):
            if s == 13: A("s_cmp_ge_u32 s16, 2\ns_cbranch_scc1 L_g_p2done")
            need = [("h", s)] + ([("w", s)] if s < NREG else [])
            last = max(i for i, e in enumerate(q) if e in need)
            A(f"s_waitcnt vmcnt({len(q)-1-last})" + (" lgkmcnt(0)" if s >= NREG else ""))
            self.stamp("G", f"S{s}")
            A(".p2align 3")
            ms = []
            for rl in range(4):
                for nt in range(5):
                    a_ = AC2 + 4*(5*rl + nt)
                    ms.append(f"v_mfma_f32_16x16x32_bf16 {vr(a_,4)}, {vr(wbuf[s]+4*nt,4)}, {vr(hbuf[s]+4*rl,4)}, {'0' if s == 0 else vr(a_,4)}")
            if s >= 1: free += [wbuf[s-1], hbuf[s-1]]
            ot = []; vm = []
            def take(big):
                c = [b_ for b_ in free if (b_ in R) or not big]
                c.sort(key=lambda b_: (b_ in R))
                if not c: return None
                free.remove(c[0]); return c[0]
            if NREG-1 <= s < 13:
                if s == NREG-1: ot.append("SPIN")
                wbuf[s+1] = take(True); assert wbuf[s+1] is not None
                ot += [f"ds_read_b128 {vr(wbuf[s+1]+4*nt,4)}, v2 offset:{(s+1-NREG)*5120 + nt*1024}" for nt in range(5)]
            if s == self.ystep: ot.append(f"ds_write_b32 v3, v3 offset:{SY_G}")
            if nxw < NREG and s >= 1:
                b_ = take(True)
                if b_ is not None: wbuf[nxw] = b_; vm += wl(nxw); nxw += 1
            while nxh < 14 and nxh <= s + self.la:
                nbig = sum(1 for b_ in free if b_ in R)
                b_ = take(False)
                if b_ is None: break
                hbuf[nxh] = b_; vm += hl(nxh); nxh += 1
            slots = [[] for _ in ms]
            for k, f in enumerate(ot): slots[min(len(ms)-1, 2*k)].append(f)
            for k, f in enumerate(vm): slots[min(len(ms)-1, 1 + (k*(len(ms)-1))//max(1, len(vm)))].append(f)
            for m_, sl in zip(ms, slots):
                A(m_)
                for o in sl:
                    if o == "SPIN":
                        l = self.lab("sp"); d = l + "d"
                        A(f"""s_lshl_b32 s17, s16, 2
                        v_add_u32 v0, s17, v3
                        s_mov_b32 s19, 0
                        {l}:
                        ds_read_b32 v0, v0 offset:{SY_W2}
                        s_waitcnt lgkmcnt(0)
                        v_readfirstlane_b32 s27, v0
                        v_add_u32 v0, s17, v3
                        {self.spin_guard(d)}
                        s_cmp_ge_u32 s27, 1
                        s_cbranch_scc0 {l}
                        {d}:
                        v_lshrrev_b32 v0, 4, v1
                        .p2align 3""")
                    elif o.startswith("SPIN2"):
                        l = self.lab("sp"); d = l + "d"
                        A(f"""s_mov_b32 s19, 0
                        {l}:
                        ds_read_b32 v0, v3 offset:{SY_H2}
                        s_waitcnt lgkmcnt(0)
                        v_readfirstlane_b32 s27, v0
                        {self.spin_guard(d)}
                        s_cmp_ge_u32 s27, 1
                        s_cbranch_scc0 {l}
                        {d}:
                        v_lshrrev_b32 v0, 4, v1
                        .p2align 3""")
                        A(o[6:])
                    else: A(o)
        assert nxh == 14 and nxw == NREG
        A.label("L_g_p2done")
        self.stamp("G", "p2done")
        A("s_waitcnt vmcnt(0) lgkmcnt(0)\ns_nop 7")
        for rl in range(1, 4):
            for nt in range(5):
                A(f"ds_write_b128 v2, {vr(AC2+4*(5*rl+nt),4)} offset:{(rl-1)*5120 + nt*1024}")
        for rl in range(1, 4):
            A(f"s_sub_u32 s17, s16, {rl}\ns_and_b32 s17, s17, 3")
            self.lw(18, 17)
            A(f"""s_add_u32 s18, s18, {(rl-1)*5120}
            v_add_u32 v{3+rl}, s18, v1""")
        A(f"""v_and_b32 v8, 15, v0              ; jl
        v_lshrrev_b32 v9, 4, v0                 ; g
        s_lshl_b32 s17, s16, 4
        v_add_u32 v10, s17, v8
        v_mul_u32_u24 v10, {PROW}, v10
        v_bfe_u32 v11, v8, 1, 2
        v_xor_b32 v11, v11, v9
        v_lshl_add_u32 v10, v11, 4, v10
        v_add_u32 v10, {L_P}, v10               ; p address
        s_lshl_b32 s17, s16, 6
        s_add_u32 s17, s17, {L_SYNC + 512}
        v_lshl_add_u32 v11, v8, 2, s17          ; r address
        ds_read_b32 v12, v11
        s_add_u32 s48, s48, 15360
        v_mul_u32_u24 v13, 176, v8
        v_lshl_add_u32 v13, v9, 3, v13
        v_add_u32 v13, s48, v13""")
        for n in range(3):
            A(f"""v_add_u32 v20, {64*n}, v0
            v_mul_u32_u24 v21, 6554, v20
            v_lshrrev_b32 v21, 16, v21
            v_mul_u32_u24 v22, 10, v21
            v_sub_u32 v22, v20, v22
            v_lshlrev_b32 v22, 4, v22
            v_mul_u32_u24 v23, 176, v21
            v_add3_u32 v{14+n}, v23, v22, s48
            v_mul_u32_u24 v21, 0x14000, v21
            v_add_u32 v{17+n}, v21, v22""")
        srd(A, 40, 84, 2048*1280)
        A(f"""s_lshl_b32 s17, s31, 10
        s_lshl_b32 s18, s20, 2
        s_add_u32 s17, s17, s18
        s_add_u32 s17, s17, s16
        s_mul_i32 s17, s17, 1280
        s_mul_i32 s18, s15, 160
        s_add_u32 s49, s17, s18
        s_waitcnt lgkmcnt(0)
        v_mul_f32 v12, v12, v12
        s_barrier""")
        self.stamp("G", "B15")
        for nt in range(5):
            for rl in range(1, 4): A(f"ds_read_b128 {vr(32+16*nt+4*(rl-1),4)}, v{3+rl} offset:{nt*1024}")
            A(f"ds_read_b128 {vr(32+16*nt+12,4)}, v10 offset:{nt*64}")
        for nt in range(5):
            a = AC2 + 4*nt; b = 32 + 16*nt
            A(f"s_waitcnt lgkmcnt({min(15, 4*(4-nt))})")
            for h in range(2):
                A(f"v_pk_add_f32 {vr(a+2*h,2)}, {vr(a+2*h,2)}, {vr(b+2*h,2)}\nv_pk_add_f32 {vr(b+4+2*h,2)}, {vr(b+4+2*h,2)}, {vr(b+8+2*h,2)}")
            for h in range(2):
                A(f"v_pk_add_f32 {vr(a+2*h,2)}, {vr(a+2*h,2)}, {vr(b+4+2*h,2)}")
            for h in range(2):
                A(f"v_pk_fma_f32 {vr(a+2*h,2)}, {vr(a+2*h,2)}, v[12:13], {vr(b+12+2*h,2)} op_sel_hi:[1,0,1]")
            A(f"v_cvt_pk_bf16_f32 v{b}, v{a}, v{a+1}\nv_cvt_pk_bf16_f32 v{b+1}, v{a+2}, v{a+3}\nds_write_b64 v13, {vr(b,2)} offset:{nt*32}")
        A("s_waitcnt lgkmcnt(0)")
        for n in range(3): A(f"ds_read_b128 {vr(20+4*n,4)}, v{14+n}")
        for n in range(3):
            if n == 2: A("s_mov_b32 exec_hi, 0")
            A(f"s_waitcnt lgkmcnt({2-n})\nbuffer_store_dwordx4 {vr(20+4*n,4)}, v{17+n}, s[40:43], s49 offen")
        A("s_mov_b64 exec, -1")
        self.stamp("G", "end")

    def l_setup(self):
        A = self.A
        def pk(r):
            v = 0
            for i, x in enumerate(r): v |= x << (4*i)
            return v & 0xffffffff, v >> 32
        A(f"""
        v_lshrrev_b32 v11, 3, v0
        s_lshl_b32 s17, s16, 3
        v_add_u32 v12, s17, v11
        s_mov_b32 s18, 81920
        v_mul_lo_u32 v2, v12, s18
        v_and_b32 v13, 7, v0
        v_lshrrev_b32 v14, 4, v0
        v_xor_b32 v13, v13, v14
        s_and_b32 s17, s16, 1
        s_lshl_b32 s17, s17, 2
        v_xor_b32 v13, s17, v13
        v_lshl_add_u32 v2, v13, 4, v2   ; x voffset
        v_mul_lo_u32 v3, v14, s35
        v_bfe_u32 v13, v0, 2, 2
        v_xor_b32 v15, v13, v14
        v_lshl_add_u32 v3, v15, 6, v3
        v_and_b32 v13, 3, v0
        v_lshl_add_u32 v3, v13, 4, v3   ; w voffset
        v_lshrrev_b32 v14, 2, v0
        v_mul_lo_u32 v4, v14, s35
        v_lshl_add_u32 v4, v13, 4, v4
        s_mul_i32 s48, s26, 5120
        s_lshl_b32 s17, s16, 4
        s_mul_i32 s49, s17, s35
        s_lshl_b32 s52, s30, 6
        s_add_u32 s52, s49, s52
        s_lshl_b32 s17, s28, 6
        s_add_u32 s49, s49, s17
        s_lshl_b32 s53, s35, 2
        s_lshl_b32 s54, s35, 6
        s_lshl_b32 s55, s16, 10
        s_add_u32 s64, s24, s25
        s_and_b32 s64, s64, 3           ; group""")
        for g in range(4):
            lo, hi = pk(self.sched[g])
            if g == 0: A(f"s_mov_b32 s56, {lo:#x}\ns_mov_b32 s57, {hi:#x}")
            else: A(f"s_cmp_eq_u32 s64, {g}\ns_cselect_b32 s56, {lo:#x}, s56\ns_cselect_b32 s57, {hi:#x}, s57")
        t = self.xsh[0] | self.xsh[1] << 4 | self.xsh[2] << 8 | self.xsh[3] << 12
        A(f"""s_lshl_b32 s27, s22, 2
        s_lshr_b32 s32, {t:#x}, s27
        s_and_b32 s32, s32, 15
        s_mul_i32 s27, s23, {self.xsh[4]}
        s_add_u32 s32, s32, s27""")
        self.common_srds()
        A("""
        s_cmp_eq_u32 s23, 0
        s_cselect_b32 s8, s8, s10
        s_cselect_b32 s9, s9, s11
        s_cmp_eq_u32 s34, 1
        s_cselect_b32 s40, s8, s6
        s_cselect_b32 s41, s9, s7
        s_mov_b32 s42, 2211840
        s_cselect_b32 s42, 819200, s42
        s_mov_b32 s43, 0x20000
        s_mov_b32 s10, 0
        s_mov_b32 s11, s64""")
    def l_issue_d(self, i):
        A = self.A; odd = i & 1
        A(f"""s_lshl_b32 s4, s56, 7
        s_add_u32 s5, s4, s48
        s_add_u32 s6, s4, s49
        s_add_u32 s8, s10, s55""")
        if odd: A(f"s_add_u32 s5, s5, 640\ns_add_u32 s6, s6, {3*81920}\ns_add_u32 s56, s56, 1\ns_cmp_eq_u32 s56, 5\ns_cselect_b32 s56, 0, s56")
        for k in range(4):
            A(f"s_add_u32 m0, s8, {k*4096 - k*1280}\ns_nop 0\nbuffer_load_dwordx4 v2, s[36:39], s5 offen offset:{k*1280} lds")
        for k in range(2 if odd else 3):
            A(f"s_add_u32 m0, s8, {16384 + k*4096}")
            A("s_nop 0" if k == 0 else "s_add_u32 s6, s6, 81920")
            A("buffer_load_dwordx4 v3, s[40:43], s6 offen lds")
        A(f"s_add_u32 s10, s10, {DS}\ns_cmp_eq_u32 s10, {5*DS}\ns_cselect_b32 s10, 0, s10")
        return 6 if odd else 7
    def l_setup_d(self):
        self.A("""v_lshrrev_b32 v11, 3, v0
        v_mul_u32_u24 v11, 2560, v11
        v_and_b32 v3, 0x70, v2
        v_add_u32 v3, v3, v11
        s_and_b32 s17, s25, 1
        s_mul_i32 s17, s17, 1280
        s_mul_i32 s49, s16, 20480
        s_add_u32 s49, s49, s17
        s_add_u32 s56, s24, s22
        s_cmp_ge_u32 s56, 5
        s_cselect_b32 s17, 5, 0
        s_sub_u32 s56, s56, s17""")
    def l_issue(self, T):
        A = self.A
        A(f"""
        s_and_b32 s4, s56, 15
        s_lshr_b64 s[56:57], s[56:57], 4
        s_add_u32 s4, s4, s32
        s_cmp_ge_u32 s4, 10
        s_cselect_b32 s27, 10, 0
        s_sub_u32 s4, s4, s27
        s_lshl_b32 s5, s4, 7
        s_add_u32 s5, s5, s48
        s_mul_i32 s6, s4, s54
        s_add_u32 s7, s6, s52
        s_add_u32 s6, s6, s49
        s_add_u32 s8, s10, s55
        s_lshl_b32 s9, s55, 2
        s_add_u32 s9, s9, s10""")
        for i in range(4):
            A(f"s_add_u32 m0, s8, {i*4096 - i*1280}\ns_nop 0\nbuffer_load_dwordx4 v2, s[36:39], s5 offen offset:{i*1280} lds")
        for i in range(4):
            A(f"s_add_u32 m0, s9, {16384 + i*1024}")
            A("s_nop 0" if i == 0 else "s_add_u32 s6, s6, s53")
            A("buffer_load_dwordx4 v3, s[40:43], s6 offen lds")
        if T == 5: A("s_add_u32 m0, s8, 32768\ns_nop 0\nbuffer_load_dwordx4 v4, s[40:43], s7 offen lds")
        A(f"""s_add_u32 s10, s10, {SLOT}
        s_cmp_eq_u32 s10, {NS*SLOT}
        s_cselect_b32 s10, 0, s10""")
    F1 = 64; TC = 76; TS = 92; F2 = 108
    def g_consts(self):
        A = self.A; B = 64
        def trig(mul, base, k, c, sn):
            return f"v_fmamk_f32 v{B+9}, v{mul}, {fl(k)}, v{base}\nv_cos_f32 v{c}, v{B+9}\nv_sin_f32 v{sn}, v{B+9}"
        A(f"""v_and_b32 v{B}, 15, v0
        s_and_b32 s17, s16, 1
        s_lshl_b32 s18, s17, 4
        v_add_u32 v{B+2}, s18, v{B}
        v_cvt_f32_u32 v{B+2}, v{B+2}          ; t1
        v_lshlrev_b32 v{B}, 1, v{B}
        s_lshr_b32 s18, s16, 1
        v_add_u32 v{B}, s18, v{B}
        v_cvt_f32_u32 v{B}, v{B}              ; 2jl+T
        v_lshrrev_b32 v{B+1}, 4, v0
        v_lshlrev_b32 v{B+3}, 2, v{B+1}
        s_lshl_b32 s17, s17, 5
        v_add_u32 v{B+4}, s17, v{B+3}
        v_cvt_f32_u32 v{B+4}, v{B+4}          ; 4G + 32v
        v_cvt_f32_u32 v{B+3}, v{B+3}          ; 4G
        v_mul_f32 v{B+5}, {fl(1/64)}, v{B}
        v_mul_f32 v{B+6}, v{B+5}, v{B+4}
        v_lshlrev_b32 v{B+7}, 4, v0
        v_add_u32 v{B+7}, {L_CST}, v{B+7}""")
        for jj in range(8): A(trig(B+5, B+6, 16*(jj>>2) + (jj&3), 80+jj, 88+jj))
        A(f"s_lshl_b32 s17, s16, 11\nv_add_u32 v{B+8}, s17, v{B+7}")
        for p in range(4): A(f"v_cvt_pk_bf16_f32 v{96+p}, v{80+2*p}, v{81+2*p}\nv_cvt_pk_bf16_f32 v{100+p}, v{88+2*p}, v{89+2*p}")
        A(f"ds_write_b128 v{B+8}, v[96:99]\nds_write_b128 v{B+8}, v[100:103] offset:1024")
        A(f"""s_cmp_ge_u32 s16, 2
        s_cbranch_scc1 L_g_cf1
        v_mul_f32 v{B+5}, {fl(1/2048)}, v{B+2}
        v_mul_f32 v{B+6}, v{B+5}, v{B+3}
        s_lshl_b32 s17, s16, 13
        s_add_u32 s17, s17, 8192
        v_add_u32 v{B+8}, s17, v{B+7}""")
        for a4 in range(4):
            r = 80 + 8*(a4 & 1)
            for i in range(4): A(trig(B+5, B+6, 16*a4+i, r+i, r+4+i))
            A(f"s_nop 0\nds_write_b128 v{B+8}, {vr(r,4)} offset:{1024*a4}\nds_write_b128 v{B+8}, {vr(r+4,4)} offset:{4096+1024*a4}")
        A(f"""s_branch L_g_cdone
        L_g_cf1:
        v_lshrrev_b32 v{B+4}, 1, v{B+1}
        v_lshlrev_b32 v{B+4}, 4, v{B+4}
        v_and_b32 v{B+1}, 1, v{B+1}
        v_lshl_add_u32 v{B+4}, v{B+1}, 2, v{B+4}
        v_cvt_f32_u32 v{B+4}, v{B+4}
        v_mul_f32 v{B+5}, {fl(1/32)}, v{B+2}
        v_mul_f32 v{B+6}, v{B+5}, v{B+4}
        s_lshl_b32 s17, s16, 11
        s_add_u32 s17, s17, {24576 - 4096}
        v_add_u32 v{B+8}, s17, v{B+7}""")
        for jj, k in enumerate([0,1,2,3,8,9,10,11]): A(trig(B+5, B+6, k, 80+jj, 88+jj))
        A("s_nop 0")
        for p in range(4): A(f"v_cvt_pk_bf16_f32 v{96+p}, v{80+2*p}, v{81+2*p}\nv_cvt_pk_bf16_f32 v{100+p}, v{88+2*p}, v{89+2*p}")
        A(f"ds_write_b128 v{B+8}, v[96:99]\nds_write_b128 v{B+8}, v[100:103] offset:1024\nL_g_cdone:")
    def l_consts(self):
        A = self.A; F1, TC, TS, F2 = self.F1, self.TC, self.TS, self.F2
        A(f"""v_add_u32 v20, {L_CST}, v8
        s_and_b32 s17, s16, 1
        s_lshl_b32 s18, s17, 13
        v_add_u32 v21, s18, v20
        s_lshl_b32 s18, s17, 11
        v_add_u32 v22, s18, v20""")
        for g in range(4):
            A(f"ds_read_b128 {vr(F2+4*g,4)}, v20 offset:{2048*g}\nds_read_b128 {vr(F2+16+4*g,4)}, v20 offset:{2048*g+1024}")
        for a4 in range(4):
            A(f"ds_read_b128 {vr(TC+4*a4,4)}, v21 offset:{8192+1024*a4}\nds_read_b128 {vr(TS+4*a4,4)}, v21 offset:{12288+1024*a4}")
        A(f"ds_read_b128 {vr(F1,4)}, v22 offset:24576\nds_read_b128 {vr(F1+4,4)}, v22 offset:25600\ns_waitcnt lgkmcnt(0)")
    def l_consts2(self):
        A = self.A
        A("s_mov_b32 s17, 0x80000000\ns_mov_b32 s18, 0x80008000")
        for i in range(32): A(f"v_xor_b32 v{self.F2+32+i}, s17, v{self.F2+i}")
        for i in range(4): A(f"v_xor_b32 v{self.F1+8+i}, s18, v{self.F1+4+i}")
    def l_phase1(self, K):
        A0 = self.A; D = K == "D"; NT = {"5": 2, "4": 2, "D": 3}[K]
        class W:
            def __call__(s_, t): A0(t.replace("@", K))
            def label(s_, t): A0.label(t.replace("@", K))
        A = W()
        issue = (lambda i: self.l_issue_d(i)) if D else (lambda i: (self.l_issue(int(K)), 4 + int(K))[1])
        self.stamp("L", "pre-issue")
        if self.lprio: A(f"s_setprio {self.lprio}")
        n0 = issue(0)
        srd(A, 76, 62, 1728*2)
        A(f"""
        v_and_b32 v8, 31, v0
        v_lshlrev_b32 v8, 1, v8
        s_add_u32 s17, s28, s16
        s_lshl_b32 s17, s17, 6
        s_lshl_b32 s18, s30, 6
        s_cmp_eq_u32 s34, 1
        s_cselect_b32 s17, 0x40000000, s17
        s_cselect_b32 s18, 0x40000000, s18
        buffer_load_ushort v14, v8, s[76:79], s17 offen
        buffer_load_ushort v13, v8, s[76:79], s18 offen
        """)
        if NT:
            A("""s_mul_i32 s17, s21, 6554
            s_lshr_b32 s17, s17, 16
            s_mul_i32 s18, s17, 10
            s_sub_u32 s18, s21, s18        ; cl
            s_mul_i32 s0, s16, 25
            s_add_u32 s9, s0, s17          ; ks
            s_cmp_ge_u32 s17, 25
            s_cselect_b32 s9, 60, s9
            s_mul_i32 s0, s9, 10
            s_add_u32 s0, s0, s18""")
            self.w2_task_addr(0, 1, 51, 5)
            A("s_cmp_ge_u32 s9, 54\ns_cselect_b32 s1, 0x40000000, s1\ns_cselect_b32 s51, 0x40000000, s51")
            A(f"s_lshl_b32 s50, s16, 12\ns_add_u32 s50, s50, {5*DS}" if D else f"s_lshl_b32 s50, s16, 12\ns_add_u32 s50, s50, {L_STG}")
            srd(A, 76, 80, 1728*1280)
        n1 = issue(1)
        if NT:
            if NT < 4: A(f"s_cmp_ge_u32 s16, {NT}\ns_cbranch_scc1 L_l_nw2@")
            self.w2_task_dma(1, 50, 5, 76)
            A.label("L_l_nw2@")
        self.get_tag()
        A(f"""
        v_mov_b32 v55, s14
        v_lshlrev_b32 v8, 4, v0
        v_lshlrev_b32 v7, 2, v0
        s_mul_i32 s1, s15, 5
        s_lshr_b32 s1, s1, 2                 ; cl0
        v_and_b32 v52, 31, v0
        v_mul_u32_u24 v52, 10, v52
        v_lshrrev_b32 v53, 5, v0
        v_add3_u32 v53, v52, v53, s1
        v_lshlrev_b32 v53, 7, v53
        s_mov_b32 s1, {W_F0}
        v_add_u32 v9, {L_CORR}, v8
        s_lshl_b32 s0, s21, 7
        s_add_u32 s0, s0, s1
        v_add_u32 v10, s55, v9
        v_cmp_le_u32 vcc, 32, v0
        v_mov_b32 v17, 0
        v_mov_b32 v18, 0
        v_mov_b32 v19, 0
        v_mov_b32 v12, {L_SYNC}
        v_lshlrev_b32 v47, 7, v0
        """)
        q = [["D0"]*n0 + ["b"]*2 + ["D1"]*n1 + (["w"]*4 if w < NT else []) for w in range(4)]
        def waits(tag):
            n = [len(qq) - 1 - max(i for i, e in enumerate(qq) if e == tag) for qq in q]
            lo = min(n)
            if all(x == lo for x in n): A(f"s_waitcnt vmcnt({lo})"); return
            l = self.lab("wt")
            for w in range(4):
                if n[w] != lo: A(f"s_cmp_eq_u32 s16, {w}\ns_cbranch_scc1 {l}_{n[w]}")
            A(f"s_waitcnt vmcnt({lo})")
            for x in sorted(set(n) - {lo}): A(f"{l}_{x}:\ns_waitcnt vmcnt({x})")
        PL = [(54, 1, 53, "s1", "s_mov_b32 exec_lo, 0x1ffffff\ns_mov_b32 exec_hi, 0x1ffffff")]
        stl = f"s_lshl_b32 s17, s26, 11\ns_add_u32 s17, s17, {W_STAT}\nbuffer_load_dwordx4 v[56:59], v8, s[44:47], s17 offen sc1\nbuffer_load_dwordx4 v[60:63], v8, s[44:47], s17 offen offset:1024 sc1\ns_lshl_b32 s17, s20, 11\ns_lshl_b32 s18, s31, 8\ns_add_u32 s17, s17, s18\ns_add_u32 s17, s17, {W_STAT}\nv_and_b32 v48, 0x300, v8\nv_add_u32 v48, v48, v8\nbuffer_load_dwordx4 v[48:51], v48, s[44:47], s17 offen sc1"
        def ev_statline():
            A(f"""s_cmp_eq_u32 s16, 3
            s_cbranch_scc0 L_l_nst@
            v_add_u32 v16, v12, v7
            ds_read_b32 v16, v16 offset:{SY_ST}
            s_lshl_b32 s17, s26, 4
            s_add_u32 s17, s17, s29
            s_lshl_b32 s17, s17, 7
            s_add_u32 s17, s17, {W_STAT}
            s_mov_b32 exec_hi, 0
            s_waitcnt lgkmcnt(0)
            buffer_store_dword v16, v7, s[44:47], s17 offen sc1
            s_mov_b64 exec, -1
            L_l_nst@:""")
            q[3].append("t")
        def ev_statload():
            A(f"s_cmp_eq_u32 s16, 2\ns_cbranch_scc0 L_l_n6@\n{stl}\nL_l_n6@:"); q[2] += ["P"]*3
        def ev_w2fin():
            if not NT: return
            if NT < 4: A(f"s_cmp_ge_u32 s16, {NT}\ns_cbranch_scc1 L_l_n5@")
            self.w2_task_fin(51, 50, 30, 32)
            A.label("L_l_n5@")
            for w in range(NT): q[w] += ["s"]*4
        def ev_issue(k):
            nn = issue(k)
            for qq in q: qq += [f"D{k}"]*nn
        def ev_flag():
            if not NT: return
            A("s_cmp_eq_u32 s16, 0\ns_cbranch_scc0 L_l_n4@\ns_mov_b32 exec_hi, 0\nbuffer_store_dword v55, v7, s[44:47], s0 offen sc1\ns_mov_b64 exec, -1\nL_l_n4@:")
            q[0].append("f")
        def ev_init():
            A(f"""v_cndmask_b32 v16, 0, v14, vcc
            ds_write_b128 v10, v[16:19]
            s_cmp_eq_u32 s16, 0
            s_cbranch_scc0 L_l_n0@
            v_cndmask_b32 v16, 0, v13, vcc
            ds_write_b128 v9, v[16:19] offset:4096
            v_add_u32 v16, v12, v7
            ds_write_b32 v16, v17
            L_l_n0@:""")
            self.l_consts()
        def ev_x():
            self.l_xload(K)
            for w in range(4): q[w] += ["x"]*(6 if w < 2 else 4)
        def ev_statchk():
            A(f"""s_cmp_eq_u32 s16, 2
            s_cbranch_scc0 L_l_nchk@
            s_mov_b32 s19, 0
            L_l_sc@:
            v_cmp_ne_u32 vcc, v55, v59
            v_cmp_ne_u32 s[64:65], v55, v63
            v_cmp_ne_u32 s[68:69], v55, v51
            {self.spin_guard("L_l_scd@")}
            s_or_b64 vcc, vcc, s[64:65]
            s_or_b64 vcc, vcc, s[68:69]
            s_cbranch_vccz L_l_scd@
            s_sleep 4
            {stl}
            s_waitcnt vmcnt(0)
            s_branch L_l_sc@
            L_l_scd@:
            v_lshlrev_b32 v20, 3, v0
            v_add_u32 v20, {L_STAT}, v20
            v_add_u32 v21, {L_STAT + 1024}, v7
            s_mov_b32 s17, 0x01000100
            v_perm_b32 v22, v56, v56, s17
            v_lshrrev_b32 v23, 16, v56
            v_perm_b32 v24, v60, v60, s17
            v_lshrrev_b32 v25, 16, v60
            ds_write_b64 v20, v[22:23]
            ds_write_b64 v20, v[24:25] offset:512
            ds_write_b32 v21, v57
            ds_write_b32 v21, v61 offset:256
            ds_write_b32 v21, v58 offset:512
            ds_write_b32 v21, v62 offset:768
            ds_write_b32 v21, v49 offset:{L_SYNC + 512 - L_STAT - 1024}
            s_waitcnt lgkmcnt(0)
            L_l_nchk@:""")
        def ev_f0issue():
            A("s_cmp_eq_u32 s16, 3\ns_cbranch_scc0 L_l_n7@")
            for (dst, n, va, so, ex) in PL: A(f"{ex}\nbuffer_load_dword v{dst}, v{va}, s[44:47], {so} offen sc1\ns_mov_b64 exec, -1")
            A("L_l_n7@:"); q[3] += ["P"]
        def ev_f0chk():
            A("s_cmp_eq_u32 s16, 3\ns_cbranch_scc0 L_l_n9@\ns_waitcnt vmcnt(0)")
            self.poll(PL, 55, first_issued=True)
            A("L_l_n9@:")
        def PF(j):
            def f():
                if not self.spf: return
                if j == 0:
                    A(f"""s_lshl_b32 s66, s24, 1
                    s_add_u32 s66, s66, s31
                    s_mul_i32 s66, s66, 40960
                    s_mul_i32 s67, s15, 5120
                    s_add_u32 s66, s66, s67
                    s_mul_i32 s67, s16, 1280
                    s_add_u32 s66, s66, s67
                    s_add_u32 s66, s66, {W_W2F}""")
                for k in range(10*self.spf): A(f"s_load_dword s67, s[12:13], s66 offset:{k*128//self.spf}")
                A(f"s_add_u32 s66, s66, {8*40960}")
            return f
        def bar(tag, name):
            if tag: waits(tag)
            A("s_barrier"); self.stamp("L", name)
        I = lambda k: (lambda: ev_issue(k))
        if not D:
            plan = [("b", [ev_statline, I(2), ev_init]), ("D1", [I(3), self.l_consts2]), ("D2", [ev_w2fin, I(4)]), ("D3", [I(5)]),
                    ("D4", [ev_statload, I(6), ev_flag, PF(0)]), ("D5", [I(7), PF(1)]), ("D6", [I(8), ev_statchk, PF(2)]), ("D7", [I(9), ev_x, ev_f0issue, PF(3)]),
                    ("D8", [PF(4), ev_f0chk, PF(5)]), ("D9", [PF(6)])]
            names = [f"B{i}" for i in range(10)]
        else:
            ev_issue(2)
            plan = [("D1", [ev_statline, I(3), ev_init]), (None, [I(4), self.l_consts2]), ("D3", [ev_w2fin, I(5), I(6)]),
                    ("D5", [ev_statload, I(7), I(8), ev_flag, PF(0), PF(1)]), ("D7", [I(9), ev_statchk, ev_x, PF(2), PF(3)]), ("D9", [PF(4), PF(5), PF(6)])]
            names = ["B1", "X", "B3", "B5", "B7", "B9"]
        for (tag, evs), nm in zip(plan, names):
            bar(tag, nm)
            for e in evs: e()
        if D and self.dpf:
            A(f"""s_cmp_lt_u32 s16, 2
            s_cbranch_scc1 L_l_dpfe
            s_lshl_b32 s4, s24, 2
            s_and_b32 s5, s25, 1
            s_lshl_b32 s5, s5, 1
            s_add_u32 s4, s4, s5
            s_add_u32 s4, s4, s16
            s_sub_u32 s4, s4, 2
            s_mul_i32 s4, s4, 35               ; idx
            s_mul_i32 s5, s4, 3277
            s_lshr_b32 s5, s5, 16              ; j = idx/20
            s_mul_i32 s6, s5, 20
            s_sub_u32 s6, s4, s6               ; off
            s_add_u32 s17, s55, {L_STG}
            s_mov_b32 m0, s17
            s_mul_i32 s8, s23, 20480
            s_add_u32 s8, s8, {W_W2F}
            s_movk_i32 s9, {self.dpf}
            L_l_dpf:
            s_mul_i32 s7, s5, 37
            s_lshr_b32 s7, s7, 8               ; q = j/7
            s_mul_i32 s17, s7, 7
            s_add_u32 s17, s17, s5             ; j + 7q = 14q + j%7
            s_cmp_eq_u32 s7, 3
            s_cselect_b32 s18, 1, 0
            s_sub_u32 s17, s17, s18            ; ks
            s_mul_i32 s17, s17, 40960
            s_lshl_b32 s18, s6, 10
            s_add_u32 s17, s17, s18
            s_add_u32 s17, s17, s8
            buffer_load_dwordx4 v8, s[44:47], s17 offen sc1 lds
            s_add_u32 s6, s6, 1
            s_cmp_eq_u32 s6, 20
            s_cselect_b32 s6, 0, s6
            s_cselect_b32 s18, 1, 0
            s_add_u32 s5, s5, s18
            s_sub_u32 s9, s9, 1
            s_cmp_lg_u32 s9, 0
            s_cbranch_scc1 L_l_dpf
            L_l_dpfe:""")
        if D:
            A("s_cmp_lt_u32 s16, 2\ns_cbranch_scc0 L_l_d23\ns_barrier\ns_branch L_l_gapD\nL_l_d23:\ns_cmp_eq_u32 s16, 3\ns_cbranch_scc0 L_l_dsp")
            self.poll(PL, 55)
            self.lds_set(12, SY_FW, 16)
            A("s_branch L_l_dgo\nL_l_dsp:")
            self.lds_spin(12, SY_FW, 1, 16)
            A("L_l_dgo:")
            self.l_w2dma("b", self.nbd, "d")
            A("s_barrier")
            if self.nbc: self.l_w2dma("c", self.nbc, "d")
            A("s_setprio 3")
            self.lds_spin(12, SY_FL, 1, 16)
            if 7 - self.nbd - self.nbc: self.l_w2dma("c", 7 - self.nbd - self.nbc, "f")
            A("s_waitcnt vmcnt(35)\ns_branch L_l_gp2")
        else:
            A("s_cmp_lt_u32 s16, 2\ns_cbranch_scc1 L_l_n10@")
            self.l_w2dma("a", 3, K)
            A("L_l_n10@:\ns_barrier")
            if K == "4": A("s_branch L_l_gapW")
    def l_w2setup(self):
        pass
    def l_w2dma(self, tag, count, sfx=''):
        A = self.A
        if tag in ("a", "a2", "b"):
            kr = 16 if tag == "a" else 9
            if kr == 9: A("s_xor_b32 s9, s16, 2")
            A(f"""s_lshl_b32 s18, s{kr}, 3
            s_lshr_b32 s17, {KS0[0] | KS0[1] << 8 | KS0[2] << 16 | KS0[3] << 24:#x}, s18
            s_and_b32 s17, s17, 0xff
            s_add_u32 s17, s17, 1
            s_mul_i32 s8, s17, 40960
            s_mul_i32 s17, s15, 5120
            s_add_u32 s8, s8, s17
            s_add_u32 s8, s8, {W_W2F}""")
            self.lw(7, kr)
            n = 7 if tag == "b" else 6
            A(f"""s_lshl_b32 s17, s24, 1
            s_add_u32 s17, s17, s31
            s_cmp_ge_u32 s17, {n}
            s_cselect_b32 s18, {n}, 0
            s_sub_u32 s17, s17, s18            ; rot
            s_sub_u32 s6, {n}, s17
            s_mul_i32 s4, s17, 5120
            s_add_u32 s4, s4, s7
            s_mul_i32 s5, s17, 40960
            s_add_u32 s5, s5, s8""")
        A(f"s_mov_b32 s18, {count}\nL_l_dma{tag}{sfx}:\ns_mov_b32 m0, s4\ns_add_u32 s17, s5, 4096")
        for nt in range(4): A(f"buffer_load_dwordx4 v8, s[44:47], s5 offen offset:{1024*nt} sc1 lds")
        A(f"""s_add_u32 m0, s4, 4096
        s_add_u32 s4, s4, 5120
        buffer_load_dwordx4 v8, s[44:47], s17 offen sc1 lds
        s_add_u32 s5, s5, 40960
        s_sub_u32 s6, s6, 1
        s_cmp_eq_u32 s6, 0
        s_cselect_b32 s4, s7, s4
        s_cselect_b32 s5, s8, s5
        s_sub_u32 s18, s18, 1
        s_cmp_lg_u32 s18, 0
        s_cbranch_scc1 L_l_dma{tag}{sfx}""")
    def l_xload(self, sfx):
        A = self.A
        srd(A, 76, 82, 640*2)
        A(f"""s_lshl_b32 s17, s31, 10
        s_lshl_b32 s18, s20, 2
        s_add_u32 s17, s17, s18
        s_mul_i32 s17, s17, 1280
        s_mul_i32 s5, s15, 160
        s_add_u32 s4, s17, s5
        s_lshl_b32 s17, s16, 6""")
        for k in range(3):
            if k == 2: A(f"s_cmp_ge_u32 s16, 2\ns_cbranch_scc1 L_l_px2{sfx}")
            A(f"""v_add_u32 v20, s17, v0
            v_add_u32 v20, {256*k}, v20
            v_mul_u32_u24 v21, 6554, v20
            v_lshrrev_b32 v21, 16, v21
            v_mul_u32_u24 v22, 10, v21
            v_sub_u32 v22, v20, v22
            v_lshlrev_b32 v27, 4, v22           ; b2 voffset
            v_lshlrev_b32 v22, 1, v22
            v_bfe_u32 v23, v21, 1, 2
            v_xor_b32 v22, v22, v23
            v_mul_u32_u24 v23, {PROW}, v21
            v_lshl_add_u32 v{24+k}, v22, 4, v23 ; p address (-L_P)
            v_and_b32 v23, 15, v21
            v_mul_u32_u24 v23, 0x14000, v23
            v_lshrrev_b32 v21, 4, v21
            v_mul_u32_u24 v21, 1280, v21
            v_add3_u32 v23, v23, v21, v27
            buffer_load_dwordx4 {vr(172+8*k,4)}, v23, s[36:39], s4 offen
            buffer_load_dwordx4 {vr(176+8*k,4)}, v27, s[76:79], s5 offen""")
        A.label(f"L_l_px2{sfx}")
    def l_gap(self):
        A = self.A
        A.label("L_l_gapW")
        A("s_cmp_lt_u32 s16, 2\ns_cbranch_scc1 L_l_gapD")
        self.l_w2dma("c", 3)
        A("s_waitcnt vmcnt(30)\ns_branch L_l_gp2\nL_l_gapD:\ns_setprio 3\ns_waitcnt vmcnt(0)\nL_l_gp2:")
        for k in range(3):
            if k == 2: A("s_cmp_ge_u32 s16, 2\ns_cbranch_scc1 L_l_px3")
            x = 172 + 8*k; b = x + 4
            for d in range(4):
                A(f"""v_lshlrev_b32 v{32+2*d}, 16, v{x+d}
                v_and_b32 v{33+2*d}, 0xffff0000, v{x+d}
                v_lshlrev_b32 v40, 16, v{b+d}
                v_and_b32 v41, 0xffff0000, v{b+d}
                v_add_f32 v{32+2*d}, v{32+2*d}, v40
                v_add_f32 v{33+2*d}, v{33+2*d}, v41""")
            A(f"v_add_u32 v{24+k}, {L_P}, v{24+k}\nv_xor_b32 v40, 16, v{24+k}\nds_write_b128 v{24+k}, v[32:35]\nds_write_b128 v40, v[36:39]")
        A.label("L_l_px3")
        A("s_waitcnt lgkmcnt(0)")
        self.lds_inc(12, SY_P, 16)
    def l_gap1(self):
        A = self.A
        A("s_cmp_eq_u32 s34, 1\ns_cbranch_scc0 L_l_g1w\ns_cmp_lt_u32 s16, 2\ns_cbranch_scc0 L_l_g24")
        self.lds_spin(12, SY_FL, 1, 16)
        self.lds_spin(12, SY_FW, 1, 16)
        self.l_w2dma("a2", 6)
        A("s_branch L_l_g24\nL_l_g1w:\ns_cmp_lt_u32 s16, 2\ns_cbranch_scc1 L_l_g24")
        self.lds_spin(12, SY_FL, 1, 16)
        self.l_w2dma("b", self.h2at)
        A("s_cmp_eq_u32 s16, 3\ns_cbranch_scc0 L_l_g25")
        self.h2poll(True)
        A("L_l_g25:")
        if self.h2at < 7: self.l_w2dma("c", 7 - self.h2at, "g")
        A(f"s_cmp_eq_u32 s16, 3\ns_cbranch_scc0 L_l_g24\ns_waitcnt vmcnt({5*(7-self.h2at)})")
        self.h2poll(False)
        A("L_l_g24:")
        self.stamp("L", "w2iss")
    def l_gap2(self):
        A = self.A
        A("s_cmp_lt_u32 s16, 2\ns_cbranch_scc1 L_l_gq\ns_cmp_le_u32 s4, 320\ns_cbranch_scc1 L_l_gq")
        A(f"""s_lshl_b32 s17, s16, 2
        v_add_u32 v16, s17, v12
        v_mov_b32 v17, 1
        s_waitcnt vmcnt(0)
        ds_write_b32 v16, v17 offset:{SY_W2}
        ds_write_b32 v16, v17 offset:{SY_W2 - 8}""")
        self.stamp("L", "w2land")
        A.label("L_l_gq")
    def gate(self, t4flag):
        A = self.A; l = self.lab("gt")
        A(f"s_cmp_eq_u32 s34, 1\ns_cbranch_scc0 {l}w")
        self.lds_spin(12, SY_FL, 1, 16)
        A(f"s_sleep {self.zsleepd}\ns_branch {l}e\n{l}w:")
        self.lds_spin(12, SY_WI, 4, 16)
        if t4flag is not None:
            A(f"s_cmp_eq_u32 s33, 1\ns_cbranch_scc1 {l}e")
            self.lds_spin(12, t4flag, 1, 16)
        A(f"{l}e:")
    def h2poll(self, issue):
        A = self.A
        P = [(56, 1, 47, "s0", "s_mov_b64 exec, 0x0707")]
        if issue:
            A(f"v_lshlrev_b32 v47, 7, v0\ns_lshl_b32 s0, s20, 11\ns_add_u32 s0, s0, {W_F1}\ns_mov_b64 exec, 0x0707\nbuffer_load_dword v56, v47, s[44:47], s0 offen sc1\ns_mov_b64 exec, -1")
        else:
            self.poll(P, 55, first_issued=True, sleep=self.zret)
            self.lds_set(12, SY_H2, 16)
    def l_fft(self):
        A = self.A; F1, TC, TS, F2 = self.F1, self.TC, self.TS, self.F2
        Z = 172; D1 = 204; P = 172; D3 = 236
        A(f"""s_mov_b32 s17, s21
        s_lshr_b32 s18, s17, 2
        s_lshl_b32 s18, s18, 2             ; 4*rb
        s_and_b32 s5, s17, 1
        s_lshl_b32 s5, s5, 1               ; 2*(cbl&1)
        s_add_u32 s18, s18, s5
        s_add_u32 s18, s18, s23
        s_add_u32 s17, s18, 256
        s_cmp_eq_u32 s2, 24
        s_movk_i32 s18, 320
        s_cselect_b32 s18, s18, -1
        s_cmp_eq_u32 s34, 1
        s_cselect_b32 s17, s17, s18
        s_cmp_lt_u32 s16, 2
        s_cselect_b32 s4, s2, s17
        s_cmp_eq_u32 s16, 1
        s_cbranch_scc0 L_l_nhp""")
        self.gate(None)
        A(f"v_lshlrev_b32 v14, 7, v0\ns_lshl_b32 s17, s20, 11\ns_add_u32 s17, s17, {W_F1}")
        self.poll([(16, 1, 14, "s17", "s_mov_b64 exec, 0x3838")], 55, sleep=self.zret)
        self.lds_set(12, SY_H, 16)
        A(f"""L_l_nhp:
        s_cmp_gt_u32 s4, 320
        s_cbranch_scc1 L_l_nofft
        s_bitcmp1_b32 s4, 0
        s_cselect_b32 s17, 128, 0
        s_add_u32 s17, s17, {W_F1 + 6*128}
        v_and_b32 v14, 15, v0
        v_lshlrev_b32 v14, 11, v14
        v_bfe_u32 v15, v0, 4, 1
        v_lshl_add_u32 v14, v15, 10, v14
        v_mov_b32 v15, v12
        s_cmp_eq_u32 s16, 0
        s_cbranch_scc0 L_l_zspin""")
        self.gate(SY_H)
        self.poll([(16, 1, 14, "s17", "s_mov_b32 exec_hi, 0")], 55, sleep=self.zret)
        self.lds_set(12, SY_ZOK, 16)
        A("s_branch L_l_zok\nL_l_zspin:")
        self.lds_spin(12, SY_ZOK, 1, 16)
        A.label("L_l_zok")
        A("s_and_b32 s18, s16, 2\ns_lshl_b32 s18, s18, 1\nv_add_u32 v15, s18, v12")
        self.stamp("L", "Zok")
        A("s_setprio 3")
        A(f"""v_bfe_u32 v16, v0, 2, 2
        v_lshlrev_b32 v16, 8, v16
        v_lshrrev_b32 v17, 4, v0
        v_lshl_add_u32 v16, v17, 6, v16
        v_and_b32 v18, 3, v0
        v_lshl_add_u32 v16, v18, 4, v16     ; z voffset
        s_lshl_b32 s5, s4, 12
        s_add_u32 s5, s5, {W_Z}
        s_add_u32 s6, s5, {PZ}
        s_cmp_eq_u32 s4, 320
        s_cselect_b32 s6, 0x40000000, s6""")
        for a4 in range(4):
            A(f"buffer_load_dwordx4 {vr(Z+4*a4,4)}, v16, s[44:47], s5 offen offset:{1024*a4} sc1")
            A(f"buffer_load_dwordx4 {vr(Z+16+4*a4,4)}, v16, s[44:47], s6 offen offset:{1024*a4} sc1")
        A("s_lshl_b32 s9, s34, 2\ns_or_b32 s9, s9, s16\ns_cmp_eq_u32 s9, 7\ns_cbranch_scc0 L_l_nzi")
        self.h2poll(True)
        A(f"""L_l_nzi:
        v_and_b32 v18, 15, v0
        v_lshlrev_b32 v18, 4, v18
        v_lshl_add_u32 v18, v17, 9, v18
        s_lshl_b32 s5, s4, 13
        s_and_b32 s17, s16, 1
        s_lshl_b32 s18, s17, 11
        s_add_u32 s5, s5, s18
        s_add_u32 s5, s5, {W_Y}
        s_add_u32 s6, s5, 4096
        """)
        mf = "v_mfma_f32_16x16x32_bf16"
        for a4 in range(4):
            zr, zi = vr(Z+4*a4,4), vr(Z+16+4*a4,4); re, im = vr(D1+4*a4,4), vr(D1+16+4*a4,4)
            if a4 == 0:
                A(f"""s_waitcnt vmcnt(6)
                s_lshl_b32 s17, s34, 1
                s_or_b32 s17, s17, s16
                s_cmp_lt_u32 s17, 2
                s_cbranch_scc1 L_l_nw2f
                s_xor_b32 s17, s16, 2
                s_lshl_b32 s17, s17, 2
                v_add_u32 v16, s17, v12
                ds_write_b32 v16, v12 offset:{SY_W2}
                s_cmp_eq_u32 s34, 1
                s_cbranch_scc1 L_l_nw2f
                ds_write_b32 v16, v12 offset:{SY_W2 + 8}
                L_l_nw2f:""")
                self.stamp("L", "zland")
            A(f"""s_waitcnt vmcnt({6-2*a4})
            {mf} {re}, {zr}, {vr(F1,4)}, 0
            {mf} {im}, {zi}, {vr(F1,4)}, 0
            {mf} {re}, {zi}, {vr(F1+4,4)}, {re}
            {mf} {im}, {zr}, {vr(F1+8,4)}, {im}""")
        A("s_nop 1")
        for a4 in range(4):
            if a4 == 3: A("s_nop 0")
            for i in range(4):
                r = D1+4*a4+i; m = r+16; c = TC+4*a4+i; s = TS+4*a4+i
                A(f"""v_mul_f32 v{32+i}, v{r}, v{c}
                v_mul_f32 v{36+i}, v{m}, v{c}
                v_fmac_f32 v{32+i}, v{m}, v{s}
                v_fma_f32 v{36+i}, -v{r}, v{s}, v{36+i}""")
            pr = P + 4*(a4 >> 1) + 2*(a4 & 1); pi = pr + 8
            A(f"""v_cvt_pk_bf16_f32 v{pr}, v32, v33
            v_cvt_pk_bf16_f32 v{pr+1}, v34, v35
            v_cvt_pk_bf16_f32 v{pi}, v36, v37
            v_cvt_pk_bf16_f32 v{pi+1}, v38, v39""")
        A("s_nop 1")
        for k in range(4):
            for T in range(2):
                for jh in range(2):
                    d = vr(D3 + 8*T + 4*jh, 4)
                    f = F2 + 32*jh + 16*(k >> 1) + 8*T + 4*(k & 1)
                    A(f"{mf} {d}, {vr(P+4*k,4)}, {vr(f,4)}, {'0' if k == 0 else d}")
        for i in range(4): A(f"s_mov_b32 s{60+i}, {0x07060500 + i:#x}")
        A("s_nop 1")
        for T in range(2):
            for jh in range(2):
                d = D3+8*T+4*jh
                for i in range(4): A(f"v_perm_b32 v{d+i}, v{d+i}, v55, s{60+i}")
                A(f"buffer_store_dwordx4 {vr(d,4)}, v18, s[44:47], {'s5' if T == 0 else 's6'} offen offset:{256*jh} sc1")
        A("s_cmp_eq_u32 s9, 7\ns_cbranch_scc0 L_l_nofft")
        self.h2poll(False)
        A.label("L_l_nofft")
        self.stamp("L", "fftdone")
    def l_y(self):
        A = self.A
        A(f"s_setprio {self.yprio}")
        A(f"""v_and_b32 v16, 15, v0               ; jl
        v_lshrrev_b32 v17, 4, v0                  ; e sub
        s_mul_i32 s17, s16, 20
        v_mul_u32_u24 v18, {PROW}, v16
        v_lshl_add_u32 v18, v17, 2, v18
        v_add_u32 v18, {L_P}, v18
        v_bfe_u32 v19, v16, 1, 2
        s_mul_i32 s18, s16, 5""")
        for n in range(5): A(f"s_add_u32 s27, s18, {n}\nv_xor_b32 v{28+n}, s27, v19\nv_lshl_add_u32 v{28+n}, v{28+n}, 4, v18")
        A(f"""s_mul_i32 s4, s15, 80
        s_add_u32 s4, s4, s17
        s_cmp_ge_u32 s15, 4
        s_cbranch_scc1 L_l_mir
        v_lshlrev_b32 v24, 13, v17
        v_lshl_add_u32 v24, v16, 4, v24
        s_lshl_b32 s5, s4, 13
        s_lshl_b32 s17, s20, 9
        s_lshl_b32 s18, s31, 8
        s_add_u32 s17, s17, s18
        s_add_u32 s5, s5, s17
        s_add_u32 s5, s5, {W_Y}
        s_mov_b32 s6, 32768
        s_branch L_l_mird
        L_l_mir:
        v_sub_u32 v26, 3, v17
        v_lshlrev_b32 v26, 13, v26                ; (3 - esub)*8192
        v_sub_u32 v24, 15, v16
        v_lshl_add_u32 v24, v24, 4, v26
        s_cmp_eq_u32 s20, 0
        s_cselect_b32 s17, 32, 31
        s_lshl_b32 s18, s31, 4
        s_sub_u32 s17, s17, s18
        v_sub_u32 v25, s17, v16
        v_and_b32 v25, 31, v25
        v_lshl_add_u32 v25, v25, 4, v26
        s_sub_u32 s17, 637, s4
        s_lshl_b32 s5, s17, 13
        s_add_u32 s5, s5, {W_Y}
        s_sub_u32 s17, 16, s20
        s_and_b32 s17, s17, 15
        s_lshl_b32 s17, s17, 9
        s_add_u32 s8, s5, s17
        s_sub_u32 s17, 15, s20
        s_lshl_b32 s17, s17, 9
        s_sub_u32 s18, 1, s31
        s_lshl_b32 s18, s18, 8
        s_add_u32 s17, s17, s18
        s_add_u32 s5, s5, s17
        s_mov_b32 s6, -32768
        L_l_mird:""")
        self.lds_spin(12, SY_P, 4, 16)
        for n in range(5):
            for i in range(4): A(f"ds_read_b32 v{172+4*n+i}, v{28+n} offset:{16*PROW*i}")
        self.lds_spin(12, SY_G, 1, 16)
        def chk(b, first):
            A(f"v_perm_b32 v20, v{b+1}, v{b}, s60\nv_perm_b32 v21, v{b+3}, v{b+2}, s61")
            A("v_bitop3_b32 v22, v20, v21, v55 bitop3:0x56" if first else "v_bitop3_b32 v20, v20, v21, v55 bitop3:0x56\nv_or_b32 v22, v22, v20")
        A("s_mov_b32 s60, 0x0c0c0400\ns_mov_b32 s61, 0x04000c0c\ns_mov_b32 s19, 0\nL_l_yl:\ns_mov_b32 s62, s5\ns_mov_b32 s63, s8")
        self.stamp("L", "Yok")
        for n in range(5):
            A(f"buffer_load_dwordx4 {vr(192+4*n,4)}, v24, s[44:47], s62 offen sc1\ns_add_u32 s62, s62, s6")
        A("s_cmp_ge_u32 s15, 4\ns_cbranch_scc1 L_l_ex")
        for n in range(5): A(f"s_waitcnt vmcnt({4-n})"); chk(192+4*n, n == 0)
        A("s_branch L_l_yc\nL_l_ex:")
        for n in range(5):
            A(f"buffer_load_dwordx4 {vr(212+4*n,4)}, v25, s[44:47], s63 offen sc1\ns_add_u32 s63, s63, s6")
        for n in range(5): A(f"s_waitcnt vmcnt({9-n})"); chk(192+4*n, n == 0)
        for n in range(5):
            A(f"s_waitcnt vmcnt({4-n})"); chk(212+4*n, False)
            A(f"v_mov_b32 v{192+4*n}, v{212+4*n}\nv_swap_b32 v{193+4*n}, v{195+4*n}")
        A(f"""L_l_yc:
        v_cmp_ne_u32 vcc, 0, v22
        {self.spin_guard("L_l_yd") or "s_nop 1"}
        s_cbranch_vccz L_l_yd
        s_sleep {self.yret}
        s_branch L_l_yl
        L_l_yd:""")
        A("s_waitcnt vmcnt(0) lgkmcnt(0)")
        for n in range(5):
            for i in range(4): A(f"v_add_f32 v{172+4*n+i}, v{172+4*n+i}, v{192+4*n+i}\nds_write_b32 v{28+n}, v{172+4*n+i} offset:{16*PROW*i}")
        A("s_waitcnt lgkmcnt(0)")
        self.stamp("L", "ydone")
        A("s_barrier")
        A("""s_or_b32 s17, s2, s16
        s_cmp_eq_u32 s17, 0
        s_cbranch_scc0 L_l_noep
        v_mov_b32 v8, 0
        s_mov_b64 exec, 1
        buffer_store_dword v55, v8, s[44:47], 0 offen sc1
        s_mov_b64 exec, -1
        L_l_noep:""")

    def build(self):
        A = self.A
        self.prologue()
        self.l_setup()
        A("s_cmp_eq_u32 s34, 1\ns_cbranch_scc1 L_l_D")
        nl = self.nstamp["L"]
        A("s_cmp_eq_u32 s33, 0\ns_cbranch_scc1 L_l_4")
        self.l_phase1("5"); self.l_gap(); self.l_gap1(); self.l_fft(); self.l_gap2(); self.l_y()
        self.dump_stamps("L")
        A("s_endpgm\nL_l_D:")
        self.nstamp["L"] = nl
        self.l_setup_d(); self.l_phase1("D")
        A("L_l_4:")
        self.nstamp["L"] = nl
        self.l_phase1("4")
        self.g_phase0()
        A("s_cmp_eq_u32 s34, 1\ns_cbranch_scc1 L_gD\ns_cmp_eq_u32 s33, 0\ns_cbranch_scc1 L_g4")
        n0 = self.nstamp["G"]
        self.g_main("5", 5, False); self.g_epi_h(5); A("s_branch L_g_issued")
        self.nstamp["G"] = n0
        self.g_main_d(); self.g_epi_z(); A("s_branch L_g_issued")
        self.nstamp["G"] = n0
        self.g_main("4", 4, False); self.g_epi_h(4)
        self.g_phase2()
        self.dump_stamps("G")
        A.label("L_end")
        hdr = open("cdna_kernels/" + KNAME[:-7] + ".s.ref").read().split("; Override")[0]
        s = hdr + f"; @launch grid=(256,1,1) block=(512,1,1) lds={LDS_BYTES}\n" + '.amdgcn_target "amdgcn-amd-amdhsa--gfx950"\n'
        return s + kernel(KNAME, A.text(), vgpr=256, accum=256).replace("s_endpgm\n.section .rodata", "s_endpgm\n.fill 512, 4, 0xbf810000\n.section .rodata")

if __name__ == "__main__":
    for m in ("", "lb", "st"):
        g = Gen(mode=m); open(f"megaO{m}.s", "w").write(g.build()); print(g.names)
    open("megaO_rel.s", "w").write(Gen(dbg=False).build())
    for k, v in {"a": dict(ystep=10), "b": dict(nbd=3), "c": dict(nbd=5), "d": dict(nbd=3, ystep=10), "e": dict(nbd=4, nbc=2)}.items():
        open(f"megaO_{k}.s", "w").write(Gen(**v).build())
```

```python
import sys, struct
from alib import *

KNAME = "parallel_sum__spectral_fnet__dense_activation_squared_relu__prompt_kernel"
SLOT = 36864; NS = 4; DS = 28672
LDS_BYTES = 163840
L_STG = 4*SLOT
L_STG3 = 3*SLOT
M = 155648
L_CORR = M; L_STAT = M + 5120; L_SYNC = M + 7168
L_CST = 3*SLOT + 4096
SY_ACK, SY_ZW, SY_ZF, SY_FW, SY_P, SY_H, SY_ZI, SY_W2, SY_ZOK, SY_FD = 0, 4, 8, 12, 16, 20, 24, 32, 48, 56
SY_G = 28; SY_FL = 64; SY_WI = 68; SY_H2 = 72
SY_ST = 256
ZROW = 272; ZB = 3*DS
LW = [0, 35840, 73728, 104448]; L_P = 135168; PROW = 320
KS0 = [24, 32, 40, 47]; NREG = 7
FTM = lambda f: f + 24 if f < 20 else f - 20 if f < 32 else f + 12 if f < 42 else f - 30
W_F0, W_F1, W_FY = 0x40000, 0x48000, 0x50000
W_STAT = 0x10000; W_DBG = 0x20000
W_W2F = 0x100000; W_H = 0x400000; W_Z = 0xB00000; PZ = 0x150000; W_Y = 0xE00000
WS_SIZE = 0x1200000
HC = 54*2048
tA = [[0,192,320,640,768,896,0,192],[512,1024,1216,1344,1472,1600,0,192]]
tB = [[128,160,448,0,0,0,128,160],[480,1152,1184,0,0,0,128,160]]
SCHED = [[0,3,1,2,4,7,5,6,8,9],[0,1,4,2,3,5,8,6,7,9],[1,0,2,5,3,4,6,9,7,8],[2,0,1,3,6,4,5,7,8,9]]
XSH = (0,2,5,7,1)
def fl(x): return "0x%08x" % struct.unpack("<I", struct.pack("<f", x))[0]

class Gen:
    def __init__(self, dbg=True, spin=200000, mode='', lprio=0, noslice=False, ysleep=16, zsleep=8, zret=8, zbound=0, dfirst=1, wprio=0, wgate=3, npw=5, h2at=3, rtail=4, yret=6, yprio=3, map2=0, nbd=4, nbc=0, bgate=0, spf=0, nb0=0, voff=1, skew=0, roles=None, hsleep=10, nb=0, dpf=0, zsleep4=12, zsleepd=0, ystep=11, ngate=4, touch=False, sched=None, xsh=None, gbit=10, rmul=0, npre=0, la=3, pfi=()):
        self.A = Asm(); self.dbg = dbg; self.SPIN = spin; self.mode = mode; self.lprio = lprio; self.noslice = noslice; self.la = la; self.rtail = rtail; self.yprio = yprio; self.yret = yret; self.h2at = h2at; self.bgate = bgate; self.nbc = nbc; self.nbd = nbd; self.map2 = map2; self.npw = npw; self.spf = spf; self.wgate = wgate; self.nb0 = nb0; self.voff = voff; self.skew = skew
        roles = roles or [(0,0,0),(0,1,0),(0,2,0),(0,3,0),(1,0,0),(1,1,0),(1,2,0),(1,3,0)]
        self.rolemap = sum(((g << 3) | (jh << 2) | e) << (4*i) for i, (jh, e, g) in enumerate(roles)); self.hsleep = hsleep; self.nb = nb; self.dpf = dpf; self.wprio = wprio; self.dfirst = dfirst; self.zsleep4 = zsleep4; self.zsleepd = zsleepd; self.ystep = ystep; self.zbound = zbound; self.ngate = ngate; self.sched = sched or SCHED; self.xsh = xsh or XSH; self.touch = touch; self.zret = zret; self.pfi = pfi; self.gbit = gbit; self.rmul = rmul; self.npre = npre; self.ysleep = ysleep; self.zsleep = zsleep
        self.nstamp = {"G": 0, "L": 0}; self.names = {}; self.uid = 0
    def lab(self, p):
        self.uid += 1; return f"L_{p}{self.uid}"
    @staticmethod
    def sreg(i): return 86+2*i if i < 8 else [60, 62, 14][i-8]
    def stamp(self, role, name=''):
        if not self.dbg: return
        sel = {"": {"G": ["start","B0","B10","issued","acked","Hok","p2done","end"], "L": ["B9","w2iss","Zok","fftdone","w2land","Yok","ydone"]},
               "lb": {"G": ["start","B0","B10","issued","acked","w2iss","Hok"], "L": ["B1","B3","B5","B6","B7","B9"]},
               "l2": {"G": ["start","B0","B10","issued","acked","w2iss","Hok","B15"], "L": ["B5","W6","B6","W7","B7","W8","B8"]},
               "l1": {"G": ["start","B0","B10","issued","acked","w2iss","Hok","B15"], "L": ["B0","W1","B1","W2","B2","W3","B3"]},
               "fl": {"G": ["start","B10","issued","acked","flagack","w2iss","Hok","B15"], "L": ["B9","zpoll","Zok","zland","fftst","fftdone"]},
               "nv": {"G": ["start","B10","issued","acked","w2iss","Hok","p2done"], "L": ["Zok","fftdone","w2iss","w2land","Yok","ydone"]},
               "p2": {"G": ["start","Hok","S0","S1","S4","S7","S10","p2done"], "L": ["Zok","fftdone","w2iss","w2land","Yok","ydone"]},
               "ck": {"G": ["start","B0","B10","issued","acked","Hok","p2done","end"], "L": []},
               "st": {"G": ["start","B10","zw","issued","acked","w2iss","Hok","B15"], "L": ["pre-issue","B9","zland","fftst","w2iss"]}}[self.mode]
        if name not in sel[role]: return
        i = self.nstamp[role]; self.nstamp[role] += 1
        assert i < 8, name
        self.names.setdefault(role, {})[i] = name
        r = self.sreg(i); self.A(f"s_memtime s[{r}:{r+1}]" if not (self.mode == "ck" and role == "G") else f"s_memrealtime s[{r}:{r+1}]")
    def dump_stamps(self, role):
        if not self.dbg: return
        A = self.A
        A(f"""s_waitcnt lgkmcnt(0)
        s_lshl_b32 s17, s2, 3
        s_add_u32 s17, s17, s3
        s_lshl_b32 s17, s17, 6
        s_add_u32 s17, s17, {W_DBG}
        v_mov_b32 v1, s17""")
        for i in range(self.nstamp[role]):
            A(f"v_mov_b32 v2, s{self.sreg(i)}\nbuffer_store_dword v2, v1, s[44:47], 0 offen offset:{4*i}")
        A("s_memrealtime s[72:73]\ns_waitcnt lgkmcnt(0)\nv_mov_b32 v2, s70\nbuffer_store_dword v2, v1, s[44:47], 0 offen offset:32\nv_mov_b32 v2, s72\nbuffer_store_dword v2, v1, s[44:47], 0 offen offset:36\ns_getreg_b32 s72, hwreg(HW_REG_XCC_ID)\nv_mov_b32 v2, s72\nbuffer_store_dword v2, v1, s[44:47], 0 offen offset:40\ns_getreg_b32 s72, hwreg(HW_REG_HW_ID)\nv_mov_b32 v2, s72\nbuffer_store_dword v2, v1, s[44:47], 0 offen offset:44")
        A("s_waitcnt vmcnt(0)")
    def spin_guard(self, done):
        if self.SPIN: return f"s_add_u32 s19, s19, 1\ns_cmp_gt_u32 s19, {self.SPIN}\ns_cbranch_scc1 {done}"
        return ""
    def lds_spin(self, vaddr, off, val, vt, bound=None):
        l = self.lab("sp"); d = l + "d"
        self.A(f"""s_mov_b32 s19, 0
        {l}:
        ds_read_b32 v{vt}, v{vaddr} offset:{off}
        s_waitcnt lgkmcnt(0)
        v_readfirstlane_b32 s27, v{vt}
        {self.spin_guard(d) if bound is None else f"s_add_u32 s19, s19, 1; s_cmp_gt_u32 s19, {bound}; s_cbranch_scc1 {d}".replace("; ", chr(10))}
        s_cmp_ge_u32 s27, {val}
        s_cbranch_scc1 {d}
        s_sleep 1
        s_branch {l}
        {d}:""")
    def lw(self, sd, sk):
        self.A(f"s_mul_i32 s{sd}, s{sk}, 35840\ns_cmp_ge_u32 s{sk}, 2\ns_cselect_b32 s27, 2048, 0\ns_add_u32 s{sd}, s{sd}, s27\ns_cmp_eq_u32 s{sk}, 3\ns_cselect_b32 s{sd}, {LW[3]}, s{sd}")
    def lds_set(self, vaddr, off, vt):
        self.A(f"v_mov_b32 v{vt}, 1\nds_write_b32 v{vaddr}, v{vt} offset:{off}")
    def lds_inc(self, vaddr, off, vt):
        self.A(f"""v_mov_b32 v{vt}, 1
        s_mov_b64 exec, 1
        ds_add_u32 v{vaddr}, v{vt} offset:{off}
        s_mov_b64 exec, -1""")
    def poll(self, loads, vtag, first_issued=False, sleep=4):
        A = self.A; l = self.lab("po"); d = l + "d"; c = l + "c"
        A("s_mov_b32 s19, 0")
        if first_issued: A(f"s_branch {c}")
        A(f"{l}:")
        for (dst, n, va, so, ex) in loads:
            if ex: A(ex)
            A(f"buffer_load_dword{'x%d' % n if n > 1 else ''} {vr(dst, n)}, v{va}, s[44:47], {so} offen sc1")
            if ex and len(loads) > 1: A("s_mov_b64 exec, -1")
        A(f"s_waitcnt vmcnt(0)\n{c}:")
        for k, (dst, n, va, so, ex) in enumerate(loads):
            if ex: A(ex)
            if n == 1: A(f"v_cmp_ne_u32 vcc, v{vtag}, v{dst}")
            else:
                for i in range(n): A(f"v_xor_b32 v{dst+i}, v{vtag}, v{dst+i}")
                A(f"v_or3_b32 v{dst}, v{dst}, v{dst+1}, v{dst+2}\nv_or_b32 v{dst}, v{dst}, v{dst+3}\nv_cmp_ne_u32 vcc, 0, v{dst}")
            A("s_mov_b64 exec, -1")
            if len(loads) > 1:
                A("s_nop 0\ns_mov_b64 s[64:65], vcc" if k == 0 else "s_nop 0\ns_or_b64 vcc, vcc, s[64:65]")
        A(self.spin_guard(d) or "s_nop 1")
        A(f"s_cbranch_vccz {d}\ns_sleep {sleep}\ns_branch {l}\n{d}:")

    def spoll(self, base, loads, words, soff, first_issued=False, sleep=2, issue_only=False):
        A = self.A
        ld = "\n".join(f"s_load_dwordx{n} s[{d}:{d+n-1}], s[12:13], {soff} offset:{base+imm} glc" for d, n, imm in loads)
        if issue_only: A(ld); return
        l = self.lab("sq"); d_ = l + "d"; c = l + "c"
        A("s_mov_b32 s19, 0")
        if first_issued: A(f"s_branch {c}")
        A(f"{l}:\n{ld}\n{c}:\ns_waitcnt lgkmcnt(0)")
        w = list(words); f = w[0]
        A(f"s_xor_b32 s27, s{f}, s14")
        for x in w[1:]: A(f"s_xor_b32 s{x}, s{x}, s14\ns_or_b32 s27, s27, s{x}")
        A(self.spin_guard(d_))
        A(f"s_cmp_eq_u32 s27, 0\ns_cbranch_scc1 {d_}\ns_sleep {sleep}\ns_branch {l}\n{d_}:")

    def prologue(self):
        A = self.A
        A("s_cmp_ge_u32 s2, 256\ns_cbranch_scc1 L_end")
        self.stamp("G", "start"); self.nstamp["L"] = self.nstamp["G"]
        if self.dbg: A("s_memrealtime s[70:71]")
        A("""
        s_getpc_b64 s[18:19]
        L_pf:
        s_load_dwordx2 s[4:5], s[0:1], 0
        s_load_dwordx4 s[8:11], s[0:1], 24
        s_load_dwordx2 s[6:7], s[0:1], 48
        s_load_dwordx2 s[12:13], s[0:1], 96
        s_lshr_b32 s21, s2, 3         ; slot
        v_lshlrev_b32 v2, 4, v0
        s_lshl_b32 s17, s21, 10
        v_cmp_gt_u32 vcc, 128, v0
        s_lshl_b32 s17, s17, 1
        s_add_u32 s18, s18, s17
        s_addc_u32 s19, s19, 0
        s_cbranch_vccz L_nopf
        s_cmp_ge_u32 s17, L_end - L_pf
        s_cbranch_scc1 L_nopf
        global_load_dwordx4 v[252:255], v2, s[18:19]
        L_nopf:
        s_load_dwordx2 s[62:63], s[0:1], 56
        s_load_dwordx4 s[80:83], s[0:1], 64
        s_load_dwordx2 s[84:85], s[0:1], 80
        v_lshrrev_b32 v1, 6, v0
        v_and_b32 v0, 63, v0
        s_and_b32 s20, s2, 7          ; xcd
        v_readfirstlane_b32 s3, v1    ; wave 0..7
        s_lshr_b32 s22, s20, 1        ; xr
        s_and_b32 s23, s20, 1         ; xc
        s_lshr_b32 s24, s21, 3        ; rbl
        s_and_b32 s25, s21, 7         ; cbl
        s_lshl_b32 s26, s22, 2
        s_add_u32 s26, s26, s24       ; rb
        s_and_b32 s16, s3, 3          ; wave & 3
        """)
        def pack(t):
            v = 0
            for i, x in enumerate(t): v |= (x//32) << (8*i)
            return v & 0xffffffff, v >> 32
        a0, a1 = pack(tA[0]), pack(tA[1]); b0, b1 = pack(tB[0]), pack(tB[1])
        A(f"""
        s_mov_b32 s28, {a1[0]:#x}
        s_mov_b32 s29, {a1[1]:#x}
        s_mov_b32 s30, {b1[0]:#x}
        s_mov_b32 s31, {b1[1]:#x}
        s_cmp_eq_u32 s23, 0
        s_cselect_b32 s28, {a0[0]:#x}, s28
        s_cselect_b32 s29, {a0[1]:#x}, s29
        s_cselect_b32 s30, {b0[0]:#x}, s30
        s_cselect_b32 s31, {b0[1]:#x}, s31
        s_lshl_b32 s27, s25, 3
        s_lshr_b64 s[28:29], s[28:29], s27
        s_lshr_b64 s[30:31], s[30:31], s27
        s_and_b32 s28, s28, 0xff      ; colA/32
        s_and_b32 s30, s30, 0xff      ; colB/32
        s_lshl_b32 s29, s23, 3
        s_add_u32 s29, s29, s25       ; cb
        s_cmp_ge_u32 s25, 6
        s_cselect_b32 s34, 1, 0       ; isDFT
        s_movk_i32 s35, 3456
        s_cselect_b32 s35, 1280, s35  ; ld
        s_cmp_lt_u32 s25, 3
        s_cselect_b32 s33, 1, s34     ; T5
        ROLE
        s_lshl_b32 s27, s26, 1
        s_add_u32 s27, s27, s23       ; rb*2+xc
        s_mul_i32 s21, s27, 3
        s_add_u32 s21, s21, s25
        s_add_u32 s21, s21, 61
        s_cmp_lt_u32 s25, 3
        s_cselect_b32 s64, 99, 0
        s_add_u32 s21, s21, s64
        s_lshl_b32 s27, s27, 1
        s_add_u32 s27, s27, s25
        s_sub_u32 s27, s27, 6
        s_cmp_eq_u32 s34, 1
        s_cselect_b32 s21, s27, s21   ; p'
        s_cmp_lt_u32 s3, 4
        s_cbranch_scc1 L_gstart
        """.replace("ROLE", """s_mov_b32 s15, s25            ; eb
        s_and_b32 s31, s24, 1         ; jh
        s_lshr_b32 s20, s24, 1
        s_lshl_b32 s27, s23, 1
        s_add_u32 s20, s20, s27
        s_lshl_b32 s27, s22, 2
        s_add_u32 s20, s20, s27       ; rb2""" if self.map2 else """s_and_b32 s15, s21, 3
        s_lshl_b32 s27, s23, 2
        s_add_u32 s15, s15, s27
        s_bfe_u32 s31, s21, 0x10002
        s_mov_b32 s20, s26"""))
    def common_srds(self):
        A = self.A
        A("s_waitcnt lgkmcnt(0)")
        srd(A, 36, 4, 2048*1280)
        srd(A, 44, 12, WS_SIZE)
        A("s_load_dword s14, s[12:13], 0")
    def get_tag(self):
        self.A("s_waitcnt lgkmcnt(0)\ns_mul_i32 s14, s14, 0x9E3779B1\ns_add_u32 s14, s14, 0x85EBCA6B")
    def w2_task_addr(self, st, so, sd, vo):
        self.A(f"""
        v_lshrrev_b32 v{vo}, 3, v0
        v_mul_u32_u24 v{vo}, 1280, v{vo}
        v_and_b32 v{vo+1}, 7, v0
        v_lshl_add_u32 v{vo}, v{vo+1}, 4, v{vo}
        s_mul_i32 s17, s{st}, 6554
        s_lshr_b32 s17, s17, 16        ; ks
        s_mul_i32 s18, s17, 10
        s_sub_u32 s18, s{st}, s18      ; cl
        s_mul_i32 s{so}, s17, 40960
        s_cmp_lt_u32 s17, 42
        s_cselect_b32 s27, 12, -30
        s_cmp_lt_u32 s17, 32
        s_cselect_b32 s27, -20, s27
        s_cmp_lt_u32 s17, 20
        s_cselect_b32 s27, 24, s27
        s_add_u32 s17, s17, s27
        s_mul_i32 s{sd}, s17, 40960
        s_lshl_b32 s17, s18, 12
        s_add_u32 s{sd}, s{sd}, s17
        s_add_u32 s{sd}, s{sd}, {W_W2F}
        s_lshl_b32 s17, s18, 7
        s_add_u32 s{so}, s{so}, s17""")
    def w2_task_dma(self, so, sstg, vo, srd_):
        for n in range(4):
            self.A(f"s_add_u32 m0, s{sstg}, {1024*n}\n" + ("s_nop 0" if n == 0 else f"s_add_u32 s{so}, s{so}, 10240") + f"\nbuffer_load_dwordx4 v{vo}, s[{srd_}:{srd_+3}], s{so} offen lds")
    def w2_task_fin(self, sd, sstg, t, d, wait=None):
        A = self.A
        A(f"""v_lshrrev_b32 v{t}, 2, v0
        v_lshlrev_b32 v{t}, 7, v{t}
        v_and_b32 v{t+1}, 3, v0
        v_lshl_add_u32 v{t}, v{t+1}, 3, v{t}
        v_add_u32 v{t}, s{sstg}, v{t}
        v_lshlrev_b32 v{t+1}, 4, v0""")
        if wait: A(wait)
        for nl in range(4):
            for k in range(2): A(f"ds_read_b64_tr_b16 {vr(d+4*nl+2*k,2)}, v{t} offset:{2048*k + 32*nl}")
        for nl in range(4):
            A(f"s_waitcnt lgkmcnt({6-2*nl})\nbuffer_store_dwordx4 {vr(d+4*nl,4)}, v{t+1}, s[44:47], s{sd} offen offset:{1024*nl} sc1")

    def g_phase0(self):
        A = self.A
        A.label("L_gstart")
        A(f"""
        v_and_b32 v11, 31, v0          ; l'
        v_lshrrev_b32 v12, 5, v0       ; hh
        s_mov_b32 s17, 81920
        v_mul_lo_u32 v13, v12, s17
        v_lshl_add_u32 v13, v11, 4, v13
        s_and_b32 s17, s29, 3
        s_lshl_b32 s17, s17, 2
        s_add_u32 s17, s17, s16
        s_lshl_b32 s48, s17, 1         ; j0 = 8(cb&3)+2g
        s_lshr_b32 s49, s29, 2         ; cb>>2
        s_lshl_b32 s50, s26, 2
        s_add_u32 s50, s50, s49        ; c
        s_lshl_b32 s17, s48, 6
        s_add_u32 s17, s17, s50
        s_mul_i32 s51, s17, 1280
        """)
        self.common_srds()
        A("""
        buffer_load_dwordx4 v[20:23], v13, s[36:39], s51 offen
        buffer_load_dwordx4 v[24:27], v13, s[36:39], s51 offen offset:512
        s_mov_b32 exec_lo, 0xffff
        s_mov_b32 exec_hi, 0xffff
        buffer_load_dwordx4 v[28:31], v13, s[36:39], s51 offen offset:1024
        s_mov_b64 exec, -1
        """)
        self.g_addr_setup()
        self.g_consts()
        for i in range(80): A(f"v_mov_b32 v{self.ACC+i}, 0")
        self.get_tag()
        A("s_waitcnt vmcnt(0)")
        lo16 = "s_mov_b32 exec_lo, 0xffff\ns_mov_b32 exec_hi, 0xffff"
        for d in range(8): A(f"v_lshlrev_b32 v{32+2*d}, 16, v{20+d}\nv_and_b32 v{33+2*d}, 0xffff0000, v{20+d}")
        A("v_add_f32 v56, v32, v34\nv_add_f32 v57, v33, v35")
        for d in range(2, 8): A(f"v_add_f32 v56, v56, v{32+2*d}\nv_add_f32 v57, v57, v{33+2*d}")
        A(lo16)
        for d in range(8, 12): A(f"v_lshlrev_b32 v{32+2*d}, 16, v{20+d}\nv_and_b32 v{33+2*d}, 0xffff0000, v{20+d}\nv_add_f32 v56, v56, v{32+2*d}\nv_add_f32 v57, v57, v{33+2*d}")
        A("s_mov_b64 exec, -1")
        def allreduce(regs, t):
            for mode in ("quad_perm:[1,0,3,2]", "quad_perm:[2,3,0,1]", "row_half_mirror", "row_mirror"):
                A("s_nop 1" if len(regs) == 1 else "s_nop 0")
                for r in regs: A(f"v_add_f32_dpp v{r}, v{r}, v{r} {mode} row_mask:0xf bank_mask:0xf")
            for k, r in enumerate(regs): A(f"v_mov_b32 v{t+k}, v{r}")
            A("s_nop 1")
            for k, r in enumerate(regs): A(f"v_permlane16_swap_b32 v{r}, v{t+k}")
            A("s_nop 1")
            for k, r in enumerate(regs): A(f"v_add_f32 v{r}, v{r}, v{t+k}")
        allreduce([56, 57], 58)
        A("""v_add_f32 v58, v56, v57
        v_sub_f32 v57, v56, v57        ; alt
        v_mul_f32 v58, 0x3acccccd, v58 ; mean
        v_mov_b32 v59, 0
        v_mov_b32 v60, 0""")
        def sq(d): A(f"v_sub_f32 v{32+2*d}, v{32+2*d}, v58\nv_sub_f32 v{33+2*d}, v{33+2*d}, v58\nv_fmac_f32 v59, v{32+2*d}, v{32+2*d}\nv_fmac_f32 v60, v{33+2*d}, v{33+2*d}")
        for d in range(8): sq(d)
        A(lo16)
        for d in range(8, 12): sq(d)
        A("s_mov_b64 exec, -1\nv_add_f32 v59, v59, v60")
        allreduce([59], 60)
        A(f"""
        v_mul_f32 v59, 0x3acccccd, v59          ; var
        v_cvt_pk_bf16_f32 v59, v59, v59
        v_lshlrev_b32 v59, 16, v59
        v_add_f32 v59, 0x3727c5ac, v59
        v_cvt_pk_bf16_f32 v59, v59, v59
        v_lshlrev_b32 v59, 16, v59
        v_sqrt_f32 v59, v59
        v_mov_b32 v35, s14
        v_cvt_pk_bf16_f32 v32, -v58, v59        ; (-m, sd)
        v_and_b32 v59, 0xffff0000, v32
        v_rcp_f32 v33, v59                      ; r
        s_lshl_b32 s17, s16, 1
        v_mul_f32 v34, v33, v57                 ; z320
        v_lshrrev_b32 v36, 5, v0
        v_add_u32 v36, s17, v36                 ; i = 2g + hh
        v_lshlrev_b32 v37, 4, v36
        v_add_u32 v37, {L_SYNC + SY_ST}, v37
        s_mov_b32 exec_lo, 1
        s_mov_b32 exec_hi, 1
        ds_write_b128 v37, v[32:35]
        s_mov_b64 exec, -1
        """)
        A("s_waitcnt lgkmcnt(0)")

    XA = 2; WA = 4; FR = [16, 64]; ACC = 112; CSA = 192; SEL = 204
    MF = "v_mfma_f32_16x16x32_bf16"
    def g_addr_setup(self):
        XA, WA = self.XA, self.WA; A = self.A
        A(f"""
        s_lshl_b32 s17, s16, 12
        v_and_b32 v60, 15, v0
        v_lshrrev_b32 v61, 4, v0          ; G
        v_lshrrev_b32 v62, 1, v60
        v_xor_b32 v62, v62, v61
        v_lshlrev_b32 v62, 4, v62
        v_lshl_add_u32 v62, v60, 7, v62
        v_add_u32 v{XA}, s17, v62
        v_xor_b32 v{XA+1}, 64, v{XA}
        v_bfe_u32 v60, v0, 2, 2           ; r4
        v_lshl_add_u32 v62, v61, 3, v60   ; 8G + r4
        v_and_b32 v61, 1, v61
        v_lshlrev_b32 v61, 5, v61
        v_and_b32 v63, 3, v0
        v_lshl_add_u32 v61, v63, 3, v61   ; (G&1)*32 + cq*8
        v_lshl_add_u32 v{WA+8}, v62, 6, v61
        v_add_u32 v{WA+8}, 32768, v{WA+8}
        v_xor_b32 v{WA+9}, 32, v{WA+8}
        v_lshl_add_u32 v62, v62, 8, v61
        v_lshl_add_u32 v62, v60, 6, v62
        v_add_u32 v62, 16384, v62
        """)
        for m in range(4):
            A(f"s_add_u32 s17, s16, {m}\ns_and_b32 s17, s17, 3\ns_lshl_b32 s17, s17, 6\nv_xor_b32 v{WA+2*m}, s17, v62\nv_xor_b32 v{WA+2*m+1}, 32, v{WA+2*m}")
        for i in range(4): A(f"v_mov_b32 v{self.SEL+i}, 0x3f803f80")
        for i in range(12): A(f"v_mov_b32 v{self.CSA+i}, 0")
    def reads(self, u, T, off):
        f = self.FR[u]; L = [f"ds_read_b128 {vr(f+4*jt,4)}, v{self.XA+u} offset:{off + 2048*jt}" for jt in range(2)]
        for j in range(2*T):
            for t in range(2):
                o = off + (8192*u + 1024*t if j < 8 else 2048*u + 256*t)
                L.append(f"ds_read_b64_tr_b16 {vr(f+8+4*j+2*t,2)}, v{self.WA+j} offset:{o}")
        return L
    def mfmas(self, u, T):
        f = self.FR[u]
        return [f"{self.MF} {vr(self.ACC+8*j+4*jt,4)}, {vr(f+8+4*j,4)}, {vr(f+4*jt,4)}, {vr(self.ACC+8*j+4*jt,4)}" for j in range(2*T) for jt in range(2)]
    @staticmethod
    def interleave(ms, rs):
        out = []; n = len(ms); k = 0
        for i, m in enumerate(ms):
            out.append(m)
            cnt = (len(rs) - k + (n - i) - 1) // (n - i)
            out += rs[k:k+cnt]; k += cnt
        return out
    def csm(self, u, T, wv):
        f = self.FR[u]; c = self.CSA
        L = [f"{self.MF} {vr(c+4*j,4)}, {vr(self.SEL,4)}, {vr(f+8+4*j,4)}, {vr(c+4*j,4)}" for j in range(2)]
        if T == 5 and (wv >> 1) == u:
            L.append(f"{self.MF} {vr(c+8,4)}, {vr(self.SEL,4)}, {vr(f+8+4*(8+(wv&1)),4)}, {vr(c+8,4)}")
        return L
    def g_main(self, tag, T):
        A = self.A
        A.label(f"L_g{tag}")
        copies = range(4) if T == 5 else [None]
        if T == 5:
            for wv in range(1, 4): A(f"s_cmp_eq_u32 s16, {wv}\ns_cbranch_scc1 L_g{tag}_e{wv}")
        n0 = self.nstamp["G"]
        for wv in copies:
            t = f"{tag}{wv}"
            self.nstamp["G"] = n0
            A.label(f"L_g{tag}_e{wv}")
            A(f"s_mov_b32 s18, 0\ns_mov_b32 s17, {2*SLOT}")
            A("s_barrier")
            self.stamp("G", "B0")
            A("\n".join(self.reads(0, T, 0)))
            A(".p2align 3")
            A.label(f"L_g{t}_loop")
            def step(u, off, pre=None):
                ms = self.mfmas(u, T) + self.csm(u, T, wv)
                A("s_waitcnt lgkmcnt(0)\ns_nop 0")
                if pre:
                    for p_ in pre: A(ms.pop(0)); A(p_)
                k = len(ms) - self.rtail
                A("\n".join(self.interleave(ms[:k], self.reads(u ^ 1, T, off)) + ms[k:]))
            step(0, 0)
            step(1, SLOT, ("s_add_u32 s18, s18, 1\ns_cmp_eq_u32 s18, 5", "s_barrier\ns_nop 0"))
            step(0, SLOT)
            adv = [f"v_add_u32 v{2+i}, s17, v{2+i}" for i in range(2 + 2*T)]
            step(1, 0, tuple("\n".join(adv[i:i+2]) for i in range(0, len(adv), 2)) + (f"s_cbranch_scc1 L_g{t}_tail\ns_sub_u32 s17, 0, s17\ns_nop 0\ns_barrier",))
            A(f"s_branch L_g{t}_loop")
            A.label(f"L_g{t}_tail")
            A("\n".join(self.csm(1, T, wv)))
            if wv is not None and wv < 3: A(f"s_branch L_g{tag}_fin")
        A.label(f"L_g{tag}_fin")
        c = self.CSA
        ms = self.mfmas(1, T)[T+2:]
        fill = [f"v_and_b32 v11, 15, v0\nv_lshlrev_b32 v12, 3, v11", f"s_lshl_b32 s17, s16, 10\ns_add_u32 s17, s17, {L_CORR}\nv_add_u32 v13, s17, v12",
                f"s_and_b32 s17, s16, 1\ns_lshl_b32 s17, s17, 9\ns_lshr_b32 s19, s16, 1\ns_lshl_b32 s19, s19, 2\ns_add_u32 s17, s17, s19\ns_add_u32 s17, s17, {L_CORR + 4096}\nv_add_u32 v14, s17, v12"]
        n3 = 3 if T == 5 else 2
        fill += [f"v_cvt_pk_bf16_f32 v{c+4*j+1}, v{c+4*j}, v{c+4*j}" for j in range(n3)]
        fill += [f"v_lshlrev_b32 v{c+4*j+1}, 16, v{c+4*j+1}" for j in range(n3)]
        fill += [f"v_sub_f32 v{c+4*j+2}, v{c+4*j}, v{c+4*j+1}" for j in range(n3)]
        fill += [f"v_cvt_pk_bf16_f32 v{c+4*j}, v{c+4*j+1}, v{c+4*j+2}" for j in range(n3)]
        fill += [f"s_mov_b64 exec, 0xffff\nds_write_b32 v13, v{c}\nds_write_b32 v13, v{c+4} offset:512" + (f"\nds_write_b32 v14, v{c+8}" if T == 5 else "") + "\ns_mov_b64 exec, -1"]
        A("\n".join(ms[:3] ).replace("\n", "\n", 1)) if False else None
        out = []
        for k, m_ in enumerate(ms):
            out.append(m_)
            if k < 3: out.append(fill.pop(0))
        head = out[:7]; tailm = out[7:]
        A("\n".join(head + ["s_nop 0"] + self.interleave(tailm, fill)))
        A(f"""s_lshl_b32 s17, s16, 8
        s_add_u32 s17, s17, {L_STAT}
        v_add_u32 v11, s17, v12
        v_lshlrev_b32 v12, 3, v0
        v_add_u32 v12, {L_CORR}, v12
        v_lshrrev_b32 v15, 4, v0
        v_cmp_eq_u32 vcc, 0, v15
        v_cmp_eq_u32 s[48:49], 1, v15""")
        for j in range(2*T): A(f"v_mov_b32 v{26+4*j}, 0\nv_mov_b32 v{27+4*j}, 0")
        A("s_waitcnt lgkmcnt(0)\ns_barrier")
        self.stamp("G", "B10")
        A("ds_read_b64 v[64:65], v11\nds_read_b64 v[66:67], v11 offset:128")
        for m in range(T):
            if m < 4: A(f"s_add_u32 s17, s16, {m}\ns_and_b32 s17, s17, 3\ns_lshl_b32 s17, s17, 10\nv_add_u32 v13, s17, v12\nds_read_b64 {vr(24+8*m,2)}, v13\nds_read_b64 {vr(28+8*m,2)}, v13 offset:512")
            else: A(f"ds_read_b64 {vr(24+8*m,2)}, v12 offset:4096\nds_read_b64 {vr(28+8*m,2)}, v12 offset:4608")
        A(f"s_waitcnt lgkmcnt({2*T})")
        for jt in range(2):
            A(f"""v_cndmask_b32 v{17+4*jt}, 0, v{64+2*jt}, vcc
            v_cndmask_b32 v{16+4*jt}, v{17+4*jt}, v{65+2*jt}, s[48:49]
            v_mov_b32 v{18+4*jt}, 0
            v_mov_b32 v{19+4*jt}, 0""")
        ms = self.mfmas(0, T)
        for m in range(T):
            A(f"s_waitcnt lgkmcnt({2*(T-1-m)})" + ("\ns_nop 0" if m == 0 else "")); A("\n".join(ms[4*m:4*m+4]))
    def g_main_d(self):
        A = self.A; XA = self.XA; WU = 4; XB = 6; WB = 8; ACC = self.ACC
        RAW = [192, 208]; XF = [16, 24]; WF = [32, 72]; T = 224
        A.label("L_gD")
        A(f"""s_lshl_b32 s17, s16, 12
        s_sub_u32 s17, 16384, s17""")
        for u in range(2): A(f"v_add_u32 v{WU+u}, s17, v{XA+u}\nv_add_u32 v{XB+u}, {DS}, v{XA+u}\nv_add_u32 v{WB+u}, {DS}, v{WU+u}")
        A(f"""s_bitcmp1_b32 s25, 0
        s_cselect_b32 s48, -1.0, 1.0
        s_mov_b32 s18, 0
        s_mov_b32 s49, 0xffff0000
        s_mov_b32 s50, 0
        s_mov_b32 s51, 1
        s_barrier""")
        self.stamp("G", "B0")
        raw = lambda u: [f"ds_read_b128 {vr(RAW[u]+8*jt+4*h,4)}, v{(XB if h else XA)+u} offset:{2048*jt}" for jt in range(2) for h in range(2)]
        wrd = lambda u: [f"ds_read_b128 {vr(WF[u]+4*j,4)}, v{(WU if j < 6 else WB)+u} offset:{2048*(j if j < 6 else j-6)}" for j in range(10)]
        def fold(u):
            out = []
            for jt in range(2):
                r = RAW[u] + 8*jt; x = XF[u] + 4*jt
                for h in range(2):
                    d, e = 2*h, 2*h+1; t = T + 8*h; w = t + 4
                    out += [f"v_lshlrev_b32 v{t}, 16, v{r+d}", f"v_lshlrev_b32 v{t+2}, 16, v{r+4+d}", f"v_and_b32 v{t+1}, s49, v{r+d}", f"v_and_b32 v{t+3}, s49, v{r+4+d}",
                          f"v_lshlrev_b32 v{w}, 16, v{r+e}", f"v_lshlrev_b32 v{w+2}, 16, v{r+4+e}", f"v_fmac_f32 v{t}, s48, v{t+2}", f"v_fmac_f32 v{t+1}, s48, v{t+3}",
                          f"v_and_b32 v{w+1}, s49, v{r+e}", f"v_and_b32 v{w+3}, s49, v{r+4+e}", f"v_fmac_f32 v{w}, s48, v{w+2}", f"v_fmac_f32 v{w+1}, s48, v{w+3}",
                          f"v_cvt_pk_bf16_f32 v{x+d}, v{t}, v{t+1}", f"v_cvt_pk_bf16_f32 v{x+e}, v{w}, v{w+1}"]
            return out
        mf = lambda u: [f"{self.MF} {vr(ACC+8*j+4*jt,4)}, {vr(XF[u]+4*jt,4)}, {vr(WF[u]+4*j,4)}, {vr(ACC+8*j+4*jt,4)}" for j in range(10) for jt in range(2)]
        A("\n".join(raw(0) + raw(1) + wrd(0)))
        A("s_waitcnt lgkmcnt(14)")
        A("\n".join(fold(0)))
        A("s_barrier")
        A.label("L_gD_loop")
        A("s_waitcnt lgkmcnt(0)\ns_nop 0")
        sal = f"""s_add_u32 s18, s18, 1
        s_add_u32 s50, s50, 2
        s_cmp_ge_u32 s50, 5
        s_mov_b32 s52, {2*DS}
        s_cselect_b32 s52, {-3*DS & 0xffffffff:#x}, s52
        s_cselect_b32 s17, 5, 0
        s_sub_u32 s50, s50, s17
        s_add_u32 s51, s51, 2
        s_cmp_ge_u32 s51, 5
        s_mov_b32 s53, {2*DS}
        s_cselect_b32 s53, {-3*DS & 0xffffffff:#x}, s53
        s_cselect_b32 s17, 5, 0
        s_sub_u32 s51, s51, s17"""
        A("\n".join(self.interleave(mf(0), wrd(1) + [sal] + fold(1))))
        A("s_waitcnt lgkmcnt(0)\ns_cmp_eq_u32 s18, 5\ns_cbranch_scc1 L_gD_last")
        m1 = mf(1)
        A(m1[0])
        for i in range(4): A(f"v_add_u32 v{2+i}, s52, v{2+i}\nv_add_u32 v{XB+i}, s53, v{XB+i}")
        A(m1[1])
        A("s_barrier")
        A("\n".join(self.interleave(m1[2:10], raw(0) + raw(1) + wrd(0))))
        A("s_waitcnt lgkmcnt(14)")
        A("\n".join(self.interleave(m1[10:], fold(0))))
        A("s_branch L_gD_loop")
        A.label("L_gD_last")
        A("\n".join(m1))
        A.label("L_gD_fin")
        A(f"""v_and_b32 v11, 15, v0
        s_lshl_b32 s17, s16, 8
        s_add_u32 s17, s17, {L_STAT}
        v_lshl_add_u32 v11, v11, 3, s17
        s_cmp_eq_u32 s29, 6
        s_cselect_b32 s17, 0x4420, 0""")
        for i in range(192, 204): A(f"v_mov_b32 v{i}, 0")
        A("v_writelane_b32 v200, s17, 0\ns_barrier")
        self.stamp("G", "B10")
        A(f"""ds_read_b32 v192, v11
        ds_read_b32 v196, v11 offset:128
        s_waitcnt lgkmcnt(0)
        {self.MF} {vr(ACC,4)}, v[192:195], v[200:203], {vr(ACC,4)}
        {self.MF} {vr(ACC+4,4)}, v[196:199], v[200:203], {vr(ACC+4,4)}""")
    def g_epi_h(self, T):
        A = self.A; ACC = self.ACC
        A(f"""
        v_lshlrev_b32 v11, 4, v0
        s_lshl_b32 s17, s26, 2
        s_add_u32 s17, s17, s16
        s_mul_i32 s17, s17, {HC}
        s_add_u32 s17, s17, {W_H}
        s_cmp_lt_u32 s28, 42
        s_cselect_b32 s27, 12, -30
        s_cmp_lt_u32 s28, 32
        s_cselect_b32 s27, -20, s27
        s_cmp_lt_u32 s28, 20
        s_cselect_b32 s27, 24, s27
        s_lshl_b32 s27, s27, 11
        s_add_u32 s17, s17, s27
        s_lshl_b32 s18, s30, 11
        s_add_u32 s18, s18, s17        ; tile 4
        s_lshl_b32 s19, s28, 11
        s_add_u32 s48, s17, s19        ; tile 0
        s_lshl_b32 s17, s16, 11
        s_add_u32 s17, s17, s48
        .p2align 3""")
        for m in range(T):
            o = 68 + 8*(m & 1); t = 84
            src = [ACC + 16*m + 8*(p >> 1 & 1) + 4*(p >> 2) + 2*(p & 1) for p in range(8)]
            for p in range(8):
                tp = t + 2*(p & 3)
                A(f"v_max_f32 v{tp}, 0, v{src[p]}\nv_max_f32 v{tp+1}, 0, v{src[p]+1}")
                if p >= 1:
                    q = p-1; tq = t + 2*(q & 3)
                    A(f"v_pk_mul_f32 {vr(tq,2)}, {vr(tq,2)}, {vr(src[q],2)}")
                if p >= 2:
                    q = p-2; tq = t + 2*(q & 3)
                    A(f"v_cvt_pk_bf16_f32 v{o+q}, v{tq}, v{tq+1}")
            A(f"v_pk_mul_f32 {vr(t+6,2)}, {vr(t+6,2)}, {vr(src[7],2)}")
            A(f"v_cvt_pk_bf16_f32 v{o+6}, v{t+4}, v{t+5}\nv_cvt_pk_bf16_f32 v{o+7}, v{t+6}, v{t+7}")
            so = "s18" if m == 4 else "s17"
            A(f"buffer_store_dwordx4 {vr(o,4)}, v11, s[44:47], {so} offen sc1\nbuffer_store_dwordx4 {vr(o+4,4)}, v11, s[44:47], {so} offen offset:1024 sc1")
            if m < 3: A(f"s_add_u32 s17, s16, {m+1}\ns_and_b32 s17, s17, 3\ns_lshl_b32 s17, s17, 11\ns_add_u32 s17, s17, s48")
        A(f"v_mov_b32 v10, {L_SYNC}")
        self.stamp("G", "zw")
        self.lds_inc(10, SY_ZF, 13)
    def g_epi_z(self):
        A = self.A; ACC = self.ACC
        A(f"""
        v_lshrrev_b32 v12, 4, v0
        s_lshl_b32 s17, s16, 7
        s_add_u32 s17, s17, {L_STAT + 1024}
        v_lshl_add_u32 v11, v12, 4, s17
        ds_read_b128 v[40:43], v11
        ds_read_b128 v[44:47], v11 offset:64
        v_and_b32 v11, 15, v0
        v_mul_u32_u24 v11, {ZROW}, v11
        v_lshl_add_u32 v11, v12, 6, v11
        s_lshl_b32 s17, s16, 4
        s_add_u32 s17, s17, {ZB}
        v_add_u32 v11, s17, v11
        v_mov_b32 v10, {L_SYNC}
        s_waitcnt lgkmcnt(0)
        .p2align 3""")
        for k, j in enumerate((1, 2, 3, 4, 5, 6, 7, 8, 9, 0)):
            a = ACC + 8*j; o = 56 + 4*(k & 3)
            for p in range(4): A(f"v_pk_mul_f32 {vr(a+2*p,2)}, {vr(a+2*p,2)}, {vr(40+2*p,2)}")
            for p in range(4): A(f"v_cvt_pk_bf16_f32 v{o+p}, v{a+2*p}, v{a+2*p+1}")
            A(f"ds_write_b128 v11, {vr(o,4)} offset:{j*16*ZROW}")
        A("s_waitcnt lgkmcnt(0)")
        self.lds_inc(10, SY_ZW, 13)
        A(f"""
        v_lshrrev_b32 v12, 4, v0
        s_mul_i32 s17, s16, 40
        v_add_u32 v13, s17, v12
        v_mul_u32_u24 v11, {ZROW}, v13
        v_and_b32 v14, 15, v0
        v_lshl_add_u32 v11, v14, 4, v11
        v_add_u32 v11, {ZB}, v11
        v_lshlrev_b32 v12, 13, v12
        v_lshl_add_u32 v12, v14, 4, v12
        s_mul_i32 s18, s23, {PZ}
        s_add_u32 s18, s18, {W_Z}
        s_lshl_b32 s48, s26, 8
        s_add_u32 s18, s18, s48
        s_and_b32 s48, s25, 1
        s_lshl_b32 s48, s48, 12
        s_lshl_b32 s49, s17, 13
        s_add_u32 s48, s48, s49
        s_add_u32 s52, s48, s18
        s_cmp_eq_u32 s29, 6
        s_cbranch_scc0 L_g_no320
        s_cmp_eq_u32 s16, 3
        s_cbranch_scc0 L_g_no320
        v_and_b32 v20, 3, v0
        v_lshlrev_b32 v20, 7, v20
        v_bfe_u32 v21, v0, 2, 2
        v_lshl_add_u32 v20, v21, 4, v20
        v_add_u32 v20, {L_STAT + 1536}, v20
        ds_read_b128 v[24:27], v20
        ds_read_b128 v[28:31], v20 offset:64
        s_add_u32 s50, s18, {320*4096}
        s_waitcnt lgkmcnt(0)
        v_cvt_pk_bf16_f32 v24, v24, v25
        v_cvt_pk_bf16_f32 v25, v26, v27
        v_cvt_pk_bf16_f32 v26, v28, v29
        v_cvt_pk_bf16_f32 v27, v30, v31
        s_mov_b64 exec, 0xffff
        buffer_store_dwordx4 v[24:27], v12, s[44:47], s50 offen sc1
        s_mov_b64 exec, -1
        L_g_no320:""")
        self.lds_spin(10, SY_ZW, 4, 13)
        self.stamp("G", "zw")
        for n in range(10): A(f"ds_read_b128 {vr(112+4*n,4)}, v11 offset:{4*n*ZROW}")
        for n in range(10):
            A(f"""s_waitcnt lgkmcnt({9-n})
            buffer_store_dwordx4 {vr(112+4*n,4)}, v12, s[44:47], s52 offen sc1
            s_add_u32 s52, s52, 32768""")
        self.lds_inc(10, SY_ZF, 13)

    HB = [4, 20]; WR = 36; AC2 = 176
    def g_phase2(self):
        A = self.A; WR, AC2 = self.WR, self.AC2
        A.label("L_g_issued")
        self.stamp("G", "issued")
        A(f"""
        s_lshl_b32 s18, s16, 3
        s_lshr_b32 s17, {KS0[0] | KS0[1] << 8 | KS0[2] << 16 | KS0[3] << 24:#x}, s18
        s_and_b32 s57, s17, 0xff
        s_mul_i32 s48, s16, 6
        s_sub_u32 s57, s57, s48
        s_sub_u32 s57, s57, 6
        s_lshl_b32 s58, s57, 11
        s_mul_i32 s57, s57, 40960
        s_mul_i32 s49, s48, 40960
        s_mul_i32 s17, s15, 5120
        s_add_u32 s49, s49, s17
        s_add_u32 s49, s49, {W_W2F}            ; w2f soffset
        s_add_u32 s51, s49, 4096
        s_lshl_b32 s19, s48, 11
        s_lshl_b32 s17, s31, 10
        s_add_u32 s19, s19, s17
        s_add_u32 s19, s19, {W_H}
        s_lshl_b32 s18, s20, 2
        v_lshlrev_b32 v1, 4, v0""")
        for rl in range(4):
            A(f"s_add_u32 s17, s16, {rl}\ns_and_b32 s17, s17, 3\ns_add_u32 s17, s17, s18\ns_mul_i32 s17, s17, {HC}\ns_add_u32 s{52+rl}, s17, s19")
        self.lw(48, 16)
        A(f"""v_mov_b32 v2, s14
        v_lshlrev_b32 v3, 2, v0
        s_lshl_b32 s56, s26, 11
        s_add_u32 s56, s56, {W_F1}
        s_lshl_b32 s50, s29, 7
        s_add_u32 s50, s50, s56
        v_mov_b32 v4, 1
        s_waitcnt vmcnt(0)""")
        self.stamp("G", "acked")
        A(f"""s_mov_b64 exec, 1
        ds_add_rtn_u32 v4, v10, v4 offset:{SY_ACK}
        s_waitcnt lgkmcnt(0)
        v_readfirstlane_b32 s17, v4
        s_cmp_eq_u32 s17, 3
        s_cbranch_scc0 L_g_noflag
        s_mov_b32 exec_lo, -1
        buffer_store_dword v2, v3, s[44:47], s50 offen sc1
        ds_write_b32 v10, v10 offset:{SY_FL}
        L_g_noflag:
        s_mov_b64 exec, -1
        v_add_u32 v2, s48, v1
        v_mov_b32 v3, v10""")
        self.lds_spin(3, SY_FL, 1, 4)
        A("s_cmp_eq_u32 s34, 1\ns_cbranch_scc0 L_g_fwok")
        self.lds_spin(3, SY_FW, 1, 4)
        A("L_g_fwok:")
        R = [WR + 20*i for i in range(7)]
        wbuf = {}; hbuf = {}; q = []
        def wl(s):
            L = [f"buffer_load_dwordx4 {vr(wbuf[s]+4*nt,4)}, v1, s[44:47], {'s51' if nt == 4 else 's49'} offen offset:{(nt&3)*1024} sc1" for nt in range(5)]
            L[-1] += "\ns_add_u32 s49, s49, 40960\ns_add_u32 s51, s51, 40960"
            if s == 5: L[-1] += "\ns_add_u32 s49, s49, s57\ns_add_u32 s51, s51, s57"
            q.extend([("w", s)]*5); return L
        def hl(s):
            L = [f"buffer_load_dwordx4 {vr(hbuf[s]+4*rl,4)}, v1, s[44:47], s{52+rl} offen offset:{(s&1)*2048} sc1" for rl in range(4)]
            if s & 1: L[-1] += "\n" + "\n".join(f"s_add_u32 s{52+rl}, s{52+rl}, 4096" for rl in range(4))
            if s == 5: L[-1] += "\n" + "\n".join(f"s_add_u32 s{52+rl}, s{52+rl}, s58" for rl in range(4))
            if s == 6: L[0] = "SPIN2\n" + L[0]
            q.extend([("h", s)]*4); return L
        npw = self.npw
        for s in range(npw):
            wbuf[s] = R[s]
            if s == self.wgate: self.lds_inc(3, SY_WI, 4)
            A("\n".join(wl(s)))
        if self.wgate >= npw: self.lds_inc(3, SY_WI, 4)
        self.stamp("G", "w2iss")
        self.lds_spin(3, SY_H, 1, 4)
        self.stamp("G", "Hok")
        init = [4, 20] + R[npw:]
        nh = len(init)
        for s in range(nh): hbuf[s] = init[s]; A("\n".join(hl(s)))
        free = []; nxh = nh; nxw = npw
        for s in range(14):
            if s == 13: A("s_cmp_ge_u32 s16, 2\ns_cbranch_scc1 L_g_p2done")
            need = [("h", s)] + ([("w", s)] if s < NREG else [])
            last = max(i for i, e in enumerate(q) if e in need)
            A(f"s_waitcnt vmcnt({len(q)-1-last})" + (" lgkmcnt(0)" if s >= NREG else ""))
            self.stamp("G", f"S{s}")
            A(".p2align 3")
            ms = []
            for rl in range(4):
                for nt in range(5):
                    a_ = AC2 + 4*(5*rl + nt)
                    ms.append(f"v_mfma_f32_16x16x32_bf16 {vr(a_,4)}, {vr(wbuf[s]+4*nt,4)}, {vr(hbuf[s]+4*rl,4)}, {'0' if s == 0 else vr(a_,4)}")
            if s >= 1: free += [wbuf[s-1], hbuf[s-1]]
            ot = []; vm = []
            def take(big):
                c = [b_ for b_ in free if (b_ in R) or not big]
                c.sort(key=lambda b_: (b_ in R))
                if not c: return None
                free.remove(c[0]); return c[0]
            if NREG-1 <= s < 13:
                if s == NREG-1: ot.append("SPIN")
                wbuf[s+1] = take(True); assert wbuf[s+1] is not None
                ot += [f"ds_read_b128 {vr(wbuf[s+1]+4*nt,4)}, v2 offset:{(s+1-NREG)*5120 + nt*1024}" for nt in range(5)]
            if s == self.ystep: ot.append(f"ds_write_b32 v3, v3 offset:{SY_G}")
            if nxw < NREG and s >= 1:
                b_ = take(True)
                if b_ is not None: wbuf[nxw] = b_; vm += wl(nxw); nxw += 1
            while nxh < 14 and nxh <= s + self.la:
                nbig = sum(1 for b_ in free if b_ in R)
                b_ = take(False)
                if b_ is None: break
                hbuf[nxh] = b_; vm += hl(nxh); nxh += 1
            slots = [[] for _ in ms]
            for k, f in enumerate(ot): slots[min(len(ms)-1, 2*k)].append(f)
            for k, f in enumerate(vm): slots[min(len(ms)-1, 1 + (k*(len(ms)-1))//max(1, len(vm)))].append(f)
            for m_, sl in zip(ms, slots):
                A(m_)
                for o in sl:
                    if o == "SPIN":
                        l = self.lab("sp"); d = l + "d"
                        A(f"""s_lshl_b32 s17, s16, 2
                        v_add_u32 v0, s17, v3
                        s_mov_b32 s19, 0
                        {l}:
                        ds_read_b32 v0, v0 offset:{SY_W2}
                        s_waitcnt lgkmcnt(0)
                        v_readfirstlane_b32 s27, v0
                        v_add_u32 v0, s17, v3
                        {self.spin_guard(d)}
                        s_cmp_ge_u32 s27, 1
                        s_cbranch_scc0 {l}
                        {d}:
                        v_lshrrev_b32 v0, 4, v1
                        .p2align 3""")
                    elif o.startswith("SPIN2"):
                        l = self.lab("sp"); d = l + "d"
                        A(f"""s_mov_b32 s19, 0
                        {l}:
                        ds_read_b32 v0, v3 offset:{SY_H2}
                        s_waitcnt lgkmcnt(0)
                        v_readfirstlane_b32 s27, v0
                        {self.spin_guard(d)}
                        s_cmp_ge_u32 s27, 1
                        s_cbranch_scc0 {l}
                        {d}:
                        v_lshrrev_b32 v0, 4, v1
                        .p2align 3""")
                        A(o[6:])
                    else: A(o)
        assert nxh == 14 and nxw == NREG
        A.label("L_g_p2done")
        self.stamp("G", "p2done")
        A("s_waitcnt vmcnt(0) lgkmcnt(0)\ns_nop 7")
        for rl in range(1, 4):
            for nt in range(5):
                A(f"ds_write_b128 v2, {vr(AC2+4*(5*rl+nt),4)} offset:{(rl-1)*5120 + nt*1024}")
        for rl in range(1, 4):
            A(f"s_sub_u32 s17, s16, {rl}\ns_and_b32 s17, s17, 3")
            self.lw(18, 17)
            A(f"""s_add_u32 s18, s18, {(rl-1)*5120}
            v_add_u32 v{3+rl}, s18, v1""")
        A(f"""v_and_b32 v8, 15, v0              ; jl
        v_lshrrev_b32 v9, 4, v0                 ; g
        s_lshl_b32 s17, s16, 4
        v_add_u32 v10, s17, v8
        v_mul_u32_u24 v10, {PROW}, v10
        v_bfe_u32 v11, v8, 1, 2
        v_xor_b32 v11, v11, v9
        v_lshl_add_u32 v10, v11, 4, v10
        v_add_u32 v10, {L_P}, v10               ; p address
        s_lshl_b32 s17, s16, 6
        s_add_u32 s17, s17, {L_SYNC + 512}
        v_lshl_add_u32 v11, v8, 2, s17          ; r address
        ds_read_b32 v12, v11
        s_add_u32 s48, s48, 15360
        v_mul_u32_u24 v13, 176, v8
        v_lshl_add_u32 v13, v9, 3, v13
        v_add_u32 v13, s48, v13""")
        for n in range(3):
            A(f"""v_add_u32 v20, {64*n}, v0
            v_mul_u32_u24 v21, 6554, v20
            v_lshrrev_b32 v21, 16, v21
            v_mul_u32_u24 v22, 10, v21
            v_sub_u32 v22, v20, v22
            v_lshlrev_b32 v22, 4, v22
            v_mul_u32_u24 v23, 176, v21
            v_add3_u32 v{14+n}, v23, v22, s48
            v_mul_u32_u24 v21, 0x14000, v21
            v_add_u32 v{17+n}, v21, v22""")
        srd(A, 40, 84, 2048*1280)
        A(f"""s_lshl_b32 s17, s31, 10
        s_lshl_b32 s18, s20, 2
        s_add_u32 s17, s17, s18
        s_add_u32 s17, s17, s16
        s_mul_i32 s17, s17, 1280
        s_mul_i32 s18, s15, 160
        s_add_u32 s49, s17, s18
        s_waitcnt lgkmcnt(0)
        v_mul_f32 v12, v12, v12
        s_barrier""")
        self.stamp("G", "B15")
        for nt in range(5):
            for rl in range(1, 4): A(f"ds_read_b128 {vr(32+16*nt+4*(rl-1),4)}, v{3+rl} offset:{nt*1024}")
            A(f"ds_read_b128 {vr(32+16*nt+12,4)}, v10 offset:{nt*64}")
        for nt in range(5):
            a = AC2 + 4*nt; b = 32 + 16*nt
            A(f"s_waitcnt lgkmcnt({min(15, 4*(4-nt))})")
            for h in range(2):
                A(f"v_pk_add_f32 {vr(a+2*h,2)}, {vr(a+2*h,2)}, {vr(b+2*h,2)}\nv_pk_add_f32 {vr(b+4+2*h,2)}, {vr(b+4+2*h,2)}, {vr(b+8+2*h,2)}")
            for h in range(2):
                A(f"v_pk_add_f32 {vr(a+2*h,2)}, {vr(a+2*h,2)}, {vr(b+4+2*h,2)}")
            for h in range(2):
                A(f"v_pk_fma_f32 {vr(a+2*h,2)}, {vr(a+2*h,2)}, v[12:13], {vr(b+12+2*h,2)} op_sel_hi:[1,0,1]")
            A(f"v_cvt_pk_bf16_f32 v{b}, v{a}, v{a+1}\nv_cvt_pk_bf16_f32 v{b+1}, v{a+2}, v{a+3}\nds_write_b64 v13, {vr(b,2)} offset:{nt*32}")
        A("s_waitcnt lgkmcnt(0)")
        for n in range(3): A(f"ds_read_b128 {vr(20+4*n,4)}, v{14+n}")
        for n in range(3):
            if n == 2: A("s_mov_b32 exec_hi, 0")
            A(f"s_waitcnt lgkmcnt({2-n})\nbuffer_store_dwordx4 {vr(20+4*n,4)}, v{17+n}, s[40:43], s49 offen")
        A("s_mov_b64 exec, -1")
        self.stamp("G", "end")

    def l_setup(self):
        A = self.A
        def pk(r):
            v = 0
            for i, x in enumerate(r): v |= x << (4*i)
            return v & 0xffffffff, v >> 32
        A(f"""
        v_lshrrev_b32 v11, 3, v0
        s_lshl_b32 s17, s16, 3
        v_add_u32 v12, s17, v11
        s_mov_b32 s18, 81920
        v_mul_lo_u32 v2, v12, s18
        v_and_b32 v13, 7, v0
        v_lshrrev_b32 v14, 4, v0
        v_xor_b32 v13, v13, v14
        s_and_b32 s17, s16, 1
        s_lshl_b32 s17, s17, 2
        v_xor_b32 v13, s17, v13
        v_lshl_add_u32 v2, v13, 4, v2   ; x voffset
        v_mul_lo_u32 v3, v14, s35
        v_bfe_u32 v13, v0, 2, 2
        v_xor_b32 v15, v13, v14
        v_lshl_add_u32 v3, v15, 6, v3
        v_and_b32 v13, 3, v0
        v_lshl_add_u32 v3, v13, 4, v3   ; w voffset
        v_lshrrev_b32 v14, 2, v0
        v_mul_lo_u32 v4, v14, s35
        v_lshl_add_u32 v4, v13, 4, v4
        v_and_b32 v13, 32, v0
        v_xor_b32 v4, v4, v13
        v_xor_b32 v11, 32, v3
        s_mul_i32 s48, s26, 5120
        s_lshl_b32 s17, s16, 4
        s_mul_i32 s49, s17, s35
        s_lshl_b32 s52, s30, 6
        s_add_u32 s52, s49, s52
        s_lshl_b32 s17, s28, 6
        s_add_u32 s49, s49, s17
        s_lshl_b32 s53, s35, 2
        s_lshl_b32 s54, s35, 6
        s_lshl_b32 s55, s16, 10
        s_add_u32 s64, s24, s25
        s_and_b32 s64, s64, 3           ; group""")
        for g in range(4):
            lo, hi = pk(self.sched[g])
            if g == 0: A(f"s_mov_b32 s56, {lo:#x}\ns_mov_b32 s57, {hi:#x}")
            else: A(f"s_cmp_eq_u32 s64, {g}\ns_cselect_b32 s56, {lo:#x}, s56\ns_cselect_b32 s57, {hi:#x}, s57")
        t = self.xsh[0] | self.xsh[1] << 4 | self.xsh[2] << 8 | self.xsh[3] << 12
        A(f"""s_lshl_b32 s27, s22, 2
        s_lshr_b32 s32, {t:#x}, s27
        s_and_b32 s32, s32, 15
        s_mul_i32 s27, s23, {self.xsh[4]}
        s_add_u32 s32, s32, s27""")
        self.common_srds()
        A("""
        s_cmp_eq_u32 s23, 0
        s_cselect_b32 s8, s8, s10
        s_cselect_b32 s9, s9, s11
        s_cmp_eq_u32 s34, 1
        s_cselect_b32 s40, s8, s6
        s_cselect_b32 s41, s9, s7
        s_mov_b32 s42, 2211840
        s_cselect_b32 s42, 819200, s42
        s_mov_b32 s43, 0x20000
        s_mov_b32 s10, 0
        s_mov_b32 s11, s64""")
    def l_issue_d(self, i):
        A = self.A; odd = i & 1
        A(f"""s_lshl_b32 s4, s56, 7
        s_add_u32 s5, s4, s48
        s_add_u32 s6, s4, s49
        s_add_u32 s8, s10, s55""")
        if odd: A(f"s_add_u32 s5, s5, 640\ns_add_u32 s6, s6, {3*81920}\ns_add_u32 s56, s56, 1\ns_cmp_eq_u32 s56, 5\ns_cselect_b32 s56, 0, s56")
        for k in range(4):
            A(f"s_add_u32 m0, s8, {k*4096 - k*1280}\ns_nop 0\nbuffer_load_dwordx4 v2, s[36:39], s5 offen offset:{k*1280} lds")
        for k in range(2 if odd else 3):
            A(f"s_add_u32 m0, s8, {16384 + k*4096}")
            A("s_nop 0" if k == 0 else "s_add_u32 s6, s6, 81920")
            A("buffer_load_dwordx4 v3, s[40:43], s6 offen lds")
        A(f"s_add_u32 s10, s10, {DS}\ns_cmp_eq_u32 s10, {5*DS}\ns_cselect_b32 s10, 0, s10")
        return 6 if odd else 7
    def l_setup_d(self):
        self.A("""v_lshrrev_b32 v11, 3, v0
        v_mul_u32_u24 v11, 2560, v11
        v_and_b32 v3, 0x70, v2
        v_add_u32 v3, v3, v11
        s_and_b32 s17, s25, 1
        s_mul_i32 s17, s17, 1280
        s_mul_i32 s49, s16, 20480
        s_add_u32 s49, s49, s17
        s_add_u32 s56, s24, s22
        s_cmp_ge_u32 s56, 5
        s_cselect_b32 s17, 5, 0
        s_sub_u32 s56, s56, s17""")
    def l_issue(self, T):
        A = self.A
        A(f"""
        s_and_b32 s4, s56, 15
        s_lshr_b64 s[56:57], s[56:57], 4
        s_add_u32 s4, s4, s32
        s_cmp_ge_u32 s4, 10
        s_cselect_b32 s27, 10, 0
        s_sub_u32 s4, s4, s27
        s_lshl_b32 s5, s4, 7
        s_add_u32 s5, s5, s48
        s_mul_i32 s6, s4, s54
        s_add_u32 s7, s6, s52
        s_add_u32 s6, s6, s49
        s_add_u32 s8, s10, s55
        s_lshl_b32 s9, s55, 2
        s_add_u32 s9, s9, s10""")
        for i in range(4):
            A(f"s_add_u32 m0, s8, {i*4096 - i*1280}\ns_nop 0\nbuffer_load_dwordx4 v2, s[36:39], s5 offen offset:{i*1280} lds")
        for i in range(4):
            A(f"s_add_u32 m0, s9, {16384 + i*1024}")
            A("s_nop 0" if i == 0 else "s_add_u32 s6, s6, s53")
            A(f"buffer_load_dwordx4 v{3 if i < 2 else 11}, s[40:43], s6 offen lds")
        if T == 5: A("s_add_u32 m0, s8, 32768\ns_nop 0\nbuffer_load_dwordx4 v4, s[40:43], s7 offen lds")
        A(f"""s_add_u32 s10, s10, {SLOT}
        s_cmp_eq_u32 s10, {NS*SLOT}
        s_cselect_b32 s10, 0, s10""")
    F1 = 64; TC = 76; TS = 92; F2 = 108
    def g_consts(self):
        A = self.A; B = 64
        def trig(mul, base, k, c, sn):
            return f"v_fmamk_f32 v{B+9}, v{mul}, {fl(k)}, v{base}\nv_cos_f32 v{c}, v{B+9}\nv_sin_f32 v{sn}, v{B+9}"
        A(f"""v_and_b32 v{B}, 15, v0
        s_and_b32 s17, s16, 1
        s_lshl_b32 s18, s17, 4
        v_add_u32 v{B+2}, s18, v{B}
        v_cvt_f32_u32 v{B+2}, v{B+2}          ; t1
        v_lshlrev_b32 v{B}, 1, v{B}
        s_lshr_b32 s18, s16, 1
        v_add_u32 v{B}, s18, v{B}
        v_cvt_f32_u32 v{B}, v{B}              ; 2jl+T
        v_lshrrev_b32 v{B+1}, 4, v0
        v_lshlrev_b32 v{B+3}, 2, v{B+1}
        s_lshl_b32 s17, s17, 5
        v_add_u32 v{B+4}, s17, v{B+3}
        v_cvt_f32_u32 v{B+4}, v{B+4}          ; 4G + 32v
        v_cvt_f32_u32 v{B+3}, v{B+3}          ; 4G
        v_mul_f32 v{B+5}, {fl(1/64)}, v{B}
        v_mul_f32 v{B+6}, v{B+5}, v{B+4}
        v_lshlrev_b32 v{B+7}, 4, v0
        v_add_u32 v{B+7}, {L_CST}, v{B+7}""")
        for jj in range(8): A(trig(B+5, B+6, 16*(jj>>2) + (jj&3), 80+jj, 88+jj))
        A(f"s_lshl_b32 s17, s16, 11\nv_add_u32 v{B+8}, s17, v{B+7}")
        for p in range(4): A(f"v_cvt_pk_bf16_f32 v{96+p}, v{80+2*p}, v{81+2*p}\nv_cvt_pk_bf16_f32 v{100+p}, v{88+2*p}, v{89+2*p}")
        A(f"ds_write_b128 v{B+8}, v[96:99]\nds_write_b128 v{B+8}, v[100:103] offset:1024")
        A(f"""s_cmp_ge_u32 s16, 2
        s_cbranch_scc1 L_g_cf1
        v_mul_f32 v{B+5}, {fl(1/2048)}, v{B+2}
        v_mul_f32 v{B+6}, v{B+5}, v{B+3}
        s_lshl_b32 s17, s16, 13
        s_add_u32 s17, s17, 8192
        v_add_u32 v{B+8}, s17, v{B+7}""")
        for a4 in range(4):
            r = 80 + 8*(a4 & 1)
            for i in range(4): A(trig(B+5, B+6, 16*a4+i, r+i, r+4+i))
            A(f"s_nop 0\nds_write_b128 v{B+8}, {vr(r,4)} offset:{1024*a4}\nds_write_b128 v{B+8}, {vr(r+4,4)} offset:{4096+1024*a4}")
        A(f"""s_branch L_g_cdone
        L_g_cf1:
        v_mul_f32 v{B+5}, {fl(1/32)}, v{B+2}
        v_mul_f32 v{B+6}, v{B+5}, v{B+3}
        s_lshl_b32 s17, s16, 11
        s_add_u32 s17, s17, {24576 - 4096}
        v_add_u32 v{B+8}, s17, v{B+7}""")
        for jj, k in enumerate([0,1,2,3,16,17,18,19]): A(trig(B+5, B+6, k, 80+jj, 88+jj))
        A("s_nop 0")
        for p in range(4): A(f"v_cvt_pk_bf16_f32 v{96+p}, v{80+2*p}, v{81+2*p}\nv_cvt_pk_bf16_f32 v{100+p}, v{88+2*p}, v{89+2*p}")
        A(f"ds_write_b128 v{B+8}, v[96:99]\nds_write_b128 v{B+8}, v[100:103] offset:1024\nL_g_cdone:")
    def l_consts(self):
        A = self.A; F1, TC, TS, F2 = self.F1, self.TC, self.TS, self.F2
        A(f"""v_add_u32 v20, {L_CST}, v8
        s_and_b32 s17, s16, 1
        s_lshl_b32 s18, s17, 13
        v_add_u32 v21, s18, v20
        s_lshl_b32 s18, s17, 11
        v_add_u32 v22, s18, v20""")
        for g in range(4):
            A(f"ds_read_b128 {vr(F2+4*g,4)}, v20 offset:{2048*g}\nds_read_b128 {vr(F2+16+4*g,4)}, v20 offset:{2048*g+1024}")
        for a4 in range(4):
            A(f"ds_read_b128 {vr(TC+4*a4,4)}, v21 offset:{8192+1024*a4}\nds_read_b128 {vr(TS+4*a4,4)}, v21 offset:{12288+1024*a4}")
        A(f"ds_read_b128 {vr(F1,4)}, v22 offset:24576\nds_read_b128 {vr(F1+4,4)}, v22 offset:25600\ns_waitcnt lgkmcnt(0)")
    def l_consts2(self):
        A = self.A
        A("s_mov_b32 s17, 0x80000000\ns_mov_b32 s18, 0x80008000")
        for i in range(32): A(f"v_xor_b32 v{self.F2+32+i}, s17, v{self.F2+i}")
        for i in range(4): A(f"v_xor_b32 v{self.F1+8+i}, s18, v{self.F1+4+i}")
    def l_phase1(self, K):
        A0 = self.A; D = K == "D"; NT = {"5": 2, "4": 2, "D": 3}[K]
        class W:
            def __call__(s_, t): A0(t.replace("@", K))
            def label(s_, t): A0.label(t.replace("@", K))
        A = W()
        issue = (lambda i: self.l_issue_d(i)) if D else (lambda i: (self.l_issue(int(K)), 4 + int(K))[1])
        self.stamp("L", "pre-issue")
        if self.lprio: A(f"s_setprio {self.lprio}")
        n0 = issue(0)
        srd(A, 76, 62, 1728*2)
        A(f"""
        v_and_b32 v8, 7, v0
        v_lshlrev_b32 v8, 2, v8
        v_and_b32 v9, 32, v0
        v_add_u32 v8, v8, v9
        s_add_u32 s17, s28, s16
        s_lshl_b32 s17, s17, 6
        s_lshl_b32 s18, s30, 6
        s_cmp_eq_u32 s34, 1
        s_cselect_b32 s17, 0x40000000, s17
        s_cselect_b32 s18, 0x40000000, s18
        buffer_load_dword v14, v8, s[76:79], s17 offen
        buffer_load_dword v13, v8, s[76:79], s18 offen
        """)
        if NT:
            A("""s_mul_i32 s17, s21, 6554
            s_lshr_b32 s17, s17, 16
            s_mul_i32 s18, s17, 10
            s_sub_u32 s18, s21, s18        ; cl
            s_mul_i32 s0, s16, 25
            s_add_u32 s9, s0, s17          ; ks
            s_cmp_ge_u32 s17, 25
            s_cselect_b32 s9, 60, s9
            s_mul_i32 s0, s9, 10
            s_add_u32 s0, s0, s18""")
            self.w2_task_addr(0, 1, 51, 5)
            A("s_cmp_ge_u32 s9, 54\ns_cselect_b32 s1, 0x40000000, s1\ns_cselect_b32 s51, 0x40000000, s51")
            A(f"s_lshl_b32 s50, s16, 12\ns_add_u32 s50, s50, {5*DS}" if D else f"s_lshl_b32 s50, s16, 12\ns_add_u32 s50, s50, {L_STG}")
            srd(A, 76, 80, 1728*1280)
        n1 = issue(1)
        if NT:
            if NT < 4: A(f"s_cmp_ge_u32 s16, {NT}\ns_cbranch_scc1 L_l_nw2@")
            self.w2_task_dma(1, 50, 5, 76)
            A.label("L_l_nw2@")
        self.get_tag()
        A(f"""
        v_mov_b32 v55, s14
        v_lshlrev_b32 v8, 4, v0
        v_lshlrev_b32 v7, 2, v0
        s_mul_i32 s1, s15, 5
        s_lshr_b32 s1, s1, 2                 ; cl0
        v_and_b32 v52, 31, v0
        v_mul_u32_u24 v52, 10, v52
        v_lshrrev_b32 v53, 5, v0
        v_add3_u32 v53, v52, v53, s1
        v_lshlrev_b32 v53, 7, v53
        s_mov_b32 s1, {W_F0}
        v_add_u32 v9, {L_CORR}, v8
        s_lshl_b32 s0, s21, 7
        s_add_u32 s0, s0, s1
        v_add_u32 v10, s55, v9
        v_bfe_u32 v17, v0, 3, 2
        v_cmp_eq_u32 vcc, 1, v17
        v_mov_b32 v17, 0
        v_mov_b32 v18, 0
        v_mov_b32 v19, 0
        v_mov_b32 v12, {L_SYNC}
        v_lshlrev_b32 v47, 7, v0
        """)
        q = [["D0"]*n0 + ["b"]*2 + ["D1"]*n1 + (["w"]*4 if w < NT else []) for w in range(4)]
        def waits(tag):
            n = [len(qq) - 1 - max(i for i, e in enumerate(qq) if e == tag) for qq in q]
            lo = min(n)
            if all(x == lo for x in n): A(f"s_waitcnt vmcnt({lo})"); return
            l = self.lab("wt")
            for w in range(4):
                if n[w] != lo: A(f"s_cmp_eq_u32 s16, {w}\ns_cbranch_scc1 {l}_{n[w]}")
            A(f"s_waitcnt vmcnt({lo})")
            for x in sorted(set(n) - {lo}): A(f"{l}_{x}:\ns_waitcnt vmcnt({x})")
        PL = [(54, 1, 53, "s1", "s_mov_b32 exec_lo, 0x1ffffff\ns_mov_b32 exec_hi, 0x1ffffff")]
        stl = f"s_lshl_b32 s17, s26, 11\ns_add_u32 s17, s17, {W_STAT}\nbuffer_load_dwordx4 v[56:59], v8, s[44:47], s17 offen sc1\nbuffer_load_dwordx4 v[60:63], v8, s[44:47], s17 offen offset:1024 sc1\ns_lshl_b32 s17, s20, 11\ns_lshl_b32 s18, s31, 8\ns_add_u32 s17, s17, s18\ns_add_u32 s17, s17, {W_STAT}\nv_and_b32 v48, 0x300, v8\nv_add_u32 v48, v48, v8\nbuffer_load_dwordx4 v[48:51], v48, s[44:47], s17 offen sc1"
        def ev_statline():
            A(f"""s_cmp_eq_u32 s16, 3
            s_cbranch_scc0 L_l_nst@
            v_add_u32 v16, v12, v7
            ds_read_b32 v16, v16 offset:{SY_ST}
            s_lshl_b32 s17, s26, 4
            s_add_u32 s17, s17, s29
            s_lshl_b32 s17, s17, 7
            s_add_u32 s17, s17, {W_STAT}
            s_mov_b32 exec_hi, 0
            s_waitcnt lgkmcnt(0)
            buffer_store_dword v16, v7, s[44:47], s17 offen sc1
            s_mov_b64 exec, -1
            L_l_nst@:""")
            q[3].append("t")
        def ev_statload():
            A(f"s_cmp_eq_u32 s16, 2\ns_cbranch_scc0 L_l_n6@\n{stl}\nL_l_n6@:"); q[2] += ["P"]*3
        def ev_w2fin():
            if not NT: return
            if NT < 4: A(f"s_cmp_ge_u32 s16, {NT}\ns_cbranch_scc1 L_l_n5@")
            self.w2_task_fin(51, 50, 30, 32)
            A.label("L_l_n5@")
            for w in range(NT): q[w] += ["s"]*4
        def ev_issue(k):
            nn = issue(k)
            for qq in q: qq += [f"D{k}"]*nn
        def ev_flag():
            if not NT: return
            A("s_cmp_eq_u32 s16, 0\ns_cbranch_scc0 L_l_n4@\ns_mov_b32 exec_hi, 0\nbuffer_store_dword v55, v7, s[44:47], s0 offen sc1\ns_mov_b64 exec, -1\nL_l_n4@:")
            q[0].append("f")
        def ev_init():
            A(f"""v_cndmask_b32 v14, 0, v14, vcc
            v_cndmask_b32 v13, 0, v13, vcc
            v_and_b32 v16, 0xffff, v14
            v_lshrrev_b32 v18, 16, v14
            ds_write_b128 v10, v[16:19]
            s_cmp_eq_u32 s16, 0
            s_cbranch_scc0 L_l_n0@
            v_and_b32 v16, 0xffff, v13
            v_lshrrev_b32 v18, 16, v13
            ds_write_b128 v9, v[16:19] offset:4096
            v_add_u32 v16, v12, v7
            ds_write_b32 v16, v17
            L_l_n0@:""")
            self.l_consts()
        def ev_x():
            self.l_xload(K)
            for w in range(4): q[w] += ["x"]*(6 if w < 2 else 4)
        def ev_statchk():
            A(f"""s_cmp_eq_u32 s16, 2
            s_cbranch_scc0 L_l_nchk@
            s_mov_b32 s19, 0
            L_l_sc@:
            v_cmp_ne_u32 vcc, v55, v59
            v_cmp_ne_u32 s[64:65], v55, v63
            v_cmp_ne_u32 s[68:69], v55, v51
            {self.spin_guard("L_l_scd@")}
            s_or_b64 vcc, vcc, s[64:65]
            s_or_b64 vcc, vcc, s[68:69]
            s_cbranch_vccz L_l_scd@
            s_sleep 4
            {stl}
            s_waitcnt vmcnt(0)
            s_branch L_l_sc@
            L_l_scd@:
            v_lshlrev_b32 v20, 3, v0
            v_add_u32 v20, {L_STAT}, v20
            v_add_u32 v21, {L_STAT + 1024}, v7
            s_mov_b32 s17, 0x01000100
            v_perm_b32 v22, v56, v56, s17
            v_lshrrev_b32 v23, 16, v56
            v_perm_b32 v24, v60, v60, s17
            v_lshrrev_b32 v25, 16, v60
            ds_write_b64 v20, v[22:23]
            ds_write_b64 v20, v[24:25] offset:512
            ds_write_b32 v21, v57
            ds_write_b32 v21, v61 offset:256
            ds_write_b32 v21, v58 offset:512
            ds_write_b32 v21, v62 offset:768
            ds_write_b32 v21, v49 offset:{L_SYNC + 512 - L_STAT - 1024}
            s_waitcnt lgkmcnt(0)
            L_l_nchk@:""")
        def ev_f0issue():
            A("s_cmp_eq_u32 s16, 3\ns_cbranch_scc0 L_l_n7@")
            for (dst, n, va, so, ex) in PL: A(f"{ex}\nbuffer_load_dword v{dst}, v{va}, s[44:47], {so} offen sc1\ns_mov_b64 exec, -1")
            A("L_l_n7@:"); q[3] += ["P"]
        def ev_f0chk():
            A("s_cmp_eq_u32 s16, 3\ns_cbranch_scc0 L_l_n9@\ns_waitcnt vmcnt(0)")
            self.poll(PL, 55, first_issued=True)
            A("L_l_n9@:")
        def PF(j):
            def f():
                if not self.spf: return
                if j == 0:
                    A(f"""s_lshl_b32 s66, s24, 1
                    s_add_u32 s66, s66, s31
                    s_mul_i32 s66, s66, 40960
                    s_mul_i32 s67, s15, 5120
                    s_add_u32 s66, s66, s67
                    s_mul_i32 s67, s16, 1280
                    s_add_u32 s66, s66, s67
                    s_add_u32 s66, s66, {W_W2F}""")
                for k in range(10*self.spf): A(f"s_load_dword s67, s[12:13], s66 offset:{k*128//self.spf}")
                A(f"s_add_u32 s66, s66, {8*40960}")
            return f
        def bar(tag, name):
            if tag: waits(tag)
            A("s_barrier"); self.stamp("L", name)
        I = lambda k: (lambda: ev_issue(k))
        if not D:
            plan = [("b", [ev_statline, I(2), ev_init]), ("D1", [I(3), self.l_consts2]), ("D2", [ev_w2fin, I(4)]), ("D3", [I(5)]),
                    ("D4", [ev_statload, I(6), ev_flag, PF(0)]), ("D5", [I(7), PF(1)]), ("D6", [I(8), ev_statchk, PF(2)]), ("D7", [I(9), ev_x, ev_f0issue, PF(3)]),
                    ("D8", [PF(4), ev_f0chk, PF(5)]), ("D9", [PF(6)])]
            names = [f"B{i}" for i in range(10)]
        else:
            ev_issue(2)
            plan = [("D1", [ev_statline, I(3), ev_init]), (None, [I(4), self.l_consts2]), ("D3", [ev_w2fin, I(5), I(6)]),
                    ("D5", [ev_statload, I(7), I(8), ev_flag, PF(0), PF(1)]), ("D7", [I(9), ev_statchk, ev_x, PF(2), PF(3)]), ("D9", [PF(4), PF(5), PF(6)])]
            names = ["B1", "X", "B3", "B5", "B7", "B9"]
        for (tag, evs), nm in zip(plan, names):
            bar(tag, nm)
            for e in evs: e()
        if D and self.dpf:
            A(f"""s_cmp_lt_u32 s16, 2
            s_cbranch_scc1 L_l_dpfe
            s_lshl_b32 s4, s24, 2
            s_and_b32 s5, s25, 1
            s_lshl_b32 s5, s5, 1
            s_add_u32 s4, s4, s5
            s_add_u32 s4, s4, s16
            s_sub_u32 s4, s4, 2
            s_mul_i32 s4, s4, 35               ; idx
            s_mul_i32 s5, s4, 3277
            s_lshr_b32 s5, s5, 16              ; j = idx/20
            s_mul_i32 s6, s5, 20
            s_sub_u32 s6, s4, s6               ; off
            s_add_u32 s17, s55, {L_STG}
            s_mov_b32 m0, s17
            s_mul_i32 s8, s23, 20480
            s_add_u32 s8, s8, {W_W2F}
            s_movk_i32 s9, {self.dpf}
            L_l_dpf:
            s_mul_i32 s7, s5, 37
            s_lshr_b32 s7, s7, 8               ; q = j/7
            s_mul_i32 s17, s7, 7
            s_add_u32 s17, s17, s5             ; j + 7q = 14q + j%7
            s_cmp_eq_u32 s7, 3
            s_cselect_b32 s18, 1, 0
            s_sub_u32 s17, s17, s18            ; ks
            s_mul_i32 s17, s17, 40960
            s_lshl_b32 s18, s6, 10
            s_add_u32 s17, s17, s18
            s_add_u32 s17, s17, s8
            buffer_load_dwordx4 v8, s[44:47], s17 offen sc1 lds
            s_add_u32 s6, s6, 1
            s_cmp_eq_u32 s6, 20
            s_cselect_b32 s6, 0, s6
            s_cselect_b32 s18, 1, 0
            s_add_u32 s5, s5, s18
            s_sub_u32 s9, s9, 1
            s_cmp_lg_u32 s9, 0
            s_cbranch_scc1 L_l_dpf
            L_l_dpfe:""")
        if D:
            A("s_cmp_lt_u32 s16, 2\ns_cbranch_scc0 L_l_d23\ns_barrier\ns_branch L_l_gapD\nL_l_d23:\ns_cmp_eq_u32 s16, 3\ns_cbranch_scc0 L_l_dsp")
            self.poll(PL, 55)
            self.lds_set(12, SY_FW, 16)
            A("s_branch L_l_dgo\nL_l_dsp:")
            self.lds_spin(12, SY_FW, 1, 16)
            A("L_l_dgo:")
            self.l_w2dma("b", self.nbd, "d")
            A("s_barrier")
            if self.nbc: self.l_w2dma("c", self.nbc, "d")
            A("s_setprio 3")
            self.lds_spin(12, SY_FL, 1, 16)
            if 7 - self.nbd - self.nbc: self.l_w2dma("c", 7 - self.nbd - self.nbc, "f")
            A("s_waitcnt vmcnt(35)\ns_branch L_l_gp2")
        else:
            A("s_cmp_lt_u32 s16, 2\ns_cbranch_scc1 L_l_n10@")
            self.l_w2dma("a", 3, K)
            A("L_l_n10@:\ns_barrier")
            if K == "4": A("s_branch L_l_gapW")
    def l_w2setup(self):
        pass
    def l_w2dma(self, tag, count, sfx=''):
        A = self.A
        if tag in ("a", "a2", "b"):
            kr = 16 if tag == "a" else 9
            if kr == 9: A("s_xor_b32 s9, s16, 2")
            A(f"""s_lshl_b32 s18, s{kr}, 3
            s_lshr_b32 s17, {KS0[0] | KS0[1] << 8 | KS0[2] << 16 | KS0[3] << 24:#x}, s18
            s_and_b32 s17, s17, 0xff
            s_add_u32 s17, s17, 1
            s_mul_i32 s8, s17, 40960
            s_mul_i32 s17, s15, 5120
            s_add_u32 s8, s8, s17
            s_add_u32 s8, s8, {W_W2F}""")
            self.lw(7, kr)
            n = 7 if tag == "b" else 6
            A(f"""s_lshl_b32 s17, s24, 1
            s_add_u32 s17, s17, s31
            s_cmp_ge_u32 s17, {n}
            s_cselect_b32 s18, {n}, 0
            s_sub_u32 s17, s17, s18            ; rot
            s_sub_u32 s6, {n}, s17
            s_mul_i32 s4, s17, 5120
            s_add_u32 s4, s4, s7
            s_mul_i32 s5, s17, 40960
            s_add_u32 s5, s5, s8""")
        A(f"s_mov_b32 s18, {count}\nL_l_dma{tag}{sfx}:\ns_mov_b32 m0, s4\ns_add_u32 s17, s5, 4096")
        for nt in range(4): A(f"buffer_load_dwordx4 v8, s[44:47], s5 offen offset:{1024*nt} sc1 lds")
        A(f"""s_add_u32 m0, s4, 4096
        s_add_u32 s4, s4, 5120
        buffer_load_dwordx4 v8, s[44:47], s17 offen sc1 lds
        s_add_u32 s5, s5, 40960
        s_sub_u32 s6, s6, 1
        s_cmp_eq_u32 s6, 0
        s_cselect_b32 s4, s7, s4
        s_cselect_b32 s5, s8, s5
        s_sub_u32 s18, s18, 1
        s_cmp_lg_u32 s18, 0
        s_cbranch_scc1 L_l_dma{tag}{sfx}""")
    def l_xload(self, sfx):
        A = self.A
        srd(A, 76, 82, 640*2)
        A(f"""s_lshl_b32 s17, s31, 10
        s_lshl_b32 s18, s20, 2
        s_add_u32 s17, s17, s18
        s_mul_i32 s17, s17, 1280
        s_mul_i32 s5, s15, 160
        s_add_u32 s4, s17, s5
        s_lshl_b32 s17, s16, 6""")
        for k in range(3):
            if k == 2: A(f"s_cmp_ge_u32 s16, 2\ns_cbranch_scc1 L_l_px2{sfx}")
            A(f"""v_add_u32 v20, s17, v0
            v_add_u32 v20, {256*k}, v20
            v_mul_u32_u24 v21, 6554, v20
            v_lshrrev_b32 v21, 16, v21
            v_mul_u32_u24 v22, 10, v21
            v_sub_u32 v22, v20, v22
            v_lshlrev_b32 v27, 4, v22           ; b2 voffset
            v_lshlrev_b32 v22, 1, v22
            v_bfe_u32 v23, v21, 1, 2
            v_xor_b32 v22, v22, v23
            v_mul_u32_u24 v23, {PROW}, v21
            v_lshl_add_u32 v{24+k}, v22, 4, v23 ; p address (-L_P)
            v_and_b32 v23, 15, v21
            v_mul_u32_u24 v23, 0x14000, v23
            v_lshrrev_b32 v21, 4, v21
            v_mul_u32_u24 v21, 1280, v21
            v_add3_u32 v23, v23, v21, v27
            buffer_load_dwordx4 {vr(172+8*k,4)}, v23, s[36:39], s4 offen
            buffer_load_dwordx4 {vr(176+8*k,4)}, v27, s[76:79], s5 offen""")
        A.label(f"L_l_px2{sfx}")
    def l_gap(self):
        A = self.A
        A.label("L_l_gapW")
        A("s_cmp_lt_u32 s16, 2\ns_cbranch_scc1 L_l_gapD")
        self.l_w2dma("c", 3)
        A("s_waitcnt vmcnt(30)\ns_branch L_l_gp2\nL_l_gapD:\ns_setprio 3\ns_waitcnt vmcnt(0)\nL_l_gp2:")
        for k in range(3):
            if k == 2: A("s_cmp_ge_u32 s16, 2\ns_cbranch_scc1 L_l_px3")
            x = 172 + 8*k; b = x + 4
            for d in range(4):
                A(f"""v_lshlrev_b32 v{32+2*d}, 16, v{x+d}
                v_and_b32 v{33+2*d}, 0xffff0000, v{x+d}
                v_lshlrev_b32 v40, 16, v{b+d}
                v_and_b32 v41, 0xffff0000, v{b+d}
                v_add_f32 v{32+2*d}, v{32+2*d}, v40
                v_add_f32 v{33+2*d}, v{33+2*d}, v41""")
            A(f"v_add_u32 v{24+k}, {L_P}, v{24+k}\nv_xor_b32 v40, 16, v{24+k}\nds_write_b128 v{24+k}, v[32:35]\nds_write_b128 v40, v[36:39]")
        A.label("L_l_px3")
        A("s_waitcnt lgkmcnt(0)")
        self.lds_inc(12, SY_P, 16)
    def l_gap1(self):
        A = self.A
        A("s_cmp_eq_u32 s34, 1\ns_cbranch_scc0 L_l_g1w\ns_cmp_lt_u32 s16, 2\ns_cbranch_scc0 L_l_g24")
        self.lds_spin(12, SY_FL, 1, 16)
        self.lds_spin(12, SY_FW, 1, 16)
        self.l_w2dma("a2", 6)
        A("s_branch L_l_g24\nL_l_g1w:\ns_cmp_lt_u32 s16, 2\ns_cbranch_scc1 L_l_g24")
        self.lds_spin(12, SY_FL, 1, 16)
        self.l_w2dma("b", self.h2at)
        A("s_cmp_eq_u32 s16, 3\ns_cbranch_scc0 L_l_g25")
        self.h2poll(True)
        A("L_l_g25:")
        if self.h2at < 7: self.l_w2dma("c", 7 - self.h2at, "g")
        A(f"s_cmp_eq_u32 s16, 3\ns_cbranch_scc0 L_l_g24\ns_waitcnt vmcnt({5*(7-self.h2at)})")
        self.h2poll(False)
        A("L_l_g24:")
        self.stamp("L", "w2iss")
    def l_gap2(self):
        A = self.A
        A("s_cmp_lt_u32 s16, 2\ns_cbranch_scc1 L_l_gq\ns_cmp_le_u32 s4, 320\ns_cbranch_scc1 L_l_gq")
        A(f"""s_lshl_b32 s17, s16, 2
        v_add_u32 v16, s17, v12
        v_mov_b32 v17, 1
        s_waitcnt vmcnt(0)
        ds_write_b32 v16, v17 offset:{SY_W2}
        ds_write_b32 v16, v17 offset:{SY_W2 - 8}""")
        self.stamp("L", "w2land")
        A.label("L_l_gq")
    def gate(self, t4flag):
        A = self.A; l = self.lab("gt")
        A(f"s_cmp_eq_u32 s34, 1\ns_cbranch_scc0 {l}w")
        self.lds_spin(12, SY_FL, 1, 16)
        A(f"s_sleep {self.zsleepd}\ns_branch {l}e\n{l}w:")
        self.lds_spin(12, SY_WI, 4, 16)
        if t4flag is not None:
            A(f"s_cmp_eq_u32 s33, 1\ns_cbranch_scc1 {l}e")
            self.lds_spin(12, t4flag, 1, 16)
        A(f"{l}e:")
    def h2poll(self, issue):
        A = self.A
        P = [(56, 1, 47, "s0", "s_mov_b64 exec, 0x0707")]
        if issue:
            A(f"v_lshlrev_b32 v47, 7, v0\ns_lshl_b32 s0, s20, 11\ns_add_u32 s0, s0, {W_F1}\ns_mov_b64 exec, 0x0707\nbuffer_load_dword v56, v47, s[44:47], s0 offen sc1\ns_mov_b64 exec, -1")
        else:
            self.poll(P, 55, first_issued=True, sleep=self.zret)
            self.lds_set(12, SY_H2, 16)
    def l_fft(self):
        A = self.A; F1, TC, TS, F2 = self.F1, self.TC, self.TS, self.F2
        Z = 172; D1 = 204; P = 172; D3 = 236
        A(f"""s_mov_b32 s17, s21
        s_lshr_b32 s18, s17, 2
        s_lshl_b32 s18, s18, 2             ; 4*rb
        s_and_b32 s5, s17, 1
        s_lshl_b32 s5, s5, 1               ; 2*(cbl&1)
        s_add_u32 s18, s18, s5
        s_add_u32 s18, s18, s23
        s_add_u32 s17, s18, 256
        s_cmp_eq_u32 s2, 24
        s_movk_i32 s18, 320
        s_cselect_b32 s18, s18, -1
        s_cmp_eq_u32 s34, 1
        s_cselect_b32 s17, s17, s18
        s_cmp_lt_u32 s16, 2
        s_cselect_b32 s4, s2, s17
        s_cmp_eq_u32 s16, 1
        s_cbranch_scc0 L_l_nhp""")
        self.gate(None)
        A(f"v_lshlrev_b32 v14, 7, v0\ns_lshl_b32 s17, s20, 11\ns_add_u32 s17, s17, {W_F1}")
        self.poll([(16, 1, 14, "s17", "s_mov_b64 exec, 0x3838")], 55, sleep=self.zret)
        self.lds_set(12, SY_H, 16)
        A(f"""L_l_nhp:
        s_cmp_gt_u32 s4, 320
        s_cbranch_scc1 L_l_nofft
        s_bitcmp1_b32 s4, 0
        s_cselect_b32 s17, 128, 0
        s_add_u32 s17, s17, {W_F1 + 6*128}
        v_and_b32 v14, 15, v0
        v_lshlrev_b32 v14, 11, v14
        v_bfe_u32 v15, v0, 4, 1
        v_lshl_add_u32 v14, v15, 10, v14
        v_mov_b32 v15, v12
        s_cmp_eq_u32 s16, 0
        s_cbranch_scc0 L_l_zspin""")
        self.gate(SY_H)
        self.poll([(16, 1, 14, "s17", "s_mov_b32 exec_hi, 0")], 55, sleep=self.zret)
        self.lds_set(12, SY_ZOK, 16)
        A("s_branch L_l_zok\nL_l_zspin:")
        self.lds_spin(12, SY_ZOK, 1, 16)
        A.label("L_l_zok")
        A("s_and_b32 s18, s16, 2\ns_lshl_b32 s18, s18, 1\nv_add_u32 v15, s18, v12")
        self.stamp("L", "Zok")
        A("s_setprio 3")
        A(f"""v_bfe_u32 v16, v0, 2, 2
        v_lshlrev_b32 v16, 8, v16
        v_lshrrev_b32 v17, 4, v0
        v_lshl_add_u32 v16, v17, 6, v16
        v_and_b32 v18, 3, v0
        v_lshl_add_u32 v16, v18, 4, v16     ; z voffset
        s_lshl_b32 s5, s4, 12
        s_add_u32 s5, s5, {W_Z}
        s_add_u32 s6, s5, {PZ}
        s_cmp_eq_u32 s4, 320
        s_cselect_b32 s6, 0x40000000, s6""")
        for a4 in range(4):
            A(f"buffer_load_dwordx4 {vr(Z+4*a4,4)}, v16, s[44:47], s5 offen offset:{1024*a4} sc1")
            A(f"buffer_load_dwordx4 {vr(Z+16+4*a4,4)}, v16, s[44:47], s6 offen offset:{1024*a4} sc1")
        A("s_lshl_b32 s9, s34, 2\ns_or_b32 s9, s9, s16\ns_cmp_eq_u32 s9, 7\ns_cbranch_scc0 L_l_nzi")
        self.h2poll(True)
        A(f"""L_l_nzi:
        v_and_b32 v18, 15, v0
        v_lshlrev_b32 v18, 4, v18
        v_lshl_add_u32 v18, v17, 9, v18
        s_lshl_b32 s5, s4, 13
        s_and_b32 s17, s16, 1
        s_lshl_b32 s18, s17, 11
        s_add_u32 s5, s5, s18
        s_add_u32 s5, s5, {W_Y}
        s_add_u32 s6, s5, 4096
        """)
        mf = "v_mfma_f32_16x16x32_bf16"
        for a4 in range(4):
            zr, zi = vr(Z+4*a4,4), vr(Z+16+4*a4,4); re, im = vr(D1+4*a4,4), vr(D1+16+4*a4,4)
            if a4 == 0:
                A(f"""s_waitcnt vmcnt(6)
                s_lshl_b32 s17, s34, 1
                s_or_b32 s17, s17, s16
                s_cmp_lt_u32 s17, 2
                s_cbranch_scc1 L_l_nw2f
                s_xor_b32 s17, s16, 2
                s_lshl_b32 s17, s17, 2
                v_add_u32 v16, s17, v12
                ds_write_b32 v16, v12 offset:{SY_W2}
                s_cmp_eq_u32 s34, 1
                s_cbranch_scc1 L_l_nw2f
                ds_write_b32 v16, v12 offset:{SY_W2 + 8}
                L_l_nw2f:""")
                self.stamp("L", "zland")
            A(f"""s_waitcnt vmcnt({6-2*a4})
            {mf} {re}, {zr}, {vr(F1,4)}, 0
            {mf} {im}, {zi}, {vr(F1,4)}, 0
            {mf} {re}, {zi}, {vr(F1+4,4)}, {re}
            {mf} {im}, {zr}, {vr(F1+8,4)}, {im}""")
        A("s_nop 1")
        for a4 in range(4):
            if a4 == 3: A("s_nop 0")
            for i in range(4):
                r = D1+4*a4+i; m = r+16; c = TC+4*a4+i; s = TS+4*a4+i
                A(f"""v_mul_f32 v{32+i}, v{r}, v{c}
                v_mul_f32 v{36+i}, v{m}, v{c}
                v_fmac_f32 v{32+i}, v{m}, v{s}
                v_fma_f32 v{36+i}, -v{r}, v{s}, v{36+i}""")
            pr = P + 4*(a4 >> 1) + 2*(a4 & 1); pi = pr + 8
            A(f"""v_cvt_pk_bf16_f32 v{pr}, v32, v33
            v_cvt_pk_bf16_f32 v{pr+1}, v34, v35
            v_cvt_pk_bf16_f32 v{pi}, v36, v37
            v_cvt_pk_bf16_f32 v{pi+1}, v38, v39""")
        A("s_nop 1")
        for k in range(4):
            for T in range(2):
                for jh in range(2):
                    d = vr(D3 + 8*T + 4*jh, 4)
                    f = F2 + 32*jh + 16*(k >> 1) + 8*T + 4*(k & 1)
                    A(f"{mf} {d}, {vr(P+4*k,4)}, {vr(f,4)}, {'0' if k == 0 else d}")
        for i in range(4): A(f"s_mov_b32 s{60+i}, {0x07060500 + i:#x}")
        A("s_nop 1")
        for T in range(2):
            for jh in range(2):
                d = D3+8*T+4*jh
                for i in range(4): A(f"v_perm_b32 v{d+i}, v{d+i}, v55, s{60+i}")
                A(f"buffer_store_dwordx4 {vr(d,4)}, v18, s[44:47], {'s5' if T == 0 else 's6'} offen offset:{256*jh} sc1")
        A("s_cmp_eq_u32 s9, 7\ns_cbranch_scc0 L_l_nofft")
        self.h2poll(False)
        A.label("L_l_nofft")
        self.stamp("L", "fftdone")
    def l_y(self):
        A = self.A
        A(f"s_setprio {self.yprio}")
        A(f"""v_and_b32 v16, 15, v0               ; jl
        v_lshrrev_b32 v17, 4, v0                  ; e sub
        s_mul_i32 s17, s16, 20
        v_mul_u32_u24 v18, {PROW}, v16
        v_lshl_add_u32 v18, v17, 2, v18
        v_add_u32 v18, {L_P}, v18
        v_bfe_u32 v19, v16, 1, 2
        s_mul_i32 s18, s16, 5""")
        for n in range(5): A(f"s_add_u32 s27, s18, {n}\nv_xor_b32 v{28+n}, s27, v19\nv_lshl_add_u32 v{28+n}, v{28+n}, 4, v18")
        A(f"""s_mul_i32 s4, s15, 80
        s_add_u32 s4, s4, s17
        s_cmp_ge_u32 s15, 4
        s_cbranch_scc1 L_l_mir
        v_lshlrev_b32 v24, 13, v17
        v_lshl_add_u32 v24, v16, 4, v24
        s_lshl_b32 s5, s4, 13
        s_lshl_b32 s17, s20, 9
        s_lshl_b32 s18, s31, 8
        s_add_u32 s17, s17, s18
        s_add_u32 s5, s5, s17
        s_add_u32 s5, s5, {W_Y}
        s_mov_b32 s6, 32768
        s_branch L_l_mird
        L_l_mir:
        v_sub_u32 v26, 3, v17
        v_lshlrev_b32 v26, 13, v26                ; (3 - esub)*8192
        v_sub_u32 v24, 15, v16
        v_lshl_add_u32 v24, v24, 4, v26
        s_cmp_eq_u32 s20, 0
        s_cselect_b32 s17, 32, 31
        s_lshl_b32 s18, s31, 4
        s_sub_u32 s17, s17, s18
        v_sub_u32 v25, s17, v16
        v_and_b32 v25, 31, v25
        v_lshl_add_u32 v25, v25, 4, v26
        s_sub_u32 s17, 637, s4
        s_lshl_b32 s5, s17, 13
        s_add_u32 s5, s5, {W_Y}
        s_sub_u32 s17, 16, s20
        s_and_b32 s17, s17, 15
        s_lshl_b32 s17, s17, 9
        s_add_u32 s8, s5, s17
        s_sub_u32 s17, 15, s20
        s_lshl_b32 s17, s17, 9
        s_sub_u32 s18, 1, s31
        s_lshl_b32 s18, s18, 8
        s_add_u32 s17, s17, s18
        s_add_u32 s5, s5, s17
        s_mov_b32 s6, -32768
        L_l_mird:""")
        self.lds_spin(12, SY_P, 4, 16)
        for n in range(5):
            for i in range(4): A(f"ds_read_b32 v{172+4*n+i}, v{28+n} offset:{16*PROW*i}")
        self.lds_spin(12, SY_G, 1, 16)
        def chk(b, first):
            A(f"v_perm_b32 v20, v{b+1}, v{b}, s60\nv_perm_b32 v21, v{b+3}, v{b+2}, s61")
            A("v_bitop3_b32 v22, v20, v21, v55 bitop3:0x56" if first else "v_bitop3_b32 v20, v20, v21, v55 bitop3:0x56\nv_or_b32 v22, v22, v20")
        A("s_mov_b32 s60, 0x0c0c0400\ns_mov_b32 s61, 0x04000c0c\ns_mov_b32 s19, 0\nL_l_yl:\ns_mov_b32 s62, s5\ns_mov_b32 s63, s8")
        self.stamp("L", "Yok")
        for n in range(5):
            A(f"buffer_load_dwordx4 {vr(192+4*n,4)}, v24, s[44:47], s62 offen sc1\ns_add_u32 s62, s62, s6")
        A("s_cmp_ge_u32 s15, 4\ns_cbranch_scc1 L_l_ex")
        for n in range(5): A(f"s_waitcnt vmcnt({4-n})"); chk(192+4*n, n == 0)
        A("s_branch L_l_yc\nL_l_ex:")
        for n in range(5):
            A(f"buffer_load_dwordx4 {vr(212+4*n,4)}, v25, s[44:47], s63 offen sc1\ns_add_u32 s63, s63, s6")
        for n in range(5): A(f"s_waitcnt vmcnt({9-n})"); chk(192+4*n, n == 0)
        for n in range(5):
            A(f"s_waitcnt vmcnt({4-n})"); chk(212+4*n, False)
            A(f"v_mov_b32 v{192+4*n}, v{212+4*n}\nv_swap_b32 v{193+4*n}, v{195+4*n}")
        A(f"""L_l_yc:
        v_cmp_ne_u32 vcc, 0, v22
        {self.spin_guard("L_l_yd") or "s_nop 1"}
        s_cbranch_vccz L_l_yd
        s_sleep {self.yret}
        s_branch L_l_yl
        L_l_yd:""")
        A("s_waitcnt vmcnt(0) lgkmcnt(0)")
        for n in range(5):
            for i in range(4): A(f"v_add_f32 v{172+4*n+i}, v{172+4*n+i}, v{192+4*n+i}\nds_write_b32 v{28+n}, v{172+4*n+i} offset:{16*PROW*i}")
        A("s_waitcnt lgkmcnt(0)")
        self.stamp("L", "ydone")
        A("s_barrier")
        A("""s_or_b32 s17, s2, s16
        s_cmp_eq_u32 s17, 0
        s_cbranch_scc0 L_l_noep
        v_mov_b32 v8, 0
        s_mov_b64 exec, 1
        buffer_store_dword v55, v8, s[44:47], 0 offen sc1
        s_mov_b64 exec, -1
        L_l_noep:""")

    def build(self):
        A = self.A
        self.prologue()
        self.l_setup()
        A("s_cmp_eq_u32 s34, 1\ns_cbranch_scc1 L_l_D")
        nl = self.nstamp["L"]
        A("s_cmp_eq_u32 s33, 0\ns_cbranch_scc1 L_l_4")
        self.l_phase1("5"); self.l_gap(); self.l_gap1(); self.l_fft(); self.l_gap2(); self.l_y()
        self.dump_stamps("L")
        A("s_endpgm\nL_l_D:")
        self.nstamp["L"] = nl
        self.l_setup_d(); self.l_phase1("D")
        A("L_l_4:")
        self.nstamp["L"] = nl
        self.l_phase1("4")
        self.g_phase0()
        A("s_cmp_eq_u32 s34, 1\ns_cbranch_scc1 L_gD\ns_cmp_eq_u32 s33, 0\ns_cbranch_scc1 L_g4")
        n0 = self.nstamp["G"]
        self.g_main("5", 5); self.g_epi_h(5); A("s_branch L_g_issued")
        self.nstamp["G"] = n0
        self.g_main_d(); self.g_epi_z(); A("s_branch L_g_issued")
        self.nstamp["G"] = n0
        self.g_main("4", 4); self.g_epi_h(4)
        self.g_phase2()
        self.dump_stamps("G")
        A.label("L_end")
        hdr = open("cdna_kernels/" + KNAME[:-7] + ".s.ref").read().split("; Override")[0]
        s = hdr + f"; @launch grid=(256,1,1) block=(512,1,1) lds={LDS_BYTES}\n" + '.amdgcn_target "amdgcn-amd-amdhsa--gfx950"\n'
        return s + kernel(KNAME, A.text(), vgpr=256, accum=256).replace("s_endpgm\n.section .rodata", "s_endpgm\n.fill 512, 4, 0xbf810000\n.section .rodata")

if __name__ == "__main__":
    for m in ("", "lb", "st", "ck"):
        g = Gen(mode=m); open(f"megaP{m}.s", "w").write(g.build()); print(g.names)
    open("megaP_rel.s", "w").write(Gen(dbg=False).build())
    for k, v in {"a": dict(rtail=2), "b": dict(rtail=6), "c": dict(rtail=8)}.items():
        open(f"megaP_{k}.s", "w").write(Gen(mode="lb", **v).build())
```

```python
import sys, struct
from alib import *

KNAME = "parallel_sum__spectral_fnet__dense_activation_squared_relu__prompt_kernel"
SLOT = 36864; NS = 4; DS = 28672
LDS_BYTES = 163840
L_STG = 4*SLOT
L_STG3 = 3*SLOT
M = 155648
L_CORR = M; L_STAT = M + 5120; L_SYNC = M + 7168
L_CST = 3*SLOT + 4096
SY_ACK, SY_ZW, SY_ZF, SY_FW, SY_P, SY_H, SY_ZI, SY_W2, SY_ZOK, SY_FD = 0, 4, 8, 12, 16, 20, 24, 32, 48, 56
SY_G = 28; SY_FL = 64; SY_WI = 68; SY_H2 = 72; SY_S1 = 76; SY_X = 84; SY_Y = 88
SY_C = 80
SY_ST = 256
ZROW = 272; ZB = 3*DS
LW = [0, 35840, 73728, 104448]; L_P = 135168; PROW = 320
KS0 = [24, 32, 40, 47]; NREG = 7
FTM = lambda f: f + 24 if f < 20 else f - 20 if f < 32 else f + 12 if f < 42 else f - 30
W_F0, W_F1, W_FY = 0x40000, 0x48000, 0x50000
W_CS = 0x60000
W_STAT = 0x10000; W_DBG = 0x20000
W_W2F = 0x100000; W_H = 0x400000; W_Z = 0xB00000; PZ = 0x150000; W_Y = 0xE00000
WS_SIZE = 0x1200000
HC = 54*2048
tA = [[0,192,320,640,768,896,0,192],[512,1024,1216,1344,1472,1600,0,192]]
tB = [[128,160,448,0,0,0,128,160],[480,1152,1184,0,0,0,128,160]]
SCHED = [[0,3,1,2,4,7,5,6,8,9],[0,1,4,2,3,5,8,6,7,9],[1,0,2,5,3,4,6,9,7,8],[2,0,1,3,6,4,5,7,8,9]]
XSH = (0,2,5,7,1)
def fl(x): return "0x%08x" % struct.unpack("<I", struct.pack("<f", x))[0]

class Gen:
    def __init__(self, dbg=True, spin=200000, mode='', lprio=0, noslice=False, ysleep=16, zsleep=8, zret=8, zbound=0, dfirst=1, wprio=0, wgate=3, npw=5, h2at=4, ofl=' sc1', npreb=1, w2t=0, pgate=1, hplan=None, plan=1, off=(), p1only=False, rtail=4, yret=6, yprio=3, map2=0, nbd=5, nbc=0, bgate=0, spf=0, nb0=0, voff=1, skew=0, roles=None, hsleep=10, nb=0, dpf=0, zsleep4=12, zsleepd=0, ystep=11, ngate=4, touch=False, sched=None, xsh=None, gbit=10, rmul=0, npre=0, la=3, pfi=()):
        self.A = Asm(); self.dbg = dbg; self.SPIN = spin; self.mode = mode; self.lprio = lprio; self.noslice = noslice; self.la = la; self.ofl = ofl; self.npreb = npreb; self.w2t = w2t; self.pgate = pgate; self.hplan = hplan; self.plan = plan; self.off = off; self.p1only = p1only; self.rtail = rtail; self.yprio = yprio; self.yret = yret; self.h2at = h2at; self.bgate = bgate; self.nbc = nbc; self.nbd = nbd; self.map2 = map2; self.npw = npw; self.spf = spf; self.wgate = wgate; self.nb0 = nb0; self.voff = voff; self.skew = skew
        roles = roles or [(0,0,0),(0,1,0),(0,2,0),(0,3,0),(1,0,0),(1,1,0),(1,2,0),(1,3,0)]
        self.rolemap = sum(((g << 3) | (jh << 2) | e) << (4*i) for i, (jh, e, g) in enumerate(roles)); self.hsleep = hsleep; self.nb = nb; self.dpf = dpf; self.wprio = wprio; self.dfirst = dfirst; self.zsleep4 = zsleep4; self.zsleepd = zsleepd; self.ystep = ystep; self.zbound = zbound; self.ngate = ngate; self.sched = sched or SCHED; self.xsh = xsh or XSH; self.touch = touch; self.zret = zret; self.pfi = pfi; self.gbit = gbit; self.rmul = rmul; self.npre = npre; self.ysleep = ysleep; self.zsleep = zsleep
        self.nstamp = {"G": 0, "L": 0}; self.names = {}; self.uid = 0
    def lab(self, p):
        self.uid += 1; return f"L_{p}{self.uid}"
    @staticmethod
    def sreg(i): return 86+2*i if i < 8 else [60, 62, 14][i-8]
    def stamp(self, role, name=''):
        if not self.dbg: return
        sel = {"": {"G": ["start","B0","B10","issued","acked","Hok","p2done","end"], "L": ["B9","w2iss","Zok","fftdone","w2land","Yok","ydone"]},
               "lb": {"G": ["start","B0","fin","B10","issued","acked","w2iss","Hok"], "L": ["B0","B1","B3","B5","B7","B9"]},
               "l2": {"G": ["start","B0","B10","issued","acked","w2iss","Hok","B15"], "L": ["B5","W6","B6","W7","B7","W8","B8"]},
               "l1": {"G": ["start","B0","B10","issued","acked","w2iss","Hok","B15"], "L": ["B0","W1","B1","W2","B2","W3","B3"]},
               "fl": {"G": ["start","B10","issued","acked","flagack","w2iss","Hok","B15"], "L": ["B9","zpoll","Zok","zland","fftst","fftdone"]},
               "nv": {"G": ["start","B10","issued","acked","w2iss","Hok","p2done"], "L": ["Zok","fftdone","w2iss","w2land","Yok","ydone"]},
               "p2": {"G": ["start","Hok","S0","S1","S4","S7","S10","p2done"], "L": ["Zok","fftdone","w2iss","w2land","Yok","ydone"]},
               "ck": {"G": ["start","B0","B10","issued","acked","Hok","p2done","end"], "L": []},
               "s0": {"G": ["start","gl","preBa","Ba","xland","p0done","B0"], "L": ["pre-issue","preBa","Ba","rdy","B0"]},
               "st": {"G": ["start","B10","zw","issued","acked","w2iss","Hok","B15"], "L": ["pre-issue","B0","B9","w2iss","zland"]}}[self.mode]
        if name not in sel[role]: return
        i = self.nstamp[role]; self.nstamp[role] += 1
        assert i < 8, name
        self.names.setdefault(role, {})[i] = name
        r = self.sreg(i); self.A(f"s_memtime s[{r}:{r+1}]" if not (self.mode == "ck" and role == "G") else f"s_memrealtime s[{r}:{r+1}]")
    def dump_stamps(self, role):
        if not self.dbg: return
        A = self.A
        A(f"""s_waitcnt lgkmcnt(0)
        s_lshl_b32 s17, s2, 3
        s_add_u32 s17, s17, s3
        s_lshl_b32 s17, s17, 6
        s_add_u32 s17, s17, {W_DBG}
        v_mov_b32 v1, s17""")
        for i in range(self.nstamp[role]):
            A(f"v_mov_b32 v2, s{self.sreg(i)}\nbuffer_store_dword v2, v1, s[44:47], 0 offen offset:{4*i}")
        A("s_memrealtime s[72:73]\ns_waitcnt lgkmcnt(0)\nv_mov_b32 v2, s70\nbuffer_store_dword v2, v1, s[44:47], 0 offen offset:32\nv_mov_b32 v2, s72\nbuffer_store_dword v2, v1, s[44:47], 0 offen offset:36\ns_getreg_b32 s72, hwreg(HW_REG_XCC_ID)\nv_mov_b32 v2, s72\nbuffer_store_dword v2, v1, s[44:47], 0 offen offset:40\ns_getreg_b32 s72, hwreg(HW_REG_HW_ID)\nv_mov_b32 v2, s72\nbuffer_store_dword v2, v1, s[44:47], 0 offen offset:44")
        A("s_waitcnt vmcnt(0)")
    def spin_guard(self, done):
        if self.SPIN: return f"s_add_u32 s19, s19, 1\ns_cmp_gt_u32 s19, {self.SPIN}\ns_cbranch_scc1 {done}"
        return ""
    def lds_spin(self, vaddr, off, val, vt, bound=None, nosleep=False):
        l = self.lab("sp"); d = l + "d"
        self.A(f"""s_mov_b32 s19, 0
        {l}:
        ds_read_b32 v{vt}, v{vaddr} offset:{off}
        s_waitcnt lgkmcnt(0)
        v_readfirstlane_b32 s27, v{vt}
        {self.spin_guard(d) if bound is None else f"s_add_u32 s19, s19, 1; s_cmp_gt_u32 s19, {bound}; s_cbranch_scc1 {d}".replace("; ", chr(10))}
        s_cmp_ge_u32 s27, {val}
        s_cbranch_scc1 {d}
        {"" if nosleep else "s_sleep 1"}
        s_branch {l}
        {d}:""")
    def lw(self, sd, sk):
        self.A(f"s_mul_i32 s{sd}, s{sk}, 35840\ns_cmp_ge_u32 s{sk}, 2\ns_cselect_b32 s27, 2048, 0\ns_add_u32 s{sd}, s{sd}, s27\ns_cmp_eq_u32 s{sk}, 3\ns_cselect_b32 s{sd}, {LW[3]}, s{sd}")
    def lds_set(self, vaddr, off, vt):
        self.A(f"v_mov_b32 v{vt}, 1\nds_write_b32 v{vaddr}, v{vt} offset:{off}")
    def lds_inc(self, vaddr, off, vt):
        self.A(f"""v_mov_b32 v{vt}, 1
        s_mov_b64 exec, 1
        ds_add_u32 v{vaddr}, v{vt} offset:{off}
        s_mov_b64 exec, -1""")
    def poll(self, loads, vtag, first_issued=False, sleep=4):
        A = self.A; l = self.lab("po"); d = l + "d"; c = l + "c"
        A("s_mov_b32 s19, 0")
        if first_issued: A(f"s_branch {c}")
        A(f"{l}:")
        for (dst, n, va, so, ex) in loads:
            if ex: A(ex)
            A(f"buffer_load_dword{'x%d' % n if n > 1 else ''} {vr(dst, n)}, v{va}, s[44:47], {so} offen sc1")
            if ex and len(loads) > 1: A("s_mov_b64 exec, -1")
        A(f"s_waitcnt vmcnt(0)\n{c}:")
        for k, (dst, n, va, so, ex) in enumerate(loads):
            if ex: A(ex)
            if n == 1: A(f"v_cmp_ne_u32 vcc, v{vtag}, v{dst}")
            else:
                for i in range(n): A(f"v_xor_b32 v{dst+i}, v{vtag}, v{dst+i}")
                A(f"v_or3_b32 v{dst}, v{dst}, v{dst+1}, v{dst+2}\nv_or_b32 v{dst}, v{dst}, v{dst+3}\nv_cmp_ne_u32 vcc, 0, v{dst}")
            A("s_mov_b64 exec, -1")
            if len(loads) > 1:
                A("s_nop 0\ns_mov_b64 s[64:65], vcc" if k == 0 else "s_nop 0\ns_or_b64 vcc, vcc, s[64:65]")
        A(self.spin_guard(d) or "s_nop 1")
        A(f"s_cbranch_vccz {d}\ns_sleep {sleep}\ns_branch {l}\n{d}:")

    def spoll(self, base, loads, words, soff, first_issued=False, sleep=2, issue_only=False):
        A = self.A
        ld = "\n".join(f"s_load_dwordx{n} s[{d}:{d+n-1}], s[12:13], {soff} offset:{base+imm} glc" for d, n, imm in loads)
        if issue_only: A(ld); return
        l = self.lab("sq"); d_ = l + "d"; c = l + "c"
        A("s_mov_b32 s19, 0")
        if first_issued: A(f"s_branch {c}")
        A(f"{l}:\n{ld}\n{c}:\ns_waitcnt lgkmcnt(0)")
        w = list(words); f = w[0]
        A(f"s_xor_b32 s27, s{f}, s14")
        for x in w[1:]: A(f"s_xor_b32 s{x}, s{x}, s14\ns_or_b32 s27, s27, s{x}")
        A(self.spin_guard(d_))
        A(f"s_cmp_eq_u32 s27, 0\ns_cbranch_scc1 {d_}\ns_sleep {sleep}\ns_branch {l}\n{d_}:")

    def prologue(self):
        A = self.A
        A("s_cmp_ge_u32 s2, 256\ns_cbranch_scc1 L_end")
        self.stamp("G", "start"); self.nstamp["L"] = self.nstamp["G"]
        if self.dbg: A("s_memrealtime s[70:71]")
        A("""
        s_getpc_b64 s[18:19]
        L_pf:
        s_lshr_b32 s21, s2, 3         ; slot
        v_lshlrev_b32 v2, 4, v0
        s_lshl_b32 s17, s21, 11
        v_add_u32 v2, s17, v2
        v_cmp_gt_u32 vcc, 128, v0
        s_cmp_lt_u32 s17, L_end - L_pf
        s_cselect_b64 vcc, vcc, 0
        s_cbranch_vccz L_nopf
        global_load_dwordx4 v[252:255], v2, s[18:19]
        L_nopf:
        s_load_dwordx2 s[4:5], s[0:1], 0
        s_load_dwordx2 s[6:7], s[0:1], 48
        s_load_dwordx2 s[12:13], s[0:1], 96
        s_load_dwordx4 s[8:11], s[0:1], 24
        v_lshrrev_b32 v1, 6, v0
        s_bfe_u32 s22, s2, 0x20001    ; xr
        v_readfirstlane_b32 s3, v1    ; wave 0..7
        s_and_b32 s23, s2, 1          ; xc
        s_lshr_b32 s24, s21, 3        ; rbl
        s_and_b32 s25, s21, 7         ; cbl
        s_lshl2_add_u32 s26, s22, s24 ; rb
        s_and_b32 s16, s3, 3
        s_cmp_ge_u32 s25, 6
        s_cselect_b32 s34, 1, 0       ; isDFT
        s_cmp_lt_u32 s3, 6
        s_cbranch_scc1 L_notld
        v_and_b32 v0, 63, v0""")
    def cols(self):
        def pack(t):
            v = 0
            for i, x in enumerate(t[:6]): v |= (x//32) << (5*i) if False else 0
            return v
        pa = [sum((x//64) << (5*i) for i, x in enumerate(t[:6])) for t in tA]
        pb = [sum((1 if tB[c][i] > tA[c][i] else 0) << i for i in range(3)) for c in range(2)]
        self.A(f"""s_cmp_eq_u32 s23, 0
        s_mov_b32 s28, {pa[1]:#x}
        s_cselect_b32 s28, {pa[0]:#x}, s28
        s_cselect_b32 s30, {pb[0]}, {pb[1]}
        s_mul_i32 s27, s25, 5
        s_lshr_b32 s28, s28, s27
        s_and_b32 s28, s28, 31
        s_lshl_b32 s28, s28, 1        ; colA/32
        s_bitcmp1_b32 s30, s25
        s_cselect_b32 s30, 4, -1
        s_add_u32 s30, s30, s28       ; colB/32
        s_cmp_lt_u32 s25, 3
        s_cselect_b32 s33, 1, s34     ; T5""")
    def roles(self):
        self.A("""s_lshl3_add_u32 s29, s23, s25  ; cb
        s_and_b32 s15, s21, 3
        s_lshl2_add_u32 s15, s23, s15 ; eb
        s_bfe_u32 s31, s21, 0x10002   ; jh
        s_mov_b32 s20, s26            ; rb2
        s_lshl1_add_u32 s27, s26, s23
        s_mul_i32 s21, s27, 3
        s_add_u32 s21, s21, s25
        s_add_u32 s21, s21, 61
        s_cmp_lt_u32 s25, 3
        s_cselect_b32 s17, 99, 0
        s_add_u32 s21, s21, s17
        s_lshl1_add_u32 s27, s27, s25
        s_sub_u32 s27, s27, 6
        s_cmp_eq_u32 s34, 1
        s_cselect_b32 s21, s27, s21   ; p'""")
    def notld(self):
        A = self.A
        A("""L_notld:
        s_load_dwordx2 s[62:63], s[0:1], 56
        s_load_dwordx4 s[80:83], s[0:1], 64
        s_load_dwordx2 s[84:85], s[0:1], 80
        v_and_b32 v0, 63, v0""")
        A("s_cmp_lt_u32 s3, 4\ns_cbranch_scc1 L_gstart")
        self.cols(); self.roles()
    def common_srds(self):
        A = self.A
        A("s_waitcnt lgkmcnt(0)")
        srd(A, 36, 4, 2048*1280)
        srd(A, 44, 12, WS_SIZE)
        A("s_load_dword s14, s[12:13], 0")
    def get_tag(self):
        self.A("s_waitcnt lgkmcnt(0)\ns_mul_i32 s14, s14, 0x9E3779B1\ns_add_u32 s14, s14, 0x85EBCA6B")
    def w2_task_addr(self, st, so, sd, vo):
        self.A(f"""
        v_lshrrev_b32 v{vo}, 3, v0
        v_mul_u32_u24 v{vo}, 1280, v{vo}
        v_and_b32 v{vo+1}, 7, v0
        v_lshl_add_u32 v{vo}, v{vo+1}, 4, v{vo}
        s_mul_i32 s17, s{st}, 6554
        s_lshr_b32 s17, s17, 16        ; ks
        s_mul_i32 s18, s17, 10
        s_sub_u32 s18, s{st}, s18      ; cl
        s_mul_i32 s{so}, s17, 40960
        s_cmp_lt_u32 s17, 42
        s_cselect_b32 s27, 12, -30
        s_cmp_lt_u32 s17, 32
        s_cselect_b32 s27, -20, s27
        s_cmp_lt_u32 s17, 20
        s_cselect_b32 s27, 24, s27
        s_add_u32 s17, s17, s27
        s_mul_i32 s{sd}, s17, 40960
        s_lshl_b32 s17, s18, 12
        s_add_u32 s{sd}, s{sd}, s17
        s_add_u32 s{sd}, s{sd}, {W_W2F}
        s_lshl_b32 s17, s18, 7
        s_add_u32 s{so}, s{so}, s17""")
    def w2_task_dma(self, so, sstg, vo, srd_):
        for n in range(4):
            self.A(f"s_add_u32 m0, s{sstg}, {1024*n}\n" + ("s_nop 0" if n == 0 else f"s_add_u32 s{so}, s{so}, 10240") + f"\nbuffer_load_dwordx4 v{vo}, s[{srd_}:{srd_+3}], s{so} offen lds")
    def w2_task_fin(self, sd, sstg, t, d, wait=None):
        A = self.A
        A(f"""v_lshrrev_b32 v{t}, 2, v0
        v_lshlrev_b32 v{t}, 7, v{t}
        v_and_b32 v{t+1}, 3, v0
        v_lshl_add_u32 v{t}, v{t+1}, 3, v{t}
        v_add_u32 v{t}, s{sstg}, v{t}
        v_lshlrev_b32 v{t+1}, 4, v0""")
        if wait: A(wait)
        for nl in range(4):
            for k in range(2): A(f"ds_read_b64_tr_b16 {vr(d+4*nl+2*k,2)}, v{t} offset:{2048*k + 32*nl}")
        for nl in range(4):
            A(f"s_waitcnt lgkmcnt({6-2*nl})\nbuffer_store_dwordx4 {vr(d+4*nl,4)}, v{t+1}, s[44:47], s{sd} offen offset:{1024*nl} sc1")

    def g_phase0(self):
        A = self.A
        A.label("L_gstart")
        A(f"""
        s_lshl3_add_u32 s29, s23, s25
        v_and_b32 v11, 31, v0          ; l'
        v_lshrrev_b32 v12, 5, v0       ; hh
        s_mov_b32 s17, 81920
        v_mul_lo_u32 v13, v12, s17
        v_lshl_add_u32 v13, v11, 4, v13
        s_and_b32 s17, s29, 3
        s_lshl_b32 s17, s17, 2
        s_add_u32 s17, s17, s16
        s_lshl_b32 s48, s17, 1         ; j0 = 8(cb&3)+2g
        s_lshr_b32 s49, s29, 2         ; cb>>2
        s_lshl_b32 s50, s26, 2
        s_add_u32 s50, s50, s49        ; c
        s_lshl_b32 s17, s48, 6
        s_add_u32 s17, s17, s50
        s_mul_i32 s51, s17, 1280
        """)
        self.common_srds()
        A("""
        buffer_load_dwordx4 v[20:23], v13, s[36:39], s51 offen
        buffer_load_dwordx4 v[24:27], v13, s[36:39], s51 offen offset:512
        s_mov_b32 exec_lo, 0xffff
        s_mov_b32 exec_hi, 0xffff
        buffer_load_dwordx4 v[28:31], v13, s[36:39], s51 offen offset:1024
        s_mov_b64 exec, -1
        """)
        self.stamp("G", "gl")
        self.g_consts()
        self.cols(); self.roles()
        self.g_addr_setup()
        for i in range(80): A(f"v_mov_b32 v{self.ACC+i}, 0")
        self.get_tag()
        self.stamp("G", "preBa")
        A("s_barrier")
        self.stamp("G", "Ba")
        A("s_waitcnt vmcnt(0)")
        self.stamp("G", "xland")
        lo16 = "s_mov_b32 exec_lo, 0xffff\ns_mov_b32 exec_hi, 0xffff"
        A("v_mov_b32 v40, 0x3f803f80\nv_mov_b32 v41, 0xbf803f80")
        for k in range(6): A(f"v_mov_b32 v{56+k}, 0")
        def dots(d):
            k = 3*(d & 1)
            A(f"v_dot2c_f32_bf16 v{56+k}, v{20+d}, v40\nv_dot2c_f32_bf16 v{57+k}, v{20+d}, v41\nv_dot2c_f32_bf16 v{58+k}, v{20+d}, v{20+d}")
        for d in range(8): dots(d)
        A(lo16)
        for d in range(8, 12): dots(d)
        A("s_mov_b64 exec, -1\ns_nop 2\nv_add_f32 v56, v56, v59\nv_add_f32 v57, v57, v60\nv_add_f32 v59, v58, v61")
        regs = [56, 57, 59]; t = 60
        for mode in ("quad_perm:[1,0,3,2]", "quad_perm:[2,3,0,1]", "row_half_mirror", "row_mirror"):
            for r in regs: A(f"v_add_f32_dpp v{r}, v{r}, v{r} {mode} row_mask:0xf bank_mask:0xf")
        for k, r in enumerate(regs): A(f"v_mov_b32 v{t+k}, v{r}")
        A("s_nop 1")
        for k, r in enumerate(regs): A(f"v_permlane16_swap_b32 v{r}, v{t+k}")
        for k, r in enumerate(regs): A(f"v_add_f32 v{r}, v{r}, v{t+k}")
        A("""v_mul_f32 v58, 0x3acccccd, v56 ; mean
        v_fma_f32 v59, -v58, v56, v59
        v_max_f32 v59, 0, v59""")
        A(f"""
        v_mul_f32 v59, 0x3acccccd, v59          ; var
        v_cvt_pk_bf16_f32 v59, v59, v59
        v_lshlrev_b32 v59, 16, v59
        v_add_f32 v59, 0x3727c5ac, v59
        v_cvt_pk_bf16_f32 v59, v59, v59
        v_lshlrev_b32 v59, 16, v59
        v_sqrt_f32 v59, v59
        v_mov_b32 v35, s14
        v_cvt_pk_bf16_f32 v32, -v58, v59        ; (-m, sd)
        v_and_b32 v59, 0xffff0000, v32
        v_rcp_f32 v33, v59                      ; r
        s_lshl_b32 s17, s16, 1
        v_mul_f32 v34, v33, v57                 ; z320
        v_lshrrev_b32 v36, 5, v0
        v_add_u32 v36, s17, v36                 ; i = 2g + hh
        v_lshlrev_b32 v37, 4, v36
        v_add_u32 v37, {L_SYNC + SY_ST}, v37
        s_mov_b32 exec_lo, 1
        s_mov_b32 exec_hi, 1
        ds_write_b128 v37, v[32:35]
        s_mov_b64 exec, -1
        """)
        A("s_waitcnt lgkmcnt(0)")

    XA = 2; WA = 4; FR = [16, 64]; ACC = 112; CSA = 192; SEL = 204
    MF = "v_mfma_f32_16x16x32_bf16"
    def g_addr_setup(self):
        XA, WA = self.XA, self.WA; A = self.A
        A(f"""
        s_lshl_b32 s17, s16, 12
        v_and_b32 v60, 15, v0
        v_lshrrev_b32 v61, 4, v0          ; G
        v_lshrrev_b32 v62, 1, v60
        v_xor_b32 v62, v62, v61
        v_lshlrev_b32 v62, 4, v62
        v_lshl_add_u32 v62, v60, 7, v62
        v_add_u32 v{XA}, s17, v62
        v_xor_b32 v{XA+1}, 64, v{XA}
        v_bfe_u32 v60, v0, 2, 2           ; r4
        v_lshl_add_u32 v62, v61, 3, v60   ; 8G + r4
        v_and_b32 v61, 1, v61
        v_lshlrev_b32 v61, 5, v61
        v_and_b32 v63, 3, v0
        v_lshl_add_u32 v61, v63, 3, v61   ; (G&1)*32 + cq*8
        v_lshl_add_u32 v{WA+8}, v62, 6, v61
        v_add_u32 v{WA+8}, 32768, v{WA+8}
        v_xor_b32 v{WA+9}, 32, v{WA+8}
        v_lshl_add_u32 v62, v62, 8, v61
        v_lshl_add_u32 v62, v60, 6, v62
        v_add_u32 v62, 16384, v62
        """)
        for j in range(8): A(f"v_xor_b32 v{WA+j}, {32*j}, v62")
        A(f"""v_and_b32 v60, 15, v0
        s_lshl_b32 s17, s16, 8
        s_add_u32 s17, s17, {L_STAT}
        v_lshl_add_u32 v240, v60, 3, s17
        v_lshlrev_b32 v241, 3, v0
        v_add_u32 v241, {L_CORR}, v241
        v_mov_b32 v242, {L_SYNC}
        v_mov_b32 v243, 1
        v_lshrrev_b32 v60, 4, v0
        v_cmp_eq_u32 s[66:67], 0, v60
        v_cmp_eq_u32 s[68:69], 1, v60""")
        for i in range(192, 240):
            if i & 2: A(f"v_mov_b32 v{i}, 0")
    def reads(self, u, T, off):
        f = self.FR[u]; L = [f"ds_read_b128 {vr(f+4*jt,4)}, v{self.XA+u} offset:{off + 2048*jt}" for jt in range(2)]
        for j in range(2*T):
            for t in range(2):
                o = off + (8192*u + 1024*t if j < 8 else 2048*u + 256*t)
                L.append(f"ds_read_b64_tr_b16 {vr(f+8+4*j+2*t,2)}, v{self.WA+j} offset:{o}")
        return L
    def mfmas(self, u, T):
        f = self.FR[u]
        return [f"{self.MF} {vr(self.ACC+8*j+4*jt,4)}, {vr(f+8+4*j,4)}, {vr(f+4*jt,4)}, {vr(self.ACC+8*j+4*jt,4)}" for j in range(2*T) for jt in range(2)]
    @staticmethod
    def interleave(ms, rs):
        out = []; n = len(ms); k = 0
        for i, m in enumerate(ms):
            out.append(m)
            cnt = (len(rs) - k + (n - i) - 1) // (n - i)
            out += rs[k:k+cnt]; k += cnt
        return out
    def csm(self, u, T, wv):
        f = self.FR[u]; c = self.CSA
        L = [f"{self.MF} {vr(c+4*j,4)}, {vr(self.SEL,4)}, {vr(f+8+4*j,4)}, {vr(c+4*j,4)}" for j in range(2)]
        if T == 5 and (wv >> 1) == u:
            L.append(f"{self.MF} {vr(c+8,4)}, {vr(self.SEL,4)}, {vr(f+8+4*(8+(wv&1)),4)}, {vr(c+8,4)}")
        return L
    def g_main(self, tag, T):
        A = self.A
        A.label(f"L_g{tag}")
        t = tag
        A(f"s_mov_b32 s18, 0\ns_mov_b32 s17, {2*SLOT}")
        A("s_barrier")
        self.stamp("G", "B0")
        A("\n".join(self.reads(0, T, 0)))
        A(".p2align 3")
        A.label(f"L_g{t}_loop")
        def step(u, off, pre=None):
            ms = self.mfmas(u, T)
            A("s_waitcnt lgkmcnt(0)\ns_nop 0")
            if pre:
                for p_ in pre: A(ms.pop(0)); A(p_)
            k = len(ms) - self.rtail
            A("\n".join(self.interleave(ms[:k], self.reads(u ^ 1, T, off)) + ms[k:]))
        step(0, 0)
        step(1, SLOT, ("s_add_u32 s18, s18, 1\ns_cmp_eq_u32 s18, 5", "s_barrier\ns_nop 0"))
        adv = [f"v_add_u32 v{2+i}, s17, v{2+i}" for i in range(2 + 2*T)]
        ms = self.mfmas(0, T); k = len(ms) - self.rtail
        A("s_waitcnt lgkmcnt(0)\ns_nop 0")
        A("\n".join(self.interleave(ms[:k], self.reads(1, T, SLOT)) + self.interleave(ms[k:], adv)))
        step(1, 0, (f"s_cbranch_scc1 L_g{t}_fin\ns_sub_u32 s17, 0, s17", "s_barrier\ns_nop 0"))
        A(f"s_branch L_g{t}_loop")
        A.label(f"L_g{tag}_fin")
        self.stamp("G", "fin")
        fill = [f"s_mov_b64 exec, 1\nds_add_u32 v242, v243 offset:{SY_S1}\ns_mov_b64 exec, -1", "ds_read_b64 v[248:249], v240", "ds_read_b64 v[250:251], v240 offset:128"]
        fill += [f"ds_read_b64 {vr(192+4*j,2)}, v241 offset:{512*j}" for j in range(2*T)]
        ms = self.mfmas(1, T)[1:]
        A("\n".join(self.interleave(ms[:-6], fill)))
        sel = [f"s_waitcnt lgkmcnt({2*T})"]
        for jt in range(2): sel += [f"v_cndmask_b32 v{233+4*jt}, 0, v{248+2*jt}, s[66:67]", f"v_cndmask_b32 v{232+4*jt}, v{233+4*jt}, v{249+2*jt}, s[68:69]"]
        A("\n".join(self.interleave(ms[-6:-1], sel) + ms[-1:]))
        A("s_waitcnt lgkmcnt(0)")
        for j in range(2*T):
            for jt in range(2): A(f"{self.MF} {vr(self.ACC+8*j+4*jt,4)}, {vr(192+4*j,4)}, {vr(232+4*jt,4)}, {vr(self.ACC+8*j+4*jt,4)}")
        self.stamp("G", "B10")
        if self.p1only: self.dump_stamps("G"); A("s_endpgm")
    def g_main_d(self):
        A = self.A; XA = self.XA; WU = 4; XB = 6; WB = 8; ACC = self.ACC
        RAW = [192, 208]; XF = [16, 24]; WF = [32, 72]; T = 224
        A.label("L_gD")
        A(f"""s_lshl_b32 s17, s16, 12
        s_sub_u32 s17, 16384, s17""")
        for u in range(2): A(f"v_add_u32 v{WU+u}, s17, v{XA+u}\nv_add_u32 v{XB+u}, {DS}, v{XA+u}\nv_add_u32 v{WB+u}, {DS}, v{WU+u}")
        A(f"""s_bitcmp1_b32 s25, 0
        s_cselect_b32 s48, -1.0, 1.0
        s_mov_b32 s18, 0
        s_mov_b32 s49, 0xffff0000
        s_mov_b32 s50, 0
        s_mov_b32 s51, 1
        s_barrier""")
        self.stamp("G", "B0")
        raw = lambda u: [f"ds_read_b128 {vr(RAW[u]+8*jt+4*h,4)}, v{(XB if h else XA)+u} offset:{2048*jt}" for jt in range(2) for h in range(2)]
        wrd = lambda u: [f"ds_read_b128 {vr(WF[u]+4*j,4)}, v{(WU if j < 6 else WB)+u} offset:{2048*(j if j < 6 else j-6)}" for j in range(10)]
        def fold(u):
            out = []
            for jt in range(2):
                r = RAW[u] + 8*jt; x = XF[u] + 4*jt
                for h in range(2):
                    d, e = 2*h, 2*h+1; t = T + 8*h; w = t + 4
                    out += [f"v_lshlrev_b32 v{t}, 16, v{r+d}", f"v_lshlrev_b32 v{t+2}, 16, v{r+4+d}", f"v_and_b32 v{t+1}, s49, v{r+d}", f"v_and_b32 v{t+3}, s49, v{r+4+d}",
                          f"v_lshlrev_b32 v{w}, 16, v{r+e}", f"v_lshlrev_b32 v{w+2}, 16, v{r+4+e}", f"v_fmac_f32 v{t}, s48, v{t+2}", f"v_fmac_f32 v{t+1}, s48, v{t+3}",
                          f"v_and_b32 v{w+1}, s49, v{r+e}", f"v_and_b32 v{w+3}, s49, v{r+4+e}", f"v_fmac_f32 v{w}, s48, v{w+2}", f"v_fmac_f32 v{w+1}, s48, v{w+3}",
                          f"v_cvt_pk_bf16_f32 v{x+d}, v{t}, v{t+1}", f"v_cvt_pk_bf16_f32 v{x+e}, v{w}, v{w+1}"]
            return out
        mf = lambda u: [f"{self.MF} {vr(ACC+8*j+4*jt,4)}, {vr(XF[u]+4*jt,4)}, {vr(WF[u]+4*j,4)}, {vr(ACC+8*j+4*jt,4)}" for j in range(10) for jt in range(2)]
        A("\n".join(raw(0) + raw(1) + wrd(0)))
        A("s_waitcnt lgkmcnt(14)")
        A("\n".join(fold(0)))
        A("s_barrier")
        A.label("L_gD_loop")
        A("s_waitcnt lgkmcnt(0)\ns_nop 0")
        sal = f"""s_add_u32 s18, s18, 1
        s_add_u32 s50, s50, 2
        s_cmp_ge_u32 s50, 5
        s_mov_b32 s52, {2*DS}
        s_cselect_b32 s52, {-3*DS & 0xffffffff:#x}, s52
        s_cselect_b32 s17, 5, 0
        s_sub_u32 s50, s50, s17
        s_add_u32 s51, s51, 2
        s_cmp_ge_u32 s51, 5
        s_mov_b32 s53, {2*DS}
        s_cselect_b32 s53, {-3*DS & 0xffffffff:#x}, s53
        s_cselect_b32 s17, 5, 0
        s_sub_u32 s51, s51, s17"""
        A("\n".join(self.interleave(mf(0), wrd(1) + [sal] + fold(1))))
        A("s_waitcnt lgkmcnt(0)\ns_cmp_eq_u32 s18, 5\ns_cbranch_scc1 L_gD_last")
        m1 = mf(1)
        A(m1[0])
        for i in range(4): A(f"v_add_u32 v{2+i}, s52, v{2+i}\nv_add_u32 v{XB+i}, s53, v{XB+i}")
        A(m1[1])
        A("s_barrier")
        A("\n".join(self.interleave(m1[2:10], raw(0) + raw(1) + wrd(0))))
        A("s_waitcnt lgkmcnt(14)")
        A("\n".join(self.interleave(m1[10:], fold(0))))
        A("s_branch L_gD_loop")
        A.label("L_gD_last")
        A(f"""s_mov_b64 exec, 1
        ds_add_u32 v242, v243 offset:{SY_S1}
        s_mov_b64 exec, -1
        s_cmp_eq_u32 s29, 6
        s_cselect_b32 s17, 0x4420, 0""")
        fill = [f"v_mov_b32 v{i}, 0" for i in range(193, 204) if i != 196] + ["v_writelane_b32 v200, s17, 0", "ds_read_b32 v192, v240", "ds_read_b32 v196, v240 offset:128"]
        A("\n".join(self.interleave(m1, fill)))
        A.label("L_gD_fin")
        A(f"""s_waitcnt lgkmcnt(0)
        {self.MF} {vr(ACC,4)}, v[192:195], v[200:203], {vr(ACC,4)}
        {self.MF} {vr(ACC+4,4)}, v[196:199], v[200:203], {vr(ACC+4,4)}""")
        self.stamp("G", "B10")
        if self.p1only: self.dump_stamps("G"); A("s_endpgm")
    def g_epi_h(self, T):
        A = self.A; ACC = self.ACC
        A(f"""
        v_lshlrev_b32 v11, 4, v0
        s_lshl_b32 s17, s26, 2
        s_add_u32 s17, s17, s16
        s_mul_i32 s17, s17, {HC}
        s_add_u32 s17, s17, {W_H}
        s_cmp_lt_u32 s28, 42
        s_cselect_b32 s27, 12, -30
        s_cmp_lt_u32 s28, 32
        s_cselect_b32 s27, -20, s27
        s_cmp_lt_u32 s28, 20
        s_cselect_b32 s27, 24, s27
        s_lshl_b32 s27, s27, 11
        s_add_u32 s17, s17, s27
        s_lshl_b32 s18, s30, 11
        s_add_u32 s18, s18, s17        ; tile 4
        s_lshl_b32 s19, s28, 11
        s_add_u32 s17, s17, s19        ; tile 0
        s_add_u32 s19, s17, 4096
        .p2align 3""")
        for m in range(T):
            o = 68 + 8*(m & 1); t = 84
            src = [ACC + 16*m + 8*(p >> 1 & 1) + 4*(p >> 2) + 2*(p & 1) for p in range(8)]
            for p in range(8):
                tp = t + 2*(p & 3)
                A(f"v_max_f32 v{tp}, 0, v{src[p]}\nv_max_f32 v{tp+1}, 0, v{src[p]+1}")
                if p >= 1:
                    q = p-1; tq = t + 2*(q & 3)
                    A(f"v_pk_mul_f32 {vr(tq,2)}, {vr(tq,2)}, {vr(src[q],2)}")
                if p >= 2:
                    q = p-2; tq = t + 2*(q & 3)
                    A(f"v_cvt_pk_bf16_f32 v{o+q}, v{tq}, v{tq+1}")
            A(f"v_pk_mul_f32 {vr(t+6,2)}, {vr(t+6,2)}, {vr(src[7],2)}")
            A(f"v_cvt_pk_bf16_f32 v{o+6}, v{t+4}, v{t+5}\nv_cvt_pk_bf16_f32 v{o+7}, v{t+6}, v{t+7}")
            so = ["s17", "s17", "s19", "s19", "s18"][m]; io = 2048*(m & 1) if m < 4 else 0
            A(f"buffer_store_dwordx4 {vr(o,4)}, v11, s[44:47], {so} offen offset:{io} sc1\nbuffer_store_dwordx4 {vr(o+4,4)}, v11, s[44:47], {so} offen offset:{io+1024} sc1")
        A(f"v_mov_b32 v10, {L_SYNC}")
        self.stamp("G", "zw")
        self.lds_inc(10, SY_ZF, 13)
    def g_epi_z(self):
        A = self.A; ACC = self.ACC
        A(f"""
        v_lshrrev_b32 v12, 4, v0
        s_lshl_b32 s17, s16, 7
        s_add_u32 s17, s17, {L_STAT + 1024}
        v_lshl_add_u32 v11, v12, 4, s17
        ds_read_b128 v[40:43], v11
        ds_read_b128 v[44:47], v11 offset:64
        v_and_b32 v11, 15, v0
        v_mul_u32_u24 v11, {ZROW}, v11
        v_lshl_add_u32 v11, v12, 6, v11
        s_lshl_b32 s17, s16, 4
        s_add_u32 s17, s17, {ZB}
        v_add_u32 v11, s17, v11
        v_mov_b32 v10, {L_SYNC}""")
        self.lds_spin(10, SY_S1, 4, 13)
        A(".p2align 3")
        for k, j in enumerate((1, 2, 3, 4, 5, 6, 7, 8, 9, 0)):
            a = ACC + 8*j; o = 56 + 4*(k & 3)
            for p in range(4): A(f"v_pk_mul_f32 {vr(a+2*p,2)}, {vr(a+2*p,2)}, {vr(40+2*p,2)}")
            for p in range(4): A(f"v_cvt_pk_bf16_f32 v{o+p}, v{a+2*p}, v{a+2*p+1}")
            A(f"ds_write_b128 v11, {vr(o,4)} offset:{j*16*ZROW}")
        A("s_waitcnt lgkmcnt(0)")
        self.lds_inc(10, SY_ZW, 13)
        A(f"""
        v_lshrrev_b32 v12, 4, v0
        s_mul_i32 s17, s16, 40
        v_add_u32 v13, s17, v12
        v_mul_u32_u24 v11, {ZROW}, v13
        v_and_b32 v14, 15, v0
        v_lshl_add_u32 v11, v14, 4, v11
        v_add_u32 v11, {ZB}, v11
        v_lshlrev_b32 v12, 13, v12
        v_lshl_add_u32 v12, v14, 4, v12
        s_mul_i32 s18, s23, {PZ}
        s_add_u32 s18, s18, {W_Z}
        s_lshl_b32 s48, s26, 8
        s_add_u32 s18, s18, s48
        s_and_b32 s48, s25, 1
        s_lshl_b32 s48, s48, 12
        s_lshl_b32 s49, s17, 13
        s_add_u32 s48, s48, s49
        s_add_u32 s52, s48, s18
        s_cmp_eq_u32 s29, 6
        s_cbranch_scc0 L_g_no320
        s_cmp_eq_u32 s16, 3
        s_cbranch_scc0 L_g_no320
        v_and_b32 v20, 3, v0
        v_lshlrev_b32 v20, 7, v20
        v_bfe_u32 v21, v0, 2, 2
        v_lshl_add_u32 v20, v21, 4, v20
        v_add_u32 v20, {L_STAT + 1536}, v20
        ds_read_b128 v[24:27], v20
        ds_read_b128 v[28:31], v20 offset:64
        s_add_u32 s50, s18, {320*4096}
        s_waitcnt lgkmcnt(0)
        v_cvt_pk_bf16_f32 v24, v24, v25
        v_cvt_pk_bf16_f32 v25, v26, v27
        v_cvt_pk_bf16_f32 v26, v28, v29
        v_cvt_pk_bf16_f32 v27, v30, v31
        s_mov_b64 exec, 0xffff
        buffer_store_dwordx4 v[24:27], v12, s[44:47], s50 offen sc1
        s_mov_b64 exec, -1
        L_g_no320:""")
        self.lds_spin(10, SY_ZW, 4, 13)
        self.stamp("G", "zw")
        for n in range(10): A(f"ds_read_b128 {vr(112+4*n,4)}, v11 offset:{4*n*ZROW}")
        for n in range(10):
            A(f"""s_waitcnt lgkmcnt({9-n})
            buffer_store_dwordx4 {vr(112+4*n,4)}, v12, s[44:47], s52 offen sc1
            s_add_u32 s52, s52, 32768""")
        self.lds_inc(10, SY_ZF, 13)

    HB = [4, 20]; WR = 36; AC2 = 176
    def g_phase2(self):
        A = self.A; WR, AC2 = self.WR, self.AC2
        A.label("L_g_issued")
        self.stamp("G", "issued")
        A(f"""
        s_lshl_b32 s18, s16, 3
        s_lshr_b32 s17, {KS0[0] | KS0[1] << 8 | KS0[2] << 16 | KS0[3] << 24:#x}, s18
        s_and_b32 s57, s17, 0xff
        s_mul_i32 s48, s16, 6
        s_sub_u32 s57, s57, s48
        s_sub_u32 s57, s57, 6
        s_lshl_b32 s58, s57, 11
        s_mul_i32 s57, s57, 40960
        s_mul_i32 s49, s48, 40960
        s_mul_i32 s17, s15, 5120
        s_add_u32 s49, s49, s17
        s_add_u32 s49, s49, {W_W2F}            ; w2f soffset
        s_add_u32 s51, s49, 4096
        s_lshl_b32 s19, s48, 11
        s_lshl_b32 s17, s31, 10
        s_add_u32 s19, s19, s17
        s_add_u32 s19, s19, {W_H}
        s_lshl_b32 s18, s20, 2
        v_lshlrev_b32 v1, 4, v0""")
        for rl in range(4):
            A(f"s_add_u32 s17, s16, {rl}\ns_and_b32 s17, s17, 3\ns_add_u32 s17, s17, s18\ns_mul_i32 s17, s17, {HC}\ns_add_u32 s{52+rl}, s17, s19")
        self.lw(48, 16)
        A(f"""v_mov_b32 v2, s14
        v_lshlrev_b32 v3, 2, v0
        s_lshl_b32 s56, s26, 11
        s_add_u32 s56, s56, {W_F1}
        s_lshl_b32 s50, s29, 7
        s_add_u32 s50, s50, s56
        v_mov_b32 v4, 1
        s_waitcnt vmcnt(0)""")
        self.stamp("G", "acked")
        A(f"""s_mov_b64 exec, 1
        ds_add_rtn_u32 v4, v10, v4 offset:{SY_ACK}
        s_waitcnt lgkmcnt(0)
        v_readfirstlane_b32 s17, v4
        s_cmp_eq_u32 s17, 3
        s_cbranch_scc0 L_g_noflag
        s_mov_b32 exec_lo, -1
        buffer_store_dword v2, v3, s[44:47], s50 offen sc1
        ds_write_b32 v10, v10 offset:{SY_FL}
        L_g_noflag:
        s_mov_b64 exec, -1
        v_add_u32 v2, s48, v1
        v_mov_b32 v3, v10""")
        self.lds_spin(3, SY_FL, 1, 4)
        A("s_cmp_eq_u32 s34, 1\ns_cbranch_scc0 L_g_fwok")
        self.lds_spin(3, SY_FW, 1, 4)
        A("L_g_fwok:")
        R = [WR + 20*i for i in range(7)]
        wbuf = {}; hbuf = {}; q = []
        def wl(s):
            L = [f"buffer_load_dwordx4 {vr(wbuf[s]+4*nt,4)}, v1, s[44:47], {'s51' if nt == 4 else 's49'} offen offset:{(nt&3)*1024} sc1" for nt in range(5)]
            L[-1] += "\ns_add_u32 s49, s49, 40960\ns_add_u32 s51, s51, 40960"
            if s == 5: L[-1] += "\ns_add_u32 s49, s49, s57\ns_add_u32 s51, s51, s57"
            q.extend([("w", s)]*5); return L
        def hl(s):
            L = [f"buffer_load_dwordx4 {vr(hbuf[s]+4*rl,4)}, v1, s[44:47], s{52+rl} offen offset:{(s&1)*2048} sc1" for rl in range(4)]
            if s & 1: L[-1] += "\n" + "\n".join(f"s_add_u32 s{52+rl}, s{52+rl}, 4096" for rl in range(4))
            if s == 5: L[-1] += "\n" + "\n".join(f"s_add_u32 s{52+rl}, s{52+rl}, s58" for rl in range(4))
            if s == 6: L[0] = "SPIN2\n" + L[0]
            q.extend([("h", s)]*4); return L
        npw = self.npw
        for s in range(npw):
            wbuf[s] = R[s]
            if s == self.wgate: self.lds_inc(3, SY_WI, 4)
            A("\n".join(wl(s)))
        if self.wgate >= npw: self.lds_inc(3, SY_WI, 4)
        self.stamp("G", "w2iss")
        self.lds_spin(3, SY_H, 1, 4)
        self.stamp("G", "Hok")
        init = [4, 20] + R[npw:]
        nh = len(init)
        for s in range(nh): hbuf[s] = init[s]; A("\n".join(hl(s)))
        free = []; nxh = nh; nxw = npw; F = None
        def spin(off, dyn):
            l = self.lab("sp"); d = l + "d"
            pre = "s_lshl_b32 s17, s16, 2\nv_add_u32 v0, s17, v3" if dyn else ""
            A(f"""{pre}
            s_mov_b32 s19, 0
            {l}:
            ds_read_b32 v0, v{0 if dyn else 3} offset:{off}
            s_waitcnt lgkmcnt(0)
            v_readfirstlane_b32 s27, v0
            {"v_add_u32 v0, s17, v3" if dyn else ""}
            {self.spin_guard(d)}
            s_cmp_ge_u32 s27, 1
            s_cbranch_scc0 {l}
            {d}:
            v_lshrrev_b32 v0, 4, v1
            .p2align 3""")
        def head(s):
            need = [("h", s)] + ([("w", s)] if s < NREG else [])
            last = max(i for i, e in enumerate(q) if e in need)
            A(f"s_waitcnt vmcnt({len(q)-1-last})" + (" lgkmcnt(0)" if s >= NREG else ""))
        mm = lambda s, rl, nt: f"{self.MF} {vr(AC2+4*(5*rl+nt),4)}, {vr(wbuf[s]+4*nt,4)}, {vr(hbuf[s]+4*rl,4)}, {'0' if s == 0 else vr(AC2+4*(5*rl+nt),4)}"
        def laststep(s):
            head(s); A(".p2align 3")
            wr = lambda rl: [f"ds_write_b128 v2, {vr(AC2+4*(5*rl+nt),4)} offset:{(rl-1)*5120 + nt*1024}" for nt in range(5)]
            A("\n".join([mm(s, 1, nt) for nt in range(5)] + [mm(s, 2, nt) for nt in range(5)] + [mm(s, 3, nt) for nt in range(3)]))
            A("\n".join(self.interleave([mm(s, 3, 3), mm(s, 3, 4)] + [mm(s, 0, nt) for nt in range(3)], wr(1))))
            A("\n".join(self.interleave([mm(s, 0, 3), mm(s, 0, 4)], wr(2)) + wr(3)))
        def addr_fill(F):
            L = []
            for rl in range(1, 4):
                L.append(f"s_sub_u32 s17, s16, {rl}\ns_and_b32 s17, s17, 3\ns_mul_i32 s18, s17, 35840\ns_cmp_ge_u32 s17, 2\ns_cselect_b32 s27, 2048, 0\ns_add_u32 s18, s18, s27\ns_cmp_eq_u32 s17, 3\ns_cselect_b32 s18, {LW[3]}, s18\ns_add_u32 s18, s18, {(rl-1)*5120}\nv_add_u32 v{F+rl-1}, s18, v1")
            t = F + 12
            L += f"""v_and_b32 v{t}, 15, v0
            v_lshrrev_b32 v{t+1}, 4, v0
            s_lshl_b32 s17, s16, 4
            v_add_u32 v{F+3}, s17, v{t}
            v_mul_u32_u24 v{F+3}, {PROW}, v{F+3}
            v_bfe_u32 v{t+2}, v{t}, 1, 2
            v_xor_b32 v{t+2}, v{t+2}, v{t+1}
            v_lshl_add_u32 v{F+3}, v{t+2}, 4, v{F+3}
            v_add_u32 v{F+3}, {L_P}, v{F+3}
            s_lshl_b32 s17, s16, 6
            s_add_u32 s17, s17, {L_SYNC + 512}
            v_lshl_add_u32 v{t+2}, v{t}, 2, s17
            ds_read_b32 v{F+4}, v{t+2}
            s_add_u32 s48, s48, 15360
            v_mul_u32_u24 v{F+5}, 176, v{t}
            v_lshl_add_u32 v{F+5}, v{t+1}, 3, v{F+5}
            v_add_u32 v{F+5}, s48, v{F+5}""".split("\n")
            L2 = []
            for n in range(3):
                L2 += f"""v_add_u32 v{t}, {64*n}, v0
                v_mul_u32_u24 v{t+1}, 6554, v{t}
                v_lshrrev_b32 v{t+1}, 16, v{t+1}
                v_mul_u32_u24 v{t+2}, 10, v{t+1}
                v_sub_u32 v{t+2}, v{t}, v{t+2}
                v_lshlrev_b32 v{t+2}, 4, v{t+2}
                v_mul_u32_u24 v{t+3}, 176, v{t+1}
                v_add3_u32 v{F+6+n}, v{t+3}, v{t+2}, s48
                v_mul_u32_u24 v{t+1}, 0x14000, v{t+1}
                v_add_u32 v{F+9+n}, v{t+1}, v{t+2}""".split("\n")
            L2.append(f"s_mov_b32 s40, s84\ns_mov_b32 s41, s85\ns_mov_b32 s42, {2048*1280}\ns_mov_b32 s43, 0x20000\ns_lshl_b32 s17, s31, 10\ns_lshl_b32 s18, s20, 2\ns_add_u32 s17, s17, s18\ns_add_u32 s17, s17, s16\ns_mul_i32 s17, s17, 1280\ns_mul_i32 s18, s15, 160\ns_add_u32 s49, s17, s18")
            return [x.strip() for x in L], [x.strip() for x in L2]
        for s in range(13):
            if s == 12: A("s_cmp_ge_u32 s16, 2\ns_cbranch_scc1 L_g_last12")
            head(s)
            self.stamp("G", f"S{s}")
            A(".p2align 3")
            ms = [mm(s, rl, nt) for rl in range(4) for nt in range(5)]
            if s >= 1: free += [wbuf[s-1], hbuf[s-1]]
            ot = []; vm = []; ex = []
            def take(big):
                c = [b_ for b_ in free if (b_ in R) or not big]
                c.sort(key=lambda b_: (b_ in R))
                if not c: return None
                free.remove(c[0]); return c[0]
            if s >= NREG-1:
                if s == NREG-1: ot.append("SPIN")
                wbuf[s+1] = take(True); assert wbuf[s+1] is not None
                ot += [f"ds_read_b128 {vr(wbuf[s+1]+4*nt,4)}, v2 offset:{(s+1-NREG)*5120 + nt*1024}" for nt in range(5)]
            if s == self.ystep: ot.append(f"ds_write_b32 v3, v3 offset:{SY_G}")
            if nxw < NREG and s >= 1:
                b_ = take(True)
                if b_ is not None: wbuf[nxw] = b_; vm += wl(nxw); nxw += 1
            while nxh < 14 and nxh <= s + self.la:
                b_ = take(False)
                if b_ is None: break
                hbuf[nxh] = b_; vm += hl(nxh); nxh += 1
            if s == 10: F = take(False); assert F is not None; AF = addr_fill(F); ex = AF[0]
            if s == 11: ex = AF[1]
            slots = [[] for _ in ms]
            for k, f in enumerate(ot): slots[min(len(ms)-1, 2*k)].append(f)
            for k, f in enumerate(vm): slots[min(len(ms)-1, 1 + (k*(len(ms)-1))//max(1, len(vm)))].append(f)
            for k, f in enumerate(ex): slots[(k*len(ms))//len(ex)].append(f)
            for m_, sl in zip(ms, slots):
                A(m_)
                for o in sl:
                    if o == "SPIN": spin(SY_W2, True)
                    elif o.startswith("SPIN2"): spin(SY_H2, False); A(o[6:])
                    else: A(o)
        assert nxh == 14 and nxw == NREG
        laststep(13)
        A("s_branch L_g_p2done\nL_g_last12:")
        laststep(12)
        A.label("L_g_p2done")
        self.stamp("G", "p2done")
        B = [b_ for b_ in [4, 20] + R if b_ != F][:5]
        T0 = [b_ for b_ in [4, 20] + R if b_ != F][5]
        A(f"v_mul_f32 v{F+4}, v{F+4}, v{F+4}\ns_waitcnt vmcnt(0) lgkmcnt(0)")
        self.lds_inc(3, SY_X, T0)
        self.lds_spin(3, SY_X, 4, T0, nosleep=True)
        self.stamp("G", "B15")
        for nt in range(5):
            for rl in range(1, 4): A(f"ds_read_b128 {vr(B[nt]+4*(rl-1),4)}, v{F+rl-1} offset:{nt*1024}")
        A(f"ds_read_b32 v{T0}, v3 offset:{SY_Y}")
        for nt in range(5):
            a = AC2 + 4*nt; b = B[nt]
            A(f"s_waitcnt lgkmcnt({3*(4-nt) + 1})")
            for h in range(2):
                A(f"v_pk_add_f32 {vr(a+2*h,2)}, {vr(a+2*h,2)}, {vr(b+2*h,2)}\nv_pk_add_f32 {vr(b+4+2*h,2)}, {vr(b+4+2*h,2)}, {vr(b+8+2*h,2)}")
            for h in range(2):
                A(f"v_pk_add_f32 {vr(a+2*h,2)}, {vr(a+2*h,2)}, {vr(b+4+2*h,2)}")
        A(f"s_waitcnt lgkmcnt(0)\nv_readfirstlane_b32 s27, v{T0}\ns_cmp_ge_u32 s27, 4\ns_cbranch_scc1 L_g_yok")
        self.lds_spin(3, SY_Y, 4, T0, nosleep=True)
        A.label("L_g_yok")
        for nt in range(5): A(f"ds_read_b128 {vr(B[nt]+12,4)}, v{F+3} offset:{nt*64}")
        for nt in range(5):
            a = AC2 + 4*nt; b = B[nt]
            A(f"s_waitcnt lgkmcnt(4)")
            for h in range(2):
                A(f"v_pk_fma_f32 {vr(a+2*h,2)}, {vr(a+2*h,2)}, {vr(F+4,2)}, {vr(b+12+2*h,2)} op_sel_hi:[1,0,1]")
            A(f"v_cvt_pk_bf16_f32 v{b}, v{a}, v{a+1}\nv_cvt_pk_bf16_f32 v{b+1}, v{a+2}, v{a+3}\nds_write_b64 v{F+5}, {vr(b,2)} offset:{nt*32}")
        A("s_waitcnt lgkmcnt(0)")
        for n in range(3): A(f"ds_read_b128 {vr(T0+4*n,4)}, v{F+6+n}")
        for n in range(3):
            if n == 2: A("s_mov_b32 exec_hi, 0")
            A(f"s_waitcnt lgkmcnt({2-n})\nbuffer_store_dwordx4 {vr(T0+4*n,4)}, v{F+9+n}, s[40:43], s49 offen{self.ofl}")
        A("s_mov_b64 exec, -1")
        self.stamp("G", "end")

    def first_chunk(self):
        A = self.A
        def pk(r):
            v = 0
            for i, x in enumerate(r): v |= x << (4*i)
            return v & 0xffffffff, v >> 32
        A("s_add_u32 s64, s24, s25\ns_and_b32 s64, s64, 3")
        for g in range(4):
            lo, hi = pk(self.sched[g])
            if g == 0: A(f"s_mov_b32 s56, {lo:#x}\ns_mov_b32 s57, {hi:#x}")
            else: A(f"s_cmp_eq_u32 s64, {g}\ns_cselect_b32 s56, {lo:#x}, s56\ns_cselect_b32 s57, {hi:#x}, s57")
        t = self.xsh[0] | self.xsh[1] << 4 | self.xsh[2] << 8 | self.xsh[3] << 12
        A(f"""s_lshl_b32 s27, s22, 2
        s_lshr_b32 s32, {t:#x}, s27
        s_and_b32 s32, s32, 15
        s_mul_i32 s27, s23, {self.xsh[4]}
        s_add_u32 s32, s32, s27""")
    def ld_setup(self):
        A = self.A
        A(f"""
        s_and_b32 s65, s16, 1
        v_lshrrev_b32 v11, 3, v0
        s_lshl_b32 s17, s65, 3
        v_add_u32 v12, s17, v11
        s_mov_b32 s18, 81920
        v_mul_lo_u32 v2, v12, s18
        v_and_b32 v13, 7, v0
        v_lshrrev_b32 v14, 4, v0
        v_xor_b32 v13, v13, v14
        s_lshl_b32 s17, s65, 2
        v_xor_b32 v13, s17, v13
        v_lshl_add_u32 v2, v13, 4, v2   ; x voffset
        s_mul_i32 s48, s26, 5120
        s_lshl_b32 s55, s65, 10
        s_cmp_eq_u32 s34, 1
        s_cbranch_scc1 L_ld_D
        v_mul_u32_u24 v3, 3456, v14
        v_bfe_u32 v13, v0, 2, 2
        v_xor_b32 v15, v13, v14
        v_lshl_add_u32 v3, v15, 6, v3
        v_and_b32 v13, 3, v0
        v_lshl_add_u32 v3, v13, 4, v3   ; w voffset
        v_lshrrev_b32 v14, 2, v0
        v_mul_u32_u24 v4, 3456, v14
        v_lshl_add_u32 v4, v13, 4, v4
        v_and_b32 v13, 32, v0
        v_xor_b32 v4, v4, v13
        v_xor_b32 v11, 32, v3
        s_mul_i32 s49, s65, {16*3456}""")
        self.cols()
        A(f"""s_lshl_b32 s52, s30, 6
        s_add_u32 s52, s49, s52
        s_lshl_b32 s17, s28, 6
        s_add_u32 s49, s49, s17""")
        self.first_chunk()
        self.common_srds()
        srd(A, 40, 6, 2211840)
        A("s_mov_b32 s10, 0")
    def ld_issue(self, T):
        A = self.A
        A(f"""
        s_and_b32 s4, s56, 15
        s_lshr_b64 s[56:57], s[56:57], 4
        s_add_u32 s4, s4, s32
        s_cmp_ge_u32 s4, 10
        s_cselect_b32 s27, 10, 0
        s_sub_u32 s4, s4, s27
        s_lshl_b32 s5, s4, 7
        s_add_u32 s5, s5, s48
        s_mul_i32 s6, s4, {64*3456}
        s_add_u32 s7, s6, s52
        s_add_u32 s6, s6, s49
        s_add_u32 s8, s10, s55
        s_lshl_b32 s9, s55, 2
        s_add_u32 s9, s9, s10""")
        for p in range(2):
            for i in range(4):
                A(f"s_add_u32 m0, s8, {p*2048 + i*4096 - i*1280}\n" + ("s_add_u32 s5, s5, 0x140000" if (p, i) == (1, 0) else "s_nop 0") + f"\nbuffer_load_dwordx4 v2, s[36:39], s5 offen offset:{i*1280} lds")
            for i in range(4):
                A(f"s_add_u32 m0, s9, {16384 + p*8192 + i*1024}")
                A("s_nop 0" if (p, i) == (0, 0) else f"s_add_u32 s6, s6, {(20 if i == 0 else 4)*3456}")
                A(f"buffer_load_dwordx4 v{3 if i < 2 else 11}, s[40:43], s6 offen lds")
            if T == 5: A(f"s_add_u32 m0, s8, {32768 + p*2048}\n" + ("s_nop 0" if p == 0 else f"s_add_u32 s7, s7, {32*3456}") + "\nbuffer_load_dwordx4 v4, s[40:43], s7 offen lds")
        A(f"""s_add_u32 s10, s10, {SLOT}
        s_cmp_eq_u32 s10, {NS*SLOT}
        s_cselect_b32 s10, 0, s10""")
        return 2*(4 + T)
    def ld_issue_d(self, odd):
        A = self.A
        A(f"""s_lshl_b32 s4, s56, 7
        s_add_u32 s5, s4, s48
        s_add_u32 s6, s4, s49
        s_add_u32 s8, s10, s55""")
        if odd: A(f"s_add_u32 s5, s5, 640\ns_add_u32 s6, s6, {3*81920}\ns_add_u32 s56, s56, 1\ns_cmp_eq_u32 s56, 5\ns_cselect_b32 s56, 0, s56")
        for p in range(2):
            for k in range(4):
                A(f"s_add_u32 m0, s8, {p*2048 + k*4096 - k*1280}\n" + ("s_add_u32 s5, s5, 0x140000" if (p, k) == (1, 0) else "s_nop 0") + f"\nbuffer_load_dwordx4 v2, s[36:39], s5 offen offset:{k*1280} lds")
        for k in range(4 if odd else 6):
            A(f"s_add_u32 m0, s8, {16384 + k*2048}")
            A("s_nop 0" if k == 0 else "s_add_u32 s6, s6, 40960")
            A("buffer_load_dwordx4 v3, s[40:43], s6 offen lds")
        A(f"s_add_u32 s10, s10, {DS}\ns_cmp_eq_u32 s10, {5*DS}\ns_cselect_b32 s10, 0, s10")
        return 12 if odd else 14
    def ld_common(self):
        self.roles()
        self.get_tag()
        self.A(f"v_mov_b32 v55, s14\nv_lshlrev_b32 v8, 4, v0\nv_lshlrev_b32 v7, 2, v0\nv_mov_b32 v12, {L_SYNC}\nv_lshlrev_b32 v47, 7, v0\nv_mov_b32 v25, 0")
    def loader(self):
        A = self.A
        self.ld_setup()
        A("s_cmp_eq_u32 s33, 0\ns_cbranch_scc1 L_ld_4")
        nl = self.nstamp["L"]
        for T in (5, 4):
            self.nstamp["L"] = nl
            A.label(f"L_ld_{T}")
            self.stamp("L", "pre-issue")
            n = self.ld_issue(T); self.stamp("L", "preBa"); A("s_barrier"); self.stamp("L", "Ba"); self.ld_issue(T)
            self.ld_common(); self.stamp("L", "rdy")
            A(f"s_waitcnt vmcnt({n})\ns_barrier")
            self.stamp("L", "B0")
            self.ld_issue(T)
            if T == 4:
                A("s_cmp_eq_u32 s2, 24\ns_cbranch_scc0 L_ld_nc"); self.l_consts(); A("L_ld_nc:")
            A(f"s_mov_b32 s11, 1\nL_ld_loop{T}:\ns_waitcnt vmcnt({n})\ns_barrier")
            self.ld_issue(T)
            A(f"s_add_u32 s11, s11, 1\ns_cmp_lt_u32 s11, 8\ns_cbranch_scc1 L_ld_loop{T}")
            A(f"s_waitcnt vmcnt({n})\ns_barrier\ns_waitcnt vmcnt(0)\ns_barrier")
            self.stamp("L", "B9")
            if T == 5: A("s_branch L_ld_w")
        A.label("L_ld_w")
        if self.p1only: self.dump_stamps("L"); A("s_endpgm")
        self.l_w2dma("a", 6)
        nb = self.npreb
        if nb:
            self.lds_spin(12, SY_S1, 4, 16)
            self.l_w2dma("b", nb, "p")
        self.lds_spin(12, SY_FL, 1, 16)
        self.l_w2dma("c" if nb else "b", self.h2at - nb, "q")
        A("s_cmp_eq_u32 s16, 3\ns_cbranch_scc0 L_l_g25")
        self.h2poll(True)
        A("L_l_g25:")
        if self.h2at < 7: self.l_w2dma("c", 7 - self.h2at, "g")
        A(f"s_cmp_eq_u32 s16, 3\ns_cbranch_scc0 L_l_g24\ns_waitcnt vmcnt({5*(7-self.h2at)})")
        self.h2poll(False)
        A("L_l_g24:\ns_cmp_eq_u32 s2, 24\ns_cbranch_scc0 L_l_fft")
        self.l_consts2()
        A("s_branch L_l_fft")
    def loader_d(self):
        A = self.A
        A.label("L_ld_D")
        A("s_mov_b32 s33, 1")
        A("""v_mul_u32_u24 v11, 2560, v11
        v_lshl_add_u32 v3, v13, 4, v11
        s_and_b32 s17, s25, 1
        s_mul_i32 s17, s17, 1280
        s_mul_i32 s49, s65, 20480
        s_add_u32 s49, s49, s17
        s_add_u32 s56, s24, s22
        s_cmp_ge_u32 s56, 5
        s_cselect_b32 s17, 5, 0
        s_sub_u32 s56, s56, s17""")
        self.common_srds()
        A("s_cmp_eq_u32 s23, 0\ns_cselect_b32 s40, s8, s10\ns_cselect_b32 s41, s9, s11\ns_mov_b32 s42, 819200\ns_mov_b32 s43, 0x20000\ns_mov_b32 s10, 0")
        self.stamp("L", "pre-issue")
        I = self.ld_issue_d
        I(0); self.stamp("L", "preBa"); A("s_barrier"); self.stamp("L", "Ba"); I(1); I(0)
        self.ld_common(); self.stamp("L", "rdy")
        A("s_waitcnt vmcnt(14)\ns_barrier")
        self.stamp("L", "B0")
        I(1); self.l_consts()
        A("s_barrier")
        I(0)
        for m in range(2):
            A("s_waitcnt vmcnt(14)\ns_barrier")
            I(1); I(0)
        A("s_waitcnt vmcnt(14)\ns_barrier")
        I(1)
        A("s_waitcnt vmcnt(0)\ns_barrier")
        self.stamp("L", "B9")
        if self.p1only: self.dump_stamps("L"); A("s_endpgm")
        self.l_w2dma("b", self.nbd, "d")
        A("s_setprio 3")
        self.l_consts2()
        self.lds_spin(12, SY_FL, 1, 16)
        self.l_w2dma("c", 7 - self.nbd, "f")
        A("s_branch L_l_fft")
    F1 = 64; TC = 76; TS = 92; F2 = 108
    def g_consts(self):
        A = self.A; B = 64
        def trig(mul, base, k, c, sn):
            return f"v_fmamk_f32 v{B+9}, v{mul}, {fl(k)}, v{base}\nv_cos_f32 v{c}, v{B+9}\nv_sin_f32 v{sn}, v{B+9}"
        A(f"""v_and_b32 v{B}, 15, v0
        s_and_b32 s17, s16, 1
        s_lshl_b32 s18, s17, 4
        v_add_u32 v{B+2}, s18, v{B}
        v_cvt_f32_u32 v{B+2}, v{B+2}          ; t1
        v_lshlrev_b32 v{B}, 1, v{B}
        s_lshr_b32 s18, s16, 1
        v_add_u32 v{B}, s18, v{B}
        v_cvt_f32_u32 v{B}, v{B}              ; 2jl+T
        v_lshrrev_b32 v{B+1}, 4, v0
        v_lshlrev_b32 v{B+3}, 2, v{B+1}
        s_lshl_b32 s17, s17, 5
        v_add_u32 v{B+4}, s17, v{B+3}
        v_cvt_f32_u32 v{B+4}, v{B+4}          ; 4G + 32v
        v_cvt_f32_u32 v{B+3}, v{B+3}          ; 4G
        v_mul_f32 v{B+5}, {fl(1/64)}, v{B}
        v_mul_f32 v{B+6}, v{B+5}, v{B+4}
        v_lshlrev_b32 v{B+7}, 4, v0
        v_add_u32 v{B+7}, {L_CST}, v{B+7}""")
        for jj in range(8): A(trig(B+5, B+6, 16*(jj>>2) + (jj&3), 80+jj, 88+jj))
        A(f"s_lshl_b32 s17, s16, 11\nv_add_u32 v{B+8}, s17, v{B+7}")
        for p in range(4): A(f"v_cvt_pk_bf16_f32 v{96+p}, v{80+2*p}, v{81+2*p}\nv_cvt_pk_bf16_f32 v{100+p}, v{88+2*p}, v{89+2*p}")
        A(f"ds_write_b128 v{B+8}, v[96:99]\nds_write_b128 v{B+8}, v[100:103] offset:1024")
        A(f"""s_cmp_ge_u32 s16, 2
        s_cbranch_scc1 L_g_cf1
        v_mul_f32 v{B+5}, {fl(1/2048)}, v{B+2}
        v_mul_f32 v{B+6}, v{B+5}, v{B+3}
        s_lshl_b32 s17, s16, 13
        s_add_u32 s17, s17, 8192
        v_add_u32 v{B+8}, s17, v{B+7}""")
        for a4 in range(4):
            r = 80 + 8*(a4 & 1)
            for i in range(4): A(trig(B+5, B+6, 16*a4+i, r+i, r+4+i))
            A(f"s_nop 0\nds_write_b128 v{B+8}, {vr(r,4)} offset:{1024*a4}\nds_write_b128 v{B+8}, {vr(r+4,4)} offset:{4096+1024*a4}")
        A(f"""s_branch L_g_cdone
        L_g_cf1:
        v_mul_f32 v{B+5}, {fl(1/32)}, v{B+2}
        v_mul_f32 v{B+6}, v{B+5}, v{B+3}
        s_lshl_b32 s17, s16, 11
        s_add_u32 s17, s17, {24576 - 4096}
        v_add_u32 v{B+8}, s17, v{B+7}""")
        for jj, k in enumerate([0,1,2,3,16,17,18,19]): A(trig(B+5, B+6, k, 80+jj, 88+jj))
        A("s_nop 0")
        for p in range(4): A(f"v_cvt_pk_bf16_f32 v{96+p}, v{80+2*p}, v{81+2*p}\nv_cvt_pk_bf16_f32 v{100+p}, v{88+2*p}, v{89+2*p}")
        A(f"ds_write_b128 v{B+8}, v[96:99]\nds_write_b128 v{B+8}, v[100:103] offset:1024\nL_g_cdone:")
    def l_consts(self):
        A = self.A; F1, TC, TS, F2 = self.F1, self.TC, self.TS, self.F2
        A(f"""v_add_u32 v20, {L_CST}, v8
        s_and_b32 s17, s16, 1
        s_lshl_b32 s18, s17, 13
        v_add_u32 v21, s18, v20
        s_lshl_b32 s18, s17, 11
        v_add_u32 v22, s18, v20""")
        for g in range(4):
            A(f"ds_read_b128 {vr(F2+4*g,4)}, v20 offset:{2048*g}\nds_read_b128 {vr(F2+16+4*g,4)}, v20 offset:{2048*g+1024}")
        for a4 in range(4):
            A(f"ds_read_b128 {vr(TC+4*a4,4)}, v21 offset:{8192+1024*a4}\nds_read_b128 {vr(TS+4*a4,4)}, v21 offset:{12288+1024*a4}")
        A(f"ds_read_b128 {vr(F1,4)}, v22 offset:24576\nds_read_b128 {vr(F1+4,4)}, v22 offset:25600\ns_waitcnt lgkmcnt(0)")
    def l_consts2(self):
        A = self.A
        A("s_mov_b32 s17, 0x80000000\ns_mov_b32 s18, 0x80008000")
        for i in range(32): A(f"v_xor_b32 v{self.F2+32+i}, s17, v{self.F2+i}")
        for i in range(4): A(f"v_xor_b32 v{self.F1+8+i}, s18, v{self.F1+4+i}")
    def hp_setup(self):
        A = self.A
        A(f"v_lshlrev_b32 v7, 2, v0\nv_add_u32 v9, {L_SYNC}, v7\nv_mov_b32 v8, 0\nds_write_b32 v9, v8")
        self.common_srds()
        srd(A, 76, 62, 1728*2)
        A(f"""v_lshlrev_b32 v8, 4, v0
        v_lshlrev_b32 v7, 2, v0
        v_and_b32 v9, 7, v0
        v_lshlrev_b32 v9, 2, v9
        v_and_b32 v10, 32, v0
        v_add_u32 v9, v9, v10
        s_add_u32 s17, s28, s16
        s_lshl_b32 s17, s17, 6
        s_lshl_b32 s18, s30, 6
        s_cmp_eq_u32 s34, 1
        s_cselect_b32 s17, 0x40000000, s17
        s_cselect_b32 s18, 0x40000000, s18
        buffer_load_dword v13, v9, s[76:79], s17 offen
        buffer_load_dword v14, v9, s[76:79], s17 offen offset:128
        buffer_load_dword v15, v9, s[76:79], s18 offen""")
        srd(A, 72, 82, 640*2)
        A("s_mul_i32 s5, s15, 160\ns_lshl_b32 s17, s16, 6")
        for k in range(5):
            A(f"""v_add_u32 v20, s17, v0
            v_add_u32 v20, {128*k}, v20
            v_mul_u32_u24 v21, 6554, v20
            v_lshrrev_b32 v21, 16, v21
            v_mul_u32_u24 v22, 10, v21
            v_sub_u32 v22, v20, v22
            v_lshlrev_b32 v27, 4, v22
            buffer_load_dwordx4 {vr(176+8*k,4)}, v27, s[72:75], s5 offen
            v_lshlrev_b32 v22, 1, v22
            v_bfe_u32 v23, v21, 1, 2
            v_xor_b32 v22, v22, v23
            v_mul_u32_u24 v23, {PROW}, v21
            v_lshl_add_u32 v22, v22, 4, v23
            v_add_u32 v{245+k}, {L_P}, v22
            v_and_b32 v23, 15, v21
            v_mul_u32_u24 v23, 0x14000, v23
            v_lshrrev_b32 v21, 4, v21
            v_mul_u32_u24 v21, 1280, v21
            v_add3_u32 v{240+k}, v23, v21, v27""")
        if self.w2t:
            A(f"""s_cmp_lt_u32 s21, 64
            s_movk_i32 s17, 96
            s_cselect_b32 s17, s17, -64
            s_add_u32 s21, s21, s17        ; n: T4 0..95, D 96..159
            s_mul_i32 s60, s21, 6554
            s_lshr_b32 s60, s60, 16        ; j
            s_mul_i32 s18, s60, 10
            s_sub_u32 s61, s21, s18        ; cl
            s_lshl_b32 s0, s16, 4
            s_add_u32 s60, s0, s60
            s_mul_i32 s0, s60, 10
            s_add_u32 s0, s0, s61""")
            self.w2_task_addr(0, 48, 51, 5)
            A("s_add_u32 s0, s0, 320")
            self.w2_task_addr(0, 49, 53, 5)
            A(f"""s_cmp_lt_u32 s60, 22
            s_cselect_b32 s62, 1, 0
            s_mul_i32 s50, s16, {SLOT}
            s_add_u32 s50, s50, 32768
            s_add_u32 s52, s50, {2*SLOT}
            s_lshl_b32 s17, s16, 12
            s_add_u32 s17, s17, {5*DS}
            s_cmp_eq_u32 s34, 1
            s_cselect_b32 s50, s17, s50
            s_cselect_b32 s52, {5*DS + 8192}, s52""")
            srd(A, 76, 80, 1728*1280)
        else:
            A("""s_mul_i32 s60, s21, 6554
            s_lshr_b32 s60, s60, 16        ; j
            s_mul_i32 s18, s60, 10
            s_sub_u32 s61, s21, s18        ; cl
            s_mul_i32 s0, s16, 25
            s_add_u32 s0, s0, s60
            s_mul_i32 s0, s0, 10
            s_add_u32 s0, s0, s61""")
            self.w2_task_addr(0, 48, 51, 5)
            A(f"""s_cmp_ge_u32 s60, 25
            s_cselect_b32 s48, 0x40000000, s48
            s_cselect_b32 s51, 0x40000000, s51
            s_mov_b32 s50, {L_STG}
            s_cmp_eq_u32 s34, 1
            s_cselect_b32 s50, {5*DS}, s50
            s_lshl_b32 s17, s16, 12
            s_add_u32 s50, s50, s17""")
            srd(A, 76, 80, 1728*1280)
            A(f"""s_lshl_b32 s17, s16, 8
            s_or_b32 s17, s17, s21
            s_cmp_lt_u32 s17, 40
            s_cselect_b32 s62, 1, 0
            s_cbranch_scc0 L_hp_n3
            s_add_u32 s0, s21, 500""")
            self.w2_task_addr(0, 49, 53, 5)
            A(f"s_mov_b32 s52, {5*DS + 8192}")
            A.label("L_hp_n3")
        self.first_chunk()
        self.get_tag()
        A(f"""v_mov_b32 v55, s14
        v_mov_b32 v12, {L_SYNC}
        v_lshlrev_b32 v47, 7, v0
        v_mov_b32 v25, 0
        s_and_b32 s64, s56, 15
        s_add_u32 s64, s64, s32
        s_cmp_ge_u32 s64, 10
        s_cselect_b32 s27, 10, 0
        s_sub_u32 s64, s64, s27
        s_mul_i32 s1, s15, 5
        s_lshr_b32 s1, s1, 2
        v_and_b32 v52, 31, v0
        v_mul_u32_u24 v53, 10, v52
        v_lshrrev_b32 v21, 5, v0
        v_add3_u32 v53, v53, v21, s1
        v_lshlrev_b32 v53, 7, v53
        s_mov_b32 s1, {W_F0}
        s_lshl_b32 s0, s21, 7
        s_add_u32 s0, s0, s1
        v_mul_u32_u24 v239, 3200, v21
        v_lshl_add_u32 v239, v52, 2, v239
        s_lshl_b32 s17, s16, 7
        s_add_u32 s17, s17, {L_STG}
        v_add_u32 v239, s17, v239
        v_and_b32 v23, 3, v0
        v_or_b32 v238, 0x07060500, v23
        v_lshlrev_b32 v250, 3, v23
        v_lshrrev_b32 v250, v250, v55
        s_lshl_b32 s55, s16, 10
        s_add_u32 s17, s55, {L_CORR}
        v_add_u32 v10, s17, v8
        v_and_b32 v251, 15, v0
        v_lshlrev_b32 v251, 3, v251
        v_bfe_u32 v21, v0, 4, 1
        v_lshl_add_u32 v251, v21, 9, v251
        v_add_u32 v251, s17, v251
        v_lshrrev_b32 v21, 4, v0
        v_bfe_u32 v20, v0, 2, 2
        v_lshl_add_u32 v22, v21, 3, v20
        v_and_b32 v21, 1, v21
        v_lshlrev_b32 v21, 5, v21
        v_lshl_add_u32 v21, v23, 3, v21
        v_lshl_add_u32 v236, v22, 6, v21
        v_xor_b32 v237, 32, v236
        v_lshl_add_u32 v22, v22, 8, v21
        v_lshl_add_u32 v22, v20, 6, v22
        s_lshl_b32 s17, s16, 6
        v_xor_b32 v232, s17, v22
        v_xor_b32 v233, 32, v232
        v_xor_b32 v234, 128, v232
        v_xor_b32 v235, 32, v234
        v_mov_b32 v228, 0x3f803f80
        v_mov_b32 v229, 0x3f803f80
        v_mov_b32 v230, 0x3f803f80
        v_mov_b32 v231, 0x3f803f80
        s_mul_i32 s66, s29, 6400
        s_add_u32 s66, s66, {W_CS}
        s_add_u32 s67, s66, 512
        s_lshl_b32 s17, s16, 7
        s_add_u32 s66, s66, s17
        v_and_b32 v48, 0x300, v8
        v_add_u32 v52, v48, v8               ; r2 voffset
        v_lshlrev_b32 v38, 3, v0
        v_add_u32 v252, {L_STAT}, v38
        v_add_u32 v253, {L_STAT + 1024}, v7
        v_add_u32 v9, v12, v7
        v_bfe_u32 v17, v0, 3, 2
        v_cmp_eq_u32 vcc, 1, v17
        """)
        self.stamp("L", "pre-issue"); self.stamp("L", "preBa")
        A("s_barrier")
        self.stamp("L", "Ba")
        self.l_consts()
        A(f"""v_mov_b32 v17, 0
        v_mov_b32 v19, 0
        v_mov_b32 v21, 0
        v_mov_b32 v23, 0
        s_waitcnt vmcnt(5)
        v_cndmask_b32 v13, 0, v13, vcc
        v_cndmask_b32 v14, 0, v14, vcc
        v_cndmask_b32 v15, 0, v15, vcc
        v_and_b32 v16, 0xffff, v13
        v_lshrrev_b32 v18, 16, v13
        v_and_b32 v20, 0xffff, v14
        v_lshrrev_b32 v22, 16, v14
        ds_write_b128 v10, v[16:19]
        ds_write_b128 v10, v[20:23] offset:2048
        s_cmp_eq_u32 s16, 0
        s_cbranch_scc0 L_hp_n0
        v_and_b32 v16, 0xffff, v15
        v_lshrrev_b32 v18, 16, v15
        ds_write_b128 v10, v[16:19] offset:4096
        L_hp_n0:
        """)
        A("s_waitcnt lgkmcnt(0)")
        A("v_cmp_gt_u32 vcc, 16, v0")
        self.stamp("L", "rdy")
        if self.lprio: A(f"s_setprio {self.lprio}")
    def helper(self, K):
        A0 = self.A; D = K == "D"; T5 = K == "5"
        class W:
            def __call__(s_, t): A0(t.replace("@", K))
            def label(s_, t): A0.label(t.replace("@", K))
        A = W()
        def only(w, f):
            def g():
                l = self.lab("on"); A(f"s_cmp_eq_u32 s16, {w}\ns_cbranch_scc0 {l}"); f(); A.label(l)
            return g
        mk = "0xffff" if self.w2t else "0x1ffffff"
        PL = [(54, 1, 53, "s1", f"s_mov_b32 exec_lo, {mk}\ns_mov_b32 exec_hi, {mk}")]
        stl = f"s_lshl_b32 s17, s26, 11\ns_add_u32 s17, s17, {W_STAT}\nbuffer_load_dwordx4 v[56:59], v8, s[44:47], s17 offen sc1\nbuffer_load_dwordx4 v[60:63], v8, s[44:47], s17 offen offset:1024 sc1\ns_lshl_b32 s17, s20, 11\ns_lshl_b32 s18, s31, 8\ns_add_u32 s17, s17, s18\ns_add_u32 s17, s17, {W_STAT}\nbuffer_load_dwordx4 v[48:51], v52, s[44:47], s17 offen sc1"
        def statline():
            A(f"""ds_read_b32 v24, v9 offset:{SY_ST}
            s_lshl_b32 s17, s26, 4
            s_add_u32 s17, s17, s29
            s_lshl_b32 s17, s17, 7
            s_add_u32 s17, s17, {W_STAT}
            s_mov_b32 exec_hi, 0
            s_waitcnt lgkmcnt(0)
            buffer_store_dword v24, v7, s[44:47], s17 offen sc1
            s_mov_b64 exec, -1""")
        def csprod(fifth=False):
            n = 2 if fifth else 4
            for j in range(n):
                for u in range(2):
                    for t in range(2):
                        A(f"ds_read_b64_tr_b16 {vr(16+8*j+4*u+2*t,2)}, v{(236 if fifth else 232)+j} offset:{32768 + 2048*u + 256*t if fifth else 16384 + 8192*u + 1024*t}")
            A(f"s_mul_i32 s18, s64, 640\ns_add_u32 s17, {'s67' if fifth else 's66'}, s18\ns_waitcnt lgkmcnt(0)")
            for u in range(2):
                for j in range(n): A(f"{self.MF} {vr(212+4*j,4)}, v[228:231], {vr(16+8*j+4*u,4)}, {'0' if u == 0 else vr(212+4*j,4)}")
            A("s_nop 7\nv_cndmask_b32 v212, v216, v212, vcc")
            if not fifth: A("v_cndmask_b32 v220, v224, v220, vcc")
            A("v_perm_b32 v212, v212, v55, v238")
            if not fifth: A("v_perm_b32 v220, v220, v55, v238")
            A("s_mov_b32 exec_hi, 0\nbuffer_store_dword v212, v7, s[44:47], s17 offen sc1")
            if not fifth: A("buffer_store_dword v220, v7, s[44:47], s17 offen offset:256 sc1")
            A("s_mov_b64 exec, -1")
        csd = f"s_mul_i32 s17, s29, 6400\ns_add_u32 s17, s17, {W_CS}\ns_mov_b32 m0, {L_STG}\ns_add_u32 s18, s17, 4096\n" + "\n".join(f"buffer_load_dwordx4 v8, s[44:47], s17 offen offset:{1024*k} sc1 lds" for k in range(4)) \
              + f"\ns_mov_b32 m0, {L_STG + 4096}\ns_nop 0\n" + "\n".join(f"buffer_load_dwordx4 v8, s[44:47], s18 offen offset:{1024*k} sc1 lds" for k in range(3))
        csr = lambda b_, o: "\n".join(f"ds_read_b32 v{b_+k}, v239 offset:{640*k + o}" for k in range(5))
        def csread(): A(csr(16, 0) + "\n" + csr(21, 256) + ("\n" + csr(26, 512) if T5 else ""))
        def cschk(o, tile_off):
            l = self.lab("ck"); b_ = 16 + 5*(o // 256)
            A(f"""s_mov_b32 s19, 0
            {l}:
            s_waitcnt lgkmcnt(0)
            v_xor_b32 v38, v250, v{b_}
            v_xor_b32 v39, v250, v{b_+1}
            v_xor_b32 v40, v250, v{b_+2}
            v_xor_b32 v41, v250, v{b_+3}
            v_xor_b32 v42, v250, v{b_+4}
            v_or3_b32 v38, v38, v39, v40
            v_add_f32 v39, v{b_}, v{b_+1}
            v_or3_b32 v38, v38, v41, v42
            v_add_f32 v40, v{b_+2}, v{b_+3}
            v_and_b32 v38, 0xff, v38
            v_add_f32 v39, v39, v{b_+4}
            v_cmp_ne_u32 vcc, 0, v38
            v_add_f32 v39, v39, v40
            {self.spin_guard(l + "d") or "s_nop 1"}
            s_cbranch_vccz {l}d
            s_sleep 4
            {csd}
            s_waitcnt vmcnt(0)
            {csr(b_, o)}
            s_branch {l}
            {l}d:
            v_mov_b32 v40, v39
            s_nop 1
            v_permlane32_swap_b32 v39, v40
            s_nop 1
            v_add_f32 v39, v39, v40
            v_cvt_pk_bf16_f32 v40, v39, v39
            v_lshlrev_b32 v40, 16, v40
            v_sub_f32 v39, v39, v40
            v_cvt_pk_bf16_f32 v39, v40, v39
            s_mov_b32 exec_hi, 0
            ds_write_b32 v251, v39 offset:{tile_off}
            s_mov_b64 exec, -1""")
        def w2dma():
            if self.w2t and T5: return
            self.w2_task_dma(48, 50, 5, 76)
            if D or self.w2t:
                A("s_cmp_eq_u32 s62, 1\ns_cbranch_scc0 L_hp_d3@")
                self.w2_task_dma(49, 52, 5, 76)
                A("L_hp_d3@:")
        def w2fin():
            if self.w2t and T5: return
            A("s_waitcnt vmcnt(0)")
            self.w2_task_fin(51, 50, 30, 32)
            if D or self.w2t:
                A("s_cmp_eq_u32 s62, 1\ns_cbranch_scc0 L_hp_f3@")
                self.w2_task_fin(53, 52, 30, 212)
                A("L_hp_f3@:")
        def flag():
            if not (self.w2t and T5): A("s_mov_b32 exec_hi, 0\nbuffer_store_dword v55, v7, s[44:47], s0 offen sc1\ns_mov_b64 exec, -1")
        def statchk():
            A(f"""s_mov_b32 s19, 0
            s_mov_b32 s17, 0x01000100
            L_l_sc@:
            v_cmp_ne_u32 vcc, v55, v59
            v_cmp_ne_u32 s[68:69], v55, v63
            v_cmp_ne_u32 s[70:71], v55, v51
            {self.spin_guard("L_l_scd@")}
            s_or_b64 vcc, vcc, s[68:69]
            s_or_b64 vcc, vcc, s[70:71]
            s_cbranch_vccz L_l_scd@
            s_sleep 4
            {stl}
            s_mov_b32 s17, 0x01000100
            s_waitcnt vmcnt(0)
            s_branch L_l_sc@
            L_l_scd@:
            v_perm_b32 v40, v56, v56, s17
            v_lshrrev_b32 v41, 16, v56
            v_perm_b32 v42, v60, v60, s17
            v_lshrrev_b32 v43, 16, v60
            ds_write_b32 v253, v57
            ds_write_b32 v253, v61 offset:256
            ds_write_b32 v253, v58 offset:512
            ds_write_b32 v253, v62 offset:768
            ds_write_b32 v253, v49 offset:{L_SYNC + 512 - L_STAT - 1024}
            ds_write_b64 v252, v[40:41]
            ds_write_b64 v252, v[42:43] offset:512""")
        def xload():
            A(f"""s_lshl_b32 s17, s31, 10
            s_lshl_b32 s18, s20, 2
            s_add_u32 s17, s17, s18
            s_mul_i32 s17, s17, 1280
            s_mul_i32 s18, s15, 160
            s_add_u32 s17, s17, s18""")
            for k in range(5): A(f"buffer_load_dwordx4 {vr(172+8*k,4)}, v{240+k}, s[36:39], s17 offen")
        def f0issue():
            for (dst, n, va, so, ex) in PL: A(f"{ex}\nbuffer_load_dword v{dst}, v{va}, s[44:47], {so} offen sc1\ns_mov_b64 exec, -1")
        def f0chk(): self.poll(PL, 55, first_issued=True)
        W0 = lambda: A("s_waitcnt vmcnt(0)")
        E = dict(w2dma=w2dma, csread=csread, statline=only(0, statline), csprod=csprod, csprod5=(only(1, lambda: csprod(True)) if T5 else None), w2fin=w2fin, flag=only(0, flag),
                 stl=only(1, lambda: A(stl)), csl=only(0, lambda: A(csd)),
                 f0issue=only(0, f0issue), statchk=only(1, statchk), cschk0=lambda: cschk(0, 0), cschk1=lambda: cschk(256, 2048),
                 cschk5=(only(0, lambda: cschk(512, 4096)) if T5 else None), f0chk=only(0, f0chk), xload=xload, fw=only(0, lambda: self.lds_set(12, SY_FW, 16)))
        for n_ in (0, 1, 5, 10): E[f"W{n_}"] = (lambda n_=n_: A(f"s_waitcnt vmcnt({n_})"))
        E["LG"] = lambda: A("s_waitcnt lgkmcnt(0)")
        E["W0_1"] = only(1, E["W0"]); E["W0_0"] = only(0, E["W0"]); E["W3_0"] = only(0, lambda: A("s_waitcnt vmcnt(0)"))
        P = self.hplan or {}
        if not D:
            plan = P.get("W") or ["|", "w2dma", "statline", "csprod", "|", "csprod5", "|", "w2fin", "|", "W0", "|", "flag", "stl", "csl", "|", "W0", "|", "csread", "statchk", "cschk5",
                    "|", "f0issue", "cschk0", "|", "cschk1", "W0", "f0chk", "LG", "|", "xload"]
        else:
            plan = ["|", "w2dma", "statline", "|", "|", "w2fin", "W0", "|", "flag", "|", "stl", "f0issue", "xload", "W5", "statchk", "f0chk", "fw", "LG", "|"]
        i = 0
        for n_ in plan:
            if n_ == "|":
                A("s_barrier"); self.stamp("L", f"B{i}" if not D else ["B0", "X", "B3", "B5", "B7", "B9"][i]); i += 1
            elif n_ not in self.off and E[n_]: E[n_]()
        assert i == (6 if D else 10)
        if self.p1only: self.dump_stamps("L"); A("s_endpgm")
    def hp_gap(self):
        A = self.A
        A.label("L_hp_gap")
        A("s_setprio 0")
        self.l_consts2()
        if self.pgate: self.lds_spin(12, SY_ZF, 4, 16)
        A("s_setprio 3\ns_waitcnt vmcnt(0)")
        for k in range(5):
            x = 172 + 8*k; b = x + 4
            for d in range(4):
                A(f"""v_lshlrev_b32 v{32+2*d}, 16, v{x+d}
                v_and_b32 v{33+2*d}, 0xffff0000, v{x+d}
                v_lshlrev_b32 v40, 16, v{b+d}
                v_and_b32 v41, 0xffff0000, v{b+d}
                v_add_f32 v{32+2*d}, v{32+2*d}, v40
                v_add_f32 v{33+2*d}, v{33+2*d}, v41""")
            A(f"v_xor_b32 v40, 16, v{245+k}\nds_write_b128 v{245+k}, v[32:35]\nds_write_b128 v40, v[36:39]")
        A("s_waitcnt lgkmcnt(0)")
        self.lds_inc(12, SY_P, 16)
        A("s_cmp_eq_u32 s34, 1\ns_cbranch_scc0 L_l_fft")
        self.lds_spin(12, SY_FL, 1, 16)
        self.l_w2dma("a2", 6)
    def l_w2dma(self, tag, count, sfx=''):
        A = self.A
        if tag in ("a", "a2", "b"):
            kr = 16 if tag == "a" else 9
            if kr == 9: A("s_xor_b32 s9, s16, 2")
            A(f"""s_lshl_b32 s18, s{kr}, 3
            s_lshr_b32 s17, {KS0[0] | KS0[1] << 8 | KS0[2] << 16 | KS0[3] << 24:#x}, s18
            s_and_b32 s17, s17, 0xff
            s_add_u32 s17, s17, 1
            s_mul_i32 s8, s17, 40960
            s_mul_i32 s17, s15, 5120
            s_add_u32 s8, s8, s17
            s_add_u32 s8, s8, {W_W2F}""")
            self.lw(7, kr)
            n = 7 if tag == "b" else 6
            A(f"""s_lshl_b32 s17, s24, 1
            s_add_u32 s17, s17, s31
            s_cmp_ge_u32 s17, {n}
            s_cselect_b32 s18, {n}, 0
            s_sub_u32 s17, s17, s18            ; rot
            s_sub_u32 s6, {n}, s17
            s_mul_i32 s4, s17, 5120
            s_add_u32 s4, s4, s7
            s_mul_i32 s5, s17, 40960
            s_add_u32 s5, s5, s8""")
        A(f"s_mov_b32 s18, {count}\nL_l_dma{tag}{sfx}:\ns_mov_b32 m0, s4\ns_add_u32 s17, s5, 4096")
        for nt in range(4): A(f"buffer_load_dwordx4 v8, s[44:47], s5 offen offset:{1024*nt} sc1 lds")
        A(f"""s_add_u32 m0, s4, 4096
        s_add_u32 s4, s4, 5120
        buffer_load_dwordx4 v8, s[44:47], s17 offen sc1 lds
        s_add_u32 s5, s5, 40960
        s_sub_u32 s6, s6, 1
        s_cmp_eq_u32 s6, 0
        s_cselect_b32 s4, s7, s4
        s_cselect_b32 s5, s8, s5
        s_sub_u32 s18, s18, 1
        s_cmp_lg_u32 s18, 0
        s_cbranch_scc1 L_l_dma{tag}{sfx}""")
    def l_gap2(self):
        A = self.A
        A("s_cmp_lt_u32 s16, 2\ns_cbranch_scc1 L_l_gq\ns_cmp_le_u32 s4, 320\ns_cbranch_scc1 L_l_gq")
        A(f"""s_lshl_b32 s17, s16, 2
        v_add_u32 v16, s17, v12
        v_mov_b32 v17, 1
        s_waitcnt vmcnt(0)
        ds_write_b32 v16, v17 offset:{SY_W2}
        ds_write_b32 v16, v17 offset:{SY_W2 - 8}""")
        self.stamp("L", "w2land")
        A.label("L_l_gq")
    def gate(self, t4flag):
        A = self.A; l = self.lab("gt")
        A(f"s_cmp_eq_u32 s34, 1\ns_cbranch_scc0 {l}w")
        self.lds_spin(12, SY_FL, 1, 16)
        A(f"s_sleep {self.zsleepd}\ns_branch {l}e\n{l}w:")
        self.lds_spin(12, SY_WI, 4, 16)
        if t4flag is not None:
            A(f"s_cmp_eq_u32 s33, 1\ns_cbranch_scc1 {l}e")
            self.lds_spin(12, t4flag, 1, 16)
        A(f"{l}e:")
    def h2poll(self, issue):
        A = self.A
        P = [(56, 1, 47, "s0", "s_mov_b64 exec, 0x0707")]
        if issue:
            A(f"v_lshlrev_b32 v47, 7, v0\ns_lshl_b32 s0, s20, 11\ns_add_u32 s0, s0, {W_F1}\ns_mov_b64 exec, 0x0707\nbuffer_load_dword v56, v47, s[44:47], s0 offen sc1\ns_mov_b64 exec, -1")
        else:
            self.poll(P, 55, first_issued=True, sleep=self.zret)
            self.lds_set(12, SY_H2, 16)
    def l_fft(self):
        self.A.label("L_l_fft")
        self.stamp("L", "w2iss")
        A = self.A; F1, TC, TS, F2 = self.F1, self.TC, self.TS, self.F2
        Z = 172; D1 = 204; P = 172; D3 = 236
        A(f"""s_mov_b32 s17, s21
        s_lshr_b32 s18, s17, 2
        s_lshl_b32 s18, s18, 2             ; 4*rb
        s_and_b32 s5, s17, 1
        s_lshl_b32 s5, s5, 1               ; 2*(cbl&1)
        s_add_u32 s18, s18, s5
        s_add_u32 s18, s18, s23
        s_add_u32 s17, s18, 256
        s_cmp_eq_u32 s2, 24
        s_movk_i32 s18, 320
        s_cselect_b32 s18, s18, -1
        s_cmp_eq_u32 s34, 1
        s_cselect_b32 s17, s17, s18
        s_cmp_lt_u32 s16, 2
        s_cselect_b32 s4, s2, s17
        s_cmp_eq_u32 s16, 1
        s_cbranch_scc0 L_l_nhp""")
        self.gate(None)
        A(f"v_lshlrev_b32 v14, 7, v0\ns_lshl_b32 s17, s20, 11\ns_add_u32 s17, s17, {W_F1}")
        self.poll([(16, 1, 14, "s17", "s_mov_b64 exec, 0x3838")], 55, sleep=self.zret)
        self.lds_set(12, SY_H, 16)
        A(f"""L_l_nhp:
        s_cmp_gt_u32 s4, 320
        s_cbranch_scc1 L_l_nofft
        s_bitcmp1_b32 s4, 0
        s_cselect_b32 s17, 128, 0
        s_add_u32 s17, s17, {W_F1 + 6*128}
        v_and_b32 v14, 15, v0
        v_lshlrev_b32 v14, 11, v14
        v_bfe_u32 v15, v0, 4, 1
        v_lshl_add_u32 v14, v15, 10, v14
        v_mov_b32 v15, v12
        s_cmp_eq_u32 s16, 0
        s_cbranch_scc0 L_l_zspin""")
        self.gate(SY_H)
        self.poll([(16, 1, 14, "s17", "s_mov_b32 exec_hi, 0")], 55, sleep=self.zret)
        self.lds_set(12, SY_ZOK, 16)
        A("s_branch L_l_zok\nL_l_zspin:")
        self.lds_spin(12, SY_ZOK, 1, 16)
        A.label("L_l_zok")
        A("s_and_b32 s18, s16, 2\ns_lshl_b32 s18, s18, 1\nv_add_u32 v15, s18, v12")
        self.stamp("L", "Zok")
        A("s_setprio 3")
        A(f"""v_bfe_u32 v16, v0, 2, 2
        v_lshlrev_b32 v16, 8, v16
        v_lshrrev_b32 v17, 4, v0
        v_lshl_add_u32 v16, v17, 6, v16
        v_and_b32 v18, 3, v0
        v_lshl_add_u32 v16, v18, 4, v16     ; z voffset
        s_lshl_b32 s5, s4, 12
        s_add_u32 s5, s5, {W_Z}
        s_add_u32 s6, s5, {PZ}
        s_cmp_eq_u32 s4, 320
        s_cselect_b32 s6, 0x40000000, s6""")
        for a4 in range(4):
            A(f"buffer_load_dwordx4 {vr(Z+4*a4,4)}, v16, s[44:47], s5 offen offset:{1024*a4} sc1")
            A(f"buffer_load_dwordx4 {vr(Z+16+4*a4,4)}, v16, s[44:47], s6 offen offset:{1024*a4} sc1")
        A("s_lshl_b32 s9, s34, 2\ns_or_b32 s9, s9, s16\ns_cmp_eq_u32 s9, 7\ns_cbranch_scc0 L_l_nzi")
        self.h2poll(True)
        A(f"""L_l_nzi:
        v_and_b32 v18, 15, v0
        v_lshlrev_b32 v18, 4, v18
        v_lshl_add_u32 v18, v17, 9, v18
        s_lshl_b32 s5, s4, 13
        s_and_b32 s17, s16, 1
        s_lshl_b32 s18, s17, 11
        s_add_u32 s5, s5, s18
        s_add_u32 s5, s5, {W_Y}
        s_add_u32 s6, s5, 4096
        """)
        mf = "v_mfma_f32_16x16x32_bf16"
        for a4 in range(4):
            zr, zi = vr(Z+4*a4,4), vr(Z+16+4*a4,4); re, im = vr(D1+4*a4,4), vr(D1+16+4*a4,4)
            if a4 == 0:
                A(f"""s_waitcnt vmcnt(6)
                s_lshl_b32 s17, s34, 1
                s_or_b32 s17, s17, s16
                s_cmp_lt_u32 s17, 2
                s_cbranch_scc1 L_l_nw2f
                s_xor_b32 s17, s16, 2
                s_lshl_b32 s17, s17, 2
                v_add_u32 v16, s17, v12
                ds_write_b32 v16, v12 offset:{SY_W2}
                s_cmp_eq_u32 s34, 1
                s_cbranch_scc1 L_l_nw2f
                ds_write_b32 v16, v12 offset:{SY_W2 + 8}
                L_l_nw2f:""")
                self.stamp("L", "zland")
            A(f"""s_waitcnt vmcnt({6-2*a4})
            {mf} {re}, {zr}, {vr(F1,4)}, 0
            {mf} {im}, {zi}, {vr(F1,4)}, 0
            {mf} {re}, {zi}, {vr(F1+4,4)}, {re}
            {mf} {im}, {zr}, {vr(F1+8,4)}, {im}""")
        A("s_nop 1")
        for a4 in range(4):
            if a4 == 3: A("s_nop 0")
            for i in range(4):
                r = D1+4*a4+i; m = r+16; c = TC+4*a4+i; s = TS+4*a4+i
                A(f"""v_mul_f32 v{32+i}, v{r}, v{c}
                v_mul_f32 v{36+i}, v{m}, v{c}
                v_fmac_f32 v{32+i}, v{m}, v{s}
                v_fma_f32 v{36+i}, -v{r}, v{s}, v{36+i}""")
            pr = P + 4*(a4 >> 1) + 2*(a4 & 1); pi = pr + 8
            A(f"""v_cvt_pk_bf16_f32 v{pr}, v32, v33
            v_cvt_pk_bf16_f32 v{pr+1}, v34, v35
            v_cvt_pk_bf16_f32 v{pi}, v36, v37
            v_cvt_pk_bf16_f32 v{pi+1}, v38, v39""")
        A("s_nop 1")
        for k in range(4):
            for T in range(2):
                for jh in range(2):
                    d = vr(D3 + 8*T + 4*jh, 4)
                    f = F2 + 32*jh + 16*(k >> 1) + 8*T + 4*(k & 1)
                    A(f"{mf} {d}, {vr(P+4*k,4)}, {vr(f,4)}, {'0' if k == 0 else d}")
        for i in range(4): A(f"s_mov_b32 s{60+i}, {0x07060500 + i:#x}")
        A("s_nop 1")
        for T in range(2):
            for jh in range(2):
                d = D3+8*T+4*jh
                for i in range(4): A(f"v_perm_b32 v{d+i}, v{d+i}, v55, s{60+i}")
                A(f"buffer_store_dwordx4 {vr(d,4)}, v18, s[44:47], {'s5' if T == 0 else 's6'} offen offset:{256*jh} sc1")
        A("s_cmp_eq_u32 s9, 7\ns_cbranch_scc0 L_l_nofft")
        self.h2poll(False)
        A.label("L_l_nofft")
        self.stamp("L", "fftdone")
    def l_y(self):
        A = self.A
        A(f"s_setprio {self.yprio}")
        A(f"""v_and_b32 v16, 15, v0               ; jl
        v_lshrrev_b32 v17, 4, v0                  ; e sub
        s_mul_i32 s17, s16, 20
        v_mul_u32_u24 v18, {PROW}, v16
        v_lshl_add_u32 v18, v17, 2, v18
        v_add_u32 v18, {L_P}, v18
        v_bfe_u32 v19, v16, 1, 2
        s_mul_i32 s18, s16, 5""")
        for n in range(5): A(f"s_add_u32 s27, s18, {n}\nv_xor_b32 v{28+n}, s27, v19\nv_lshl_add_u32 v{28+n}, v{28+n}, 4, v18")
        A(f"""s_mul_i32 s4, s15, 80
        s_add_u32 s4, s4, s17
        s_cmp_ge_u32 s15, 4
        s_cbranch_scc1 L_l_mir
        v_lshlrev_b32 v24, 13, v17
        v_lshl_add_u32 v24, v16, 4, v24
        s_lshl_b32 s5, s4, 13
        s_lshl_b32 s17, s20, 9
        s_lshl_b32 s18, s31, 8
        s_add_u32 s17, s17, s18
        s_add_u32 s5, s5, s17
        s_add_u32 s5, s5, {W_Y}
        s_mov_b32 s6, 32768
        s_branch L_l_mird
        L_l_mir:
        v_sub_u32 v26, 3, v17
        v_lshlrev_b32 v26, 13, v26                ; (3 - esub)*8192
        v_sub_u32 v24, 15, v16
        v_lshl_add_u32 v24, v24, 4, v26
        s_cmp_eq_u32 s20, 0
        s_cselect_b32 s17, 32, 31
        s_lshl_b32 s18, s31, 4
        s_sub_u32 s17, s17, s18
        v_sub_u32 v25, s17, v16
        v_and_b32 v25, 31, v25
        v_lshl_add_u32 v25, v25, 4, v26
        s_sub_u32 s17, 637, s4
        s_lshl_b32 s5, s17, 13
        s_add_u32 s5, s5, {W_Y}
        s_sub_u32 s17, 16, s20
        s_and_b32 s17, s17, 15
        s_lshl_b32 s17, s17, 9
        s_add_u32 s8, s5, s17
        s_sub_u32 s17, 15, s20
        s_lshl_b32 s17, s17, 9
        s_sub_u32 s18, 1, s31
        s_lshl_b32 s18, s18, 8
        s_add_u32 s17, s17, s18
        s_add_u32 s5, s5, s17
        s_mov_b32 s6, -32768
        L_l_mird:""")
        self.lds_spin(12, SY_P, 2, 16)
        for n in range(5):
            for i in range(4): A(f"ds_read_b32 v{172+4*n+i}, v{28+n} offset:{16*PROW*i}")
        self.lds_spin(12, SY_G, 1, 16)
        def chk(b, first):
            A(f"v_perm_b32 v20, v{b+1}, v{b}, s60\nv_perm_b32 v21, v{b+3}, v{b+2}, s61")
            A("v_bitop3_b32 v22, v20, v21, v55 bitop3:0x56" if first else "v_bitop3_b32 v20, v20, v21, v55 bitop3:0x56\nv_or_b32 v22, v22, v20")
        A("s_mov_b32 s60, 0x0c0c0400\ns_mov_b32 s61, 0x04000c0c\ns_mov_b32 s19, 0\nL_l_yl:\ns_mov_b32 s62, s5\ns_mov_b32 s63, s8")
        self.stamp("L", "Yok")
        for n in range(5):
            A(f"buffer_load_dwordx4 {vr(192+4*n,4)}, v24, s[44:47], s62 offen sc1\ns_add_u32 s62, s62, s6")
        A("s_cmp_ge_u32 s15, 4\ns_cbranch_scc1 L_l_ex")
        for n in range(5): A(f"s_waitcnt vmcnt({4-n})"); chk(192+4*n, n == 0)
        A("s_branch L_l_yc\nL_l_ex:")
        for n in range(5):
            A(f"buffer_load_dwordx4 {vr(212+4*n,4)}, v25, s[44:47], s63 offen sc1\ns_add_u32 s63, s63, s6")
        for n in range(5): A(f"s_waitcnt vmcnt({9-n})"); chk(192+4*n, n == 0)
        for n in range(5):
            A(f"s_waitcnt vmcnt({4-n})"); chk(212+4*n, False)
            A(f"v_mov_b32 v{192+4*n}, v{212+4*n}\nv_swap_b32 v{193+4*n}, v{195+4*n}")
        A(f"""L_l_yc:
        v_cmp_ne_u32 vcc, 0, v22
        {self.spin_guard("L_l_yd") or "s_nop 1"}
        s_cbranch_vccz L_l_yd
        s_sleep {self.yret}
        s_branch L_l_yl
        L_l_yd:""")
        A("s_waitcnt vmcnt(0) lgkmcnt(0)")
        for n in range(5):
            for i in range(4): A(f"v_add_f32 v{172+4*n+i}, v{172+4*n+i}, v{192+4*n+i}\nds_write_b32 v{28+n}, v{172+4*n+i} offset:{16*PROW*i}")
        A("s_waitcnt lgkmcnt(0)")
        self.stamp("L", "ydone")
        self.lds_inc(12, SY_Y, 16)
        A("""s_or_b32 s17, s2, s16
        s_cmp_eq_u32 s17, 0
        s_cbranch_scc0 L_l_noep
        v_mov_b32 v8, 0
        s_mov_b64 exec, 1
        buffer_store_dword v55, v8, s[44:47], 0 offen sc1
        s_mov_b64 exec, -1
        L_l_noep:""")

    def build(self):
        A = self.A
        self.prologue()
        nl = self.nstamp["L"]
        self.loader()
        self.nstamp["L"] = nl
        self.loader_d()
        self.notld()
        A.label("L_hp")
        self.nstamp["L"] = nl
        self.hp_setup()
        nl = self.nstamp["L"]
        A("s_cmp_eq_u32 s34, 1\ns_cbranch_scc1 L_hp_D\ns_cmp_eq_u32 s33, 0\ns_cbranch_scc1 L_hp_4")
        self.helper("5"); self.hp_gap(); self.l_fft(); self.l_gap2(); self.l_y()
        self.dump_stamps("L")
        A("s_endpgm\nL_hp_D:")
        self.nstamp["L"] = nl
        self.helper("D"); A("s_branch L_hp_gap\nL_hp_4:")
        self.nstamp["L"] = nl
        self.helper("4"); A("s_branch L_hp_gap")
        self.g_phase0()
        self.stamp("G", "p0done")
        A("s_cmp_eq_u32 s34, 1\ns_cbranch_scc1 L_gD\ns_cmp_eq_u32 s33, 0\ns_cbranch_scc1 L_g4")
        n0 = self.nstamp["G"]
        self.g_main("5", 5); self.g_epi_h(5); A("s_branch L_g_issued")
        self.nstamp["G"] = n0
        self.g_main_d(); self.g_epi_z(); A("s_branch L_g_issued")
        self.nstamp["G"] = n0
        self.g_main("4", 4); self.g_epi_h(4)
        self.g_phase2()
        self.dump_stamps("G")
        A.label("L_end")
        hdr = open("cdna_kernels/" + KNAME[:-7] + ".s.ref").read().split("; Override")[0]
        s = hdr + f"; @launch grid=(256,1,1) block=(512,1,1) lds={LDS_BYTES}\n" + '.amdgcn_target "amdgcn-amd-amdhsa--gfx950"\n'
        return s + kernel(KNAME, A.text(), vgpr=256, accum=256).replace("s_endpgm\n.section .rodata", "s_endpgm\n.fill 512, 4, 0xbf810000\n.section .rodata")

if __name__ == "__main__":
    for m in ("", "lb", "s0", "ck"):
        g = Gen(mode=m); open(f"megaT{m}.s", "w").write(g.build()); print(g.names)
    open("megaT_rel.s", "w").write(Gen(dbg=False).build())
    for k, v in {"a": dict(ystep=10), "b": dict(ofl=" nt"), "c": dict(ofl=" sc1"), "d": dict(ystep=10, ofl=" nt")}.items():
        open(f"megaT_{k}_rel.s", "w").write(Gen(dbg=False, **v).build())
```

```python
import sys, struct
from alib import *

KNAME = "parallel_sum__spectral_fnet__dense_activation_squared_relu__prompt_kernel"
SLOT = 36864; NS = 4; DS = 28672
LDS_BYTES = 163840
L_STG = 4*SLOT
L_STG3 = 3*SLOT
M = 155648
L_CORR = M; L_STAT = M + 5120; L_SYNC = M + 7168
L_CST = 3*SLOT + 4096
SY_ACK, SY_ZW, SY_ZF, SY_FW, SY_P, SY_H, SY_ZI, SY_W2, SY_ZOK, SY_FD = 0, 4, 8, 12, 16, 20, 24, 32, 48, 56
SY_G = 28; SY_FL = 64; SY_WI = 68; SY_H2 = 72; SY_S1 = 76; SY_X = 84; SY_Y = 88
SY_C = 80
SY_ST = 256
ZROW = 272; ZB = 3*DS
LW = [0, 35840, 73728, 104448]; L_P = 135168; PROW = 320
KS0 = [24, 32, 40, 47]; NREG = 7
FTM = lambda f: f + 24 if f < 20 else f - 20 if f < 32 else f + 12 if f < 42 else f - 30
W_F0, W_F1, W_FY = 0x40000, 0x48000, 0x50000
W_CS = 0x60000
W_STAT = 0x10000; W_DBG = 0x20000
W_W2F = 0x100000; W_H = 0x400000; W_Z = 0xB00000; PZ = 0x150000; W_Y = 0xE00000
WS_SIZE = 0x1200000
HC = 54*2048
tA = [[0,192,320,640,768,896,0,192],[512,1024,1216,1344,1472,1600,0,192]]
tB = [[128,160,448,0,0,0,128,160],[480,1152,1184,0,0,0,128,160]]
SCHED = [[0,3,1,2,4,7,5,6,8,9],[0,1,4,2,3,5,8,6,7,9],[1,0,2,5,3,4,6,9,7,8],[2,0,1,3,6,4,5,7,8,9]]
XSH = (0,2,5,7,1)
def fl(x): return "0x%08x" % struct.unpack("<I", struct.pack("<f", x))[0]

class Gen:
    def __init__(self, dbg=True, spin=200000, mode='', lprio=0, noslice=False, ysleep=16, zsleep=8, zret=8, zbound=0, dfirst=1, wprio=0, wgate=3, npw=5, h2at=4, swap=1, touchp=0, ofl=' sc1', npreb=1, w2t=0, pgate=1, hplan=None, plan=1, off=(), p1only=False, rtail=4, yret=6, yprio=3, map2=0, nbd=5, nbc=0, bgate=0, spf=0, nb0=0, voff=1, skew=0, roles=None, hsleep=10, nb=0, dpf=0, zsleep4=12, zsleepd=0, ystep=11, ngate=4, touch=False, sched=None, xsh=None, gbit=10, rmul=0, npre=0, la=3, pfi=()):
        self.A = Asm(); self.dbg = dbg; self.SPIN = spin; self.mode = mode; self.lprio = lprio; self.noslice = noslice; self.la = la; self.swap = swap; self.touchp = touchp; self.ofl = ofl; self.npreb = npreb; self.w2t = w2t; self.pgate = pgate; self.hplan = hplan; self.plan = plan; self.off = off; self.p1only = p1only; self.rtail = rtail; self.yprio = yprio; self.yret = yret; self.h2at = h2at; self.bgate = bgate; self.nbc = nbc; self.nbd = nbd; self.map2 = map2; self.npw = npw; self.spf = spf; self.wgate = wgate; self.nb0 = nb0; self.voff = voff; self.skew = skew
        roles = roles or [(0,0,0),(0,1,0),(0,2,0),(0,3,0),(1,0,0),(1,1,0),(1,2,0),(1,3,0)]
        self.rolemap = sum(((g << 3) | (jh << 2) | e) << (4*i) for i, (jh, e, g) in enumerate(roles)); self.hsleep = hsleep; self.nb = nb; self.dpf = dpf; self.wprio = wprio; self.dfirst = dfirst; self.zsleep4 = zsleep4; self.zsleepd = zsleepd; self.ystep = ystep; self.zbound = zbound; self.ngate = ngate; self.sched = sched or SCHED; self.xsh = xsh or XSH; self.touch = touch; self.zret = zret; self.pfi = pfi; self.gbit = gbit; self.rmul = rmul; self.npre = npre; self.ysleep = ysleep; self.zsleep = zsleep
        self.nstamp = {"G": 0, "L": 0}; self.names = {}; self.uid = 0
    def lab(self, p):
        self.uid += 1; return f"L_{p}{self.uid}"
    @staticmethod
    def sreg(i): return 86+2*i if i < 8 else [60, 62, 14][i-8]
    def stamp(self, role, name=''):
        if not self.dbg: return
        sel = {"": {"G": ["start","B0","B10","issued","acked","Hok","p2done","end"], "L": ["B9","w2iss","Zok","fftdone","w2land","Yok","ydone"]},
               "lb": {"G": ["start","B0","fin","B10","issued","acked","w2iss","Hok"], "L": ["B0","B1","B3","B5","B7","B9"]},
               "l2": {"G": ["start","B0","B10","issued","acked","w2iss","Hok","B15"], "L": ["B5","W6","B6","W7","B7","W8","B8"]},
               "l1": {"G": ["start","B0","B10","issued","acked","w2iss","Hok","B15"], "L": ["B0","W1","B1","W2","B2","W3","B3"]},
               "fl": {"G": ["start","B10","issued","acked","flagack","w2iss","Hok","B15"], "L": ["B9","zpoll","Zok","zland","fftst","fftdone"]},
               "nv": {"G": ["start","B10","issued","acked","w2iss","Hok","p2done"], "L": ["Zok","fftdone","w2iss","w2land","Yok","ydone"]},
               "p2": {"G": ["start","Hok","S0","S1","S4","S7","S10","p2done"], "L": ["Zok","fftdone","w2iss","w2land","Yok","ydone"]},
               "ck": {"G": ["start","B0","B10","issued","acked","Hok","p2done","end"], "L": []},
               "s0": {"G": ["start","gl","preBa","Ba","xland","p0done","B0"], "L": ["pre-issue","preBa","Ba","rdy","B0"]},
               "st": {"G": ["start","B10","zw","issued","acked","w2iss","Hok","B15"], "L": ["pre-issue","B0","B9","w2iss","zland"]}}[self.mode]
        if name not in sel[role]: return
        i = self.nstamp[role]; self.nstamp[role] += 1
        assert i < 8, name
        self.names.setdefault(role, {})[i] = name
        r = self.sreg(i); self.A(f"s_memtime s[{r}:{r+1}]" if not (self.mode == "ck" and role == "G") else f"s_memrealtime s[{r}:{r+1}]")
    def dump_stamps(self, role):
        if not self.dbg: return
        A = self.A
        A(f"""s_waitcnt lgkmcnt(0)
        s_lshl_b32 s17, s2, 3
        s_add_u32 s17, s17, s3
        s_lshl_b32 s17, s17, 6
        s_add_u32 s17, s17, {W_DBG}
        v_mov_b32 v1, s17""")
        for i in range(self.nstamp[role]):
            A(f"v_mov_b32 v2, s{self.sreg(i)}\nbuffer_store_dword v2, v1, s[44:47], 0 offen offset:{4*i}")
        A("s_memrealtime s[72:73]\ns_waitcnt lgkmcnt(0)\nv_mov_b32 v2, s70\nbuffer_store_dword v2, v1, s[44:47], 0 offen offset:32\nv_mov_b32 v2, s72\nbuffer_store_dword v2, v1, s[44:47], 0 offen offset:36\ns_getreg_b32 s72, hwreg(HW_REG_XCC_ID)\nv_mov_b32 v2, s72\nbuffer_store_dword v2, v1, s[44:47], 0 offen offset:40\ns_getreg_b32 s72, hwreg(HW_REG_HW_ID)\nv_mov_b32 v2, s72\nbuffer_store_dword v2, v1, s[44:47], 0 offen offset:44")
        A("s_waitcnt vmcnt(0)")
    def spin_guard(self, done):
        if self.SPIN: return f"s_add_u32 s19, s19, 1\ns_cmp_gt_u32 s19, {self.SPIN}\ns_cbranch_scc1 {done}"
        return ""
    def lds_spin(self, vaddr, off, val, vt, bound=None, nosleep=False):
        l = self.lab("sp"); d = l + "d"
        self.A(f"""s_mov_b32 s19, 0
        {l}:
        ds_read_b32 v{vt}, v{vaddr} offset:{off}
        s_waitcnt lgkmcnt(0)
        v_readfirstlane_b32 s27, v{vt}
        {self.spin_guard(d) if bound is None else f"s_add_u32 s19, s19, 1; s_cmp_gt_u32 s19, {bound}; s_cbranch_scc1 {d}".replace("; ", chr(10))}
        s_cmp_ge_u32 s27, {val}
        s_cbranch_scc1 {d}
        {"" if nosleep else "s_sleep 1"}
        s_branch {l}
        {d}:""")
    def lw(self, sd, sk):
        self.A(f"s_mul_i32 s{sd}, s{sk}, 35840\ns_cmp_ge_u32 s{sk}, 2\ns_cselect_b32 s27, 2048, 0\ns_add_u32 s{sd}, s{sd}, s27\ns_cmp_eq_u32 s{sk}, 3\ns_cselect_b32 s{sd}, {LW[3]}, s{sd}")
    def lds_set(self, vaddr, off, vt):
        self.A(f"v_mov_b32 v{vt}, 1\nds_write_b32 v{vaddr}, v{vt} offset:{off}")
    def lds_inc(self, vaddr, off, vt):
        self.A(f"""v_mov_b32 v{vt}, 1
        s_mov_b64 exec, 1
        ds_add_u32 v{vaddr}, v{vt} offset:{off}
        s_mov_b64 exec, -1""")
    def poll(self, loads, vtag, first_issued=False, sleep=4):
        A = self.A; l = self.lab("po"); d = l + "d"; c = l + "c"
        A("s_mov_b32 s19, 0")
        if first_issued: A(f"s_branch {c}")
        A(f"{l}:")
        for (dst, n, va, so, ex) in loads:
            if ex: A(ex)
            A(f"buffer_load_dword{'x%d' % n if n > 1 else ''} {vr(dst, n)}, v{va}, s[44:47], {so} offen sc1")
            if ex and len(loads) > 1: A("s_mov_b64 exec, -1")
        A(f"s_waitcnt vmcnt(0)\n{c}:")
        for k, (dst, n, va, so, ex) in enumerate(loads):
            if ex: A(ex)
            if n == 1: A(f"v_cmp_ne_u32 vcc, v{vtag}, v{dst}")
            else:
                for i in range(n): A(f"v_xor_b32 v{dst+i}, v{vtag}, v{dst+i}")
                A(f"v_or3_b32 v{dst}, v{dst}, v{dst+1}, v{dst+2}\nv_or_b32 v{dst}, v{dst}, v{dst+3}\nv_cmp_ne_u32 vcc, 0, v{dst}")
            A("s_mov_b64 exec, -1")
            if len(loads) > 1:
                A("s_nop 0\ns_mov_b64 s[64:65], vcc" if k == 0 else "s_nop 0\ns_or_b64 vcc, vcc, s[64:65]")
        A(self.spin_guard(d) or "s_nop 1")
        A(f"s_cbranch_vccz {d}\ns_sleep {sleep}\ns_branch {l}\n{d}:")

    def spoll(self, base, loads, words, soff, first_issued=False, sleep=2, issue_only=False):
        A = self.A
        ld = "\n".join(f"s_load_dwordx{n} s[{d}:{d+n-1}], s[12:13], {soff} offset:{base+imm} glc" for d, n, imm in loads)
        if issue_only: A(ld); return
        l = self.lab("sq"); d_ = l + "d"; c = l + "c"
        A("s_mov_b32 s19, 0")
        if first_issued: A(f"s_branch {c}")
        A(f"{l}:\n{ld}\n{c}:\ns_waitcnt lgkmcnt(0)")
        w = list(words); f = w[0]
        A(f"s_xor_b32 s27, s{f}, s14")
        for x in w[1:]: A(f"s_xor_b32 s{x}, s{x}, s14\ns_or_b32 s27, s27, s{x}")
        A(self.spin_guard(d_))
        A(f"s_cmp_eq_u32 s27, 0\ns_cbranch_scc1 {d_}\ns_sleep {sleep}\ns_branch {l}\n{d_}:")

    def prologue(self):
        A = self.A
        A("s_cmp_ge_u32 s2, 256\ns_cbranch_scc1 L_end")
        self.stamp("G", "start"); self.nstamp["L"] = self.nstamp["G"]
        if self.dbg: A("s_memrealtime s[70:71]")
        A("""
        s_getpc_b64 s[18:19]
        L_pf:
        s_lshr_b32 s21, s2, 3         ; slot
        v_lshlrev_b32 v2, 4, v0
        s_lshl_b32 s17, s21, 11
        v_add_u32 v2, s17, v2
        v_cmp_gt_u32 vcc, 128, v0
        s_cmp_lt_u32 s17, L_end - L_pf
        s_cselect_b64 vcc, vcc, 0
        s_cbranch_vccz L_nopf
        global_load_dwordx4 v[252:255], v2, s[18:19]
        L_nopf:
        s_load_dwordx2 s[4:5], s[0:1], 0
        s_load_dwordx2 s[6:7], s[0:1], 48
        s_load_dwordx2 s[12:13], s[0:1], 96
        s_load_dwordx4 s[8:11], s[0:1], 24
        v_lshrrev_b32 v1, 6, v0
        s_bfe_u32 s22, s2, 0x20001    ; xr
        v_readfirstlane_b32 s3, v1    ; wave 0..7
        s_and_b32 s23, s2, 1          ; xc
        s_lshr_b32 s24, s21, 3        ; rbl
        s_and_b32 s25, s21, 7         ; cbl
        s_lshl2_add_u32 s26, s22, s24 ; rb
        s_and_b32 s16, s3, 3
        s_cmp_ge_u32 s25, 6
        s_cselect_b32 s34, 1, 0       ; isDFT
        s_cmp_lt_u32 s3, 6
        s_cbranch_scc1 L_notld
        v_and_b32 v0, 63, v0""")
    def cols(self):
        def pack(t):
            v = 0
            for i, x in enumerate(t[:6]): v |= (x//32) << (5*i) if False else 0
            return v
        pa = [sum((x//64) << (5*i) for i, x in enumerate(t[:6])) for t in tA]
        pb = [sum((1 if tB[c][i] > tA[c][i] else 0) << i for i in range(3)) for c in range(2)]
        self.A(f"""s_cmp_eq_u32 s23, 0
        s_mov_b32 s28, {pa[1]:#x}
        s_cselect_b32 s28, {pa[0]:#x}, s28
        s_cselect_b32 s30, {pb[0]}, {pb[1]}
        s_mul_i32 s27, s25, 5
        s_lshr_b32 s28, s28, s27
        s_and_b32 s28, s28, 31
        s_lshl_b32 s28, s28, 1        ; colA/32
        s_bitcmp1_b32 s30, s25
        s_cselect_b32 s30, 4, -1
        s_add_u32 s30, s30, s28       ; colB/32
        s_cmp_lt_u32 s25, 3
        s_cselect_b32 s33, 1, s34     ; T5""")
    def roles(self):
        self.A("""s_lshl3_add_u32 s29, s23, s25  ; cb
        s_and_b32 s15, s21, 3
        s_lshl2_add_u32 s15, s23, s15 ; eb
        s_bfe_u32 s31, s21, 0x10002   ; jh
        s_mov_b32 s20, s26            ; rb2
        s_lshl1_add_u32 s27, s26, s23
        s_mul_i32 s21, s27, 3
        s_add_u32 s21, s21, s25
        s_add_u32 s21, s21, 61
        s_cmp_lt_u32 s25, 3
        s_cselect_b32 s17, 99, 0
        s_add_u32 s21, s21, s17
        s_lshl1_add_u32 s27, s27, s25
        s_sub_u32 s27, s27, 6
        s_cmp_eq_u32 s34, 1
        s_cselect_b32 s21, s27, s21   ; p'""")
    def notld(self):
        A = self.A
        A("""L_notld:
        s_load_dwordx2 s[62:63], s[0:1], 56
        s_load_dwordx4 s[80:83], s[0:1], 64
        s_load_dwordx2 s[84:85], s[0:1], 80
        v_and_b32 v0, 63, v0""")
        A("s_cmp_lt_u32 s3, 4\ns_cbranch_scc1 L_gstart")
        self.cols(); self.roles()
    def common_srds(self):
        A = self.A
        A("s_waitcnt lgkmcnt(0)")
        srd(A, 36, 4, 2048*1280)
        srd(A, 44, 12, WS_SIZE)
        A("s_load_dword s14, s[12:13], 0")
    def get_tag(self):
        self.A("s_waitcnt lgkmcnt(0)\ns_mul_i32 s14, s14, 0x9E3779B1\ns_add_u32 s14, s14, 0x85EBCA6B")
    def w2_task_addr(self, st, so, sd, vo):
        self.A(f"""
        v_lshrrev_b32 v{vo}, 3, v0
        v_mul_u32_u24 v{vo}, 1280, v{vo}
        v_and_b32 v{vo+1}, 7, v0
        v_lshl_add_u32 v{vo}, v{vo+1}, 4, v{vo}
        s_mul_i32 s17, s{st}, 6554
        s_lshr_b32 s17, s17, 16        ; ks
        s_mul_i32 s18, s17, 10
        s_sub_u32 s18, s{st}, s18      ; cl
        s_mul_i32 s{so}, s17, 40960
        s_cmp_lt_u32 s17, 42
        s_cselect_b32 s27, 12, -30
        s_cmp_lt_u32 s17, 32
        s_cselect_b32 s27, -20, s27
        s_cmp_lt_u32 s17, 20
        s_cselect_b32 s27, 24, s27
        s_add_u32 s17, s17, s27
        s_mul_i32 s{sd}, s17, 40960
        s_lshl_b32 s17, s18, 12
        s_add_u32 s{sd}, s{sd}, s17
        s_add_u32 s{sd}, s{sd}, {W_W2F}
        s_lshl_b32 s17, s18, 7
        s_add_u32 s{so}, s{so}, s17""")
    def w2_task_dma(self, so, sstg, vo, srd_):
        for n in range(4):
            self.A(f"s_add_u32 m0, s{sstg}, {1024*n}\n" + ("s_nop 0" if n == 0 else f"s_add_u32 s{so}, s{so}, 10240") + f"\nbuffer_load_dwordx4 v{vo}, s[{srd_}:{srd_+3}], s{so} offen lds")
    def w2_task_fin(self, sd, sstg, t, d, wait=None):
        A = self.A
        A(f"""v_lshrrev_b32 v{t}, 2, v0
        v_lshlrev_b32 v{t}, 7, v{t}
        v_and_b32 v{t+1}, 3, v0
        v_lshl_add_u32 v{t}, v{t+1}, 3, v{t}
        v_add_u32 v{t}, s{sstg}, v{t}
        v_lshlrev_b32 v{t+1}, 4, v0""")
        if wait: A(wait)
        for nl in range(4):
            for k in range(2): A(f"ds_read_b64_tr_b16 {vr(d+4*nl+2*k,2)}, v{t} offset:{2048*k + 32*nl}")
        for nl in range(4):
            A(f"s_waitcnt lgkmcnt({6-2*nl})\nbuffer_store_dwordx4 {vr(d+4*nl,4)}, v{t+1}, s[44:47], s{sd} offen offset:{1024*nl} sc1")

    def g_phase0(self):
        A = self.A
        A.label("L_gstart")
        A(f"""
        s_lshl3_add_u32 s29, s23, s25
        v_and_b32 v11, 31, v0          ; l'
        v_lshrrev_b32 v12, 5, v0       ; hh
        s_mov_b32 s17, 81920
        v_mul_lo_u32 v13, v12, s17
        v_lshl_add_u32 v13, v11, 4, v13
        s_and_b32 s17, s29, 3
        s_lshl_b32 s17, s17, 2
        s_add_u32 s17, s17, s16
        s_lshl_b32 s48, s17, 1         ; j0 = 8(cb&3)+2g
        s_lshr_b32 s49, s29, 2         ; cb>>2
        s_lshl_b32 s50, s26, 2
        s_add_u32 s50, s50, s49        ; c
        s_lshl_b32 s17, s48, 6
        s_add_u32 s17, s17, s50
        s_mul_i32 s51, s17, 1280
        """)
        self.common_srds()
        A("""
        buffer_load_dwordx4 v[20:23], v13, s[36:39], s51 offen
        buffer_load_dwordx4 v[24:27], v13, s[36:39], s51 offen offset:512
        s_mov_b32 exec_lo, 0xffff
        s_mov_b32 exec_hi, 0xffff
        buffer_load_dwordx4 v[28:31], v13, s[36:39], s51 offen offset:1024
        s_mov_b64 exec, -1
        """)
        if self.touchp:
            A(f"""s_cmp_eq_u32 s16, 3
            s_cbranch_scc0 L_g_ntp
            v_mul_u32_u24 v64, {WS_SIZE // 64}, v0
            buffer_load_dword v65, v64, s[44:47], 0 offen
            s_mov_b32 s40, s84
            s_mov_b32 s41, s85
            s_mov_b32 s42, {2048*1280}
            s_mov_b32 s43, 0x20000
            v_mul_u32_u24 v64, 40960, v0
            buffer_load_dword v66, v64, s[40:43], 0 offen
            L_g_ntp:""".replace("v64", "v244").replace("v65", "v245").replace("v66", "v246"))
        self.stamp("G", "gl")
        self.g_consts()
        self.cols(); self.roles()
        self.g_addr_setup()
        for i in range(80): A(f"v_mov_b32 v{self.ACC+i}, 0")
        self.get_tag()
        self.stamp("G", "preBa")
        A("s_barrier")
        self.stamp("G", "Ba")
        A("s_waitcnt vmcnt(0)")
        self.stamp("G", "xland")
        lo16 = "s_mov_b32 exec_lo, 0xffff\ns_mov_b32 exec_hi, 0xffff"
        A("v_mov_b32 v40, 0x3f803f80\nv_mov_b32 v41, 0xbf803f80")
        for k in range(6): A(f"v_mov_b32 v{56+k}, 0")
        def dots(d):
            k = 3*(d & 1)
            A(f"v_dot2c_f32_bf16 v{56+k}, v{20+d}, v40\nv_dot2c_f32_bf16 v{57+k}, v{20+d}, v41\nv_dot2c_f32_bf16 v{58+k}, v{20+d}, v{20+d}")
        for d in range(8): dots(d)
        A(lo16)
        for d in range(8, 12): dots(d)
        A("s_mov_b64 exec, -1\ns_nop 2\nv_add_f32 v56, v56, v59\nv_add_f32 v57, v57, v60\nv_add_f32 v59, v58, v61")
        regs = [56, 57, 59]; t = 60
        for mode in ("quad_perm:[1,0,3,2]", "quad_perm:[2,3,0,1]", "row_half_mirror", "row_mirror"):
            for r in regs: A(f"v_add_f32_dpp v{r}, v{r}, v{r} {mode} row_mask:0xf bank_mask:0xf")
        for k, r in enumerate(regs): A(f"v_mov_b32 v{t+k}, v{r}")
        A("s_nop 1")
        for k, r in enumerate(regs): A(f"v_permlane16_swap_b32 v{r}, v{t+k}")
        for k, r in enumerate(regs): A(f"v_add_f32 v{r}, v{r}, v{t+k}")
        A("""v_mul_f32 v58, 0x3acccccd, v56 ; mean
        v_fma_f32 v59, -v58, v56, v59
        v_max_f32 v59, 0, v59""")
        A(f"""
        v_mul_f32 v59, 0x3acccccd, v59          ; var
        v_cvt_pk_bf16_f32 v59, v59, v59
        v_lshlrev_b32 v59, 16, v59
        v_add_f32 v59, 0x3727c5ac, v59
        v_cvt_pk_bf16_f32 v59, v59, v59
        v_lshlrev_b32 v59, 16, v59
        v_sqrt_f32 v59, v59
        v_mov_b32 v35, s14
        v_cvt_pk_bf16_f32 v32, -v58, v59        ; (-m, sd)
        v_and_b32 v59, 0xffff0000, v32
        v_rcp_f32 v33, v59                      ; r
        s_lshl_b32 s17, s16, 1
        v_mul_f32 v34, v33, v57                 ; z320
        v_lshrrev_b32 v36, 5, v0
        v_add_u32 v36, s17, v36                 ; i = 2g + hh
        v_lshlrev_b32 v37, 4, v36
        v_add_u32 v37, {L_SYNC + SY_ST}, v37
        s_mov_b32 exec_lo, 1
        s_mov_b32 exec_hi, 1
        ds_write_b128 v37, v[32:35]
        s_mov_b64 exec, -1
        """)
        A("s_waitcnt lgkmcnt(0)")

    XA = 2; WA = 4; FR = [16, 64]; ACC = 112; CSA = 192; SEL = 204
    MF = "v_mfma_f32_16x16x32_bf16"
    def g_addr_setup(self):
        XA, WA = self.XA, self.WA; A = self.A
        A(f"""
        s_lshl_b32 s17, s16, 12
        v_and_b32 v60, 15, v0
        v_lshrrev_b32 v61, 4, v0          ; G
        v_lshrrev_b32 v62, 1, v60
        v_xor_b32 v62, v62, v61
        v_lshlrev_b32 v62, 4, v62
        v_lshl_add_u32 v62, v60, 7, v62
        v_add_u32 v{XA}, s17, v62
        v_xor_b32 v{XA+1}, 64, v{XA}
        v_bfe_u32 v60, v0, 2, 2           ; r4
        v_lshl_add_u32 v62, v61, 3, v60   ; 8G + r4
        v_and_b32 v61, 1, v61
        v_lshlrev_b32 v61, 5, v61
        v_and_b32 v63, 3, v0
        v_lshl_add_u32 v61, v63, 3, v61   ; (G&1)*32 + cq*8
        v_lshl_add_u32 v{WA+8}, v62, 6, v61
        v_add_u32 v{WA+8}, 32768, v{WA+8}
        v_xor_b32 v{WA+9}, 32, v{WA+8}
        v_lshl_add_u32 v62, v62, 8, v61
        v_lshl_add_u32 v62, v60, 6, v62
        v_add_u32 v62, 16384, v62
        """)
        for j in range(8): A(f"v_xor_b32 v{WA+j}, {32*j}, v62")
        A(f"""v_and_b32 v60, 15, v0
        s_lshl_b32 s17, s16, 8
        s_add_u32 s17, s17, {L_STAT}
        v_lshl_add_u32 v240, v60, 3, s17
        v_lshlrev_b32 v241, 3, v0
        v_add_u32 v241, {L_CORR}, v241
        v_mov_b32 v242, {L_SYNC}
        v_mov_b32 v243, 1
        v_lshrrev_b32 v60, 4, v0
        v_cmp_eq_u32 s[66:67], 0, v60
        v_cmp_eq_u32 s[68:69], 1, v60""")
        for i in range(192, 240):
            if i & 2: A(f"v_mov_b32 v{i}, 0")
    def reads(self, u, T, off):
        f = self.FR[u]; L = [f"ds_read_b128 {vr(f+4*jt,4)}, v{self.XA+u} offset:{off + 2048*jt}" for jt in range(2)]
        for j in range(2*T):
            for t in range(2):
                o = off + (8192*u + 1024*t if j < 8 else 2048*u + 256*t)
                L.append(f"ds_read_b64_tr_b16 {vr(f+8+4*j+2*t,2)}, v{self.WA+j} offset:{o}")
        return L
    def mfmas(self, u, T):
        f = self.FR[u]
        return [f"{self.MF} {vr(self.ACC+8*j+4*jt,4)}, {vr(f+8+4*j,4)}, {vr(f+4*jt,4)}, {vr(self.ACC+8*j+4*jt,4)}" for j in range(2*T) for jt in range(2)]
    @staticmethod
    def interleave(ms, rs):
        out = []; n = len(ms); k = 0
        for i, m in enumerate(ms):
            out.append(m)
            cnt = (len(rs) - k + (n - i) - 1) // (n - i)
            out += rs[k:k+cnt]; k += cnt
        return out
    def csm(self, u, T, wv):
        f = self.FR[u]; c = self.CSA
        L = [f"{self.MF} {vr(c+4*j,4)}, {vr(self.SEL,4)}, {vr(f+8+4*j,4)}, {vr(c+4*j,4)}" for j in range(2)]
        if T == 5 and (wv >> 1) == u:
            L.append(f"{self.MF} {vr(c+8,4)}, {vr(self.SEL,4)}, {vr(f+8+4*(8+(wv&1)),4)}, {vr(c+8,4)}")
        return L
    def g_main(self, tag, T):
        A = self.A
        A.label(f"L_g{tag}")
        t = tag
        A(f"s_mov_b32 s18, 0\ns_mov_b32 s17, {2*SLOT}")
        A("s_barrier")
        self.stamp("G", "B0")
        A("\n".join(self.reads(0, T, 0)))
        A(".p2align 3")
        A.label(f"L_g{t}_loop")
        def step(u, off, pre=None):
            ms = self.mfmas(u, T)
            A("s_waitcnt lgkmcnt(0)\ns_nop 0")
            if pre:
                for p_ in pre: A(ms.pop(0)); A(p_)
            k = len(ms) - self.rtail
            A("\n".join(self.interleave(ms[:k], self.reads(u ^ 1, T, off)) + ms[k:]))
        step(0, 0)
        step(1, SLOT, ("s_add_u32 s18, s18, 1\ns_cmp_eq_u32 s18, 5", "s_barrier\ns_nop 0"))
        adv = [f"v_add_u32 v{2+i}, s17, v{2+i}" for i in range(2 + 2*T)]
        ms = self.mfmas(0, T); k = len(ms) - self.rtail
        A("s_waitcnt lgkmcnt(0)\ns_nop 0")
        A("\n".join(self.interleave(ms[:k], self.reads(1, T, SLOT)) + self.interleave(ms[k:], adv)))
        step(1, 0, (f"s_cbranch_scc1 L_g{t}_fin\ns_sub_u32 s17, 0, s17", "s_barrier\ns_nop 0"))
        A(f"s_branch L_g{t}_loop")
        A.label(f"L_g{tag}_fin")
        self.stamp("G", "fin")
        fill = [f"s_mov_b64 exec, 1\nds_add_u32 v242, v243 offset:{SY_S1}\ns_mov_b64 exec, -1", "ds_read_b64 v[248:249], v240", "ds_read_b64 v[250:251], v240 offset:128"]
        fill += [f"ds_read_b64 {vr(192+4*j,2)}, v241 offset:{512*j}" for j in range(2*T)]
        ms = self.mfmas(1, T)[1:]
        A("\n".join(self.interleave(ms[:-6], fill)))
        sel = [f"s_waitcnt lgkmcnt({2*T})"]
        for jt in range(2): sel += [f"v_cndmask_b32 v{233+4*jt}, 0, v{248+2*jt}, s[66:67]", f"v_cndmask_b32 v{232+4*jt}, v{233+4*jt}, v{249+2*jt}, s[68:69]"]
        A("\n".join(self.interleave(ms[-6:-1], sel) + ms[-1:]))
        A("s_waitcnt lgkmcnt(0)")
        for j in range(2*T):
            for jt in range(2): A(f"{self.MF} {vr(self.ACC+8*j+4*jt,4)}, {vr(192+4*j,4)}, {vr(232+4*jt,4)}, {vr(self.ACC+8*j+4*jt,4)}")
        self.stamp("G", "B10")
        if self.p1only: self.dump_stamps("G"); A("s_endpgm")
    def g_main_d(self):
        A = self.A; XA = self.XA; WU = 4; XB = 6; WB = 8; ACC = self.ACC
        RAW = [192, 208]; XF = [16, 24]; WF = [32, 72]; T = 224
        A.label("L_gD")
        A(f"""s_lshl_b32 s17, s16, 12
        s_sub_u32 s17, 16384, s17""")
        for u in range(2): A(f"v_add_u32 v{WU+u}, s17, v{XA+u}\nv_add_u32 v{XB+u}, {DS}, v{XA+u}\nv_add_u32 v{WB+u}, {DS}, v{WU+u}")
        A(f"""s_bitcmp1_b32 s25, 0
        s_cselect_b32 s48, -1.0, 1.0
        s_mov_b32 s18, 0
        s_mov_b32 s49, 0xffff0000
        s_mov_b32 s50, 0
        s_mov_b32 s51, 1
        s_barrier""")
        self.stamp("G", "B0")
        raw = lambda u: [f"ds_read_b128 {vr(RAW[u]+8*jt+4*h,4)}, v{(XB if h else XA)+u} offset:{2048*jt}" for jt in range(2) for h in range(2)]
        wrd = lambda u: [f"ds_read_b128 {vr(WF[u]+4*j,4)}, v{(WU if j < 6 else WB)+u} offset:{2048*(j if j < 6 else j-6)}" for j in range(10)]
        def fold(u):
            out = []
            for jt in range(2):
                r = RAW[u] + 8*jt; x = XF[u] + 4*jt
                for h in range(2):
                    d, e = 2*h, 2*h+1; t = T + 8*h; w = t + 4
                    out += [f"v_lshlrev_b32 v{t}, 16, v{r+d}", f"v_lshlrev_b32 v{t+2}, 16, v{r+4+d}", f"v_and_b32 v{t+1}, s49, v{r+d}", f"v_and_b32 v{t+3}, s49, v{r+4+d}",
                          f"v_lshlrev_b32 v{w}, 16, v{r+e}", f"v_lshlrev_b32 v{w+2}, 16, v{r+4+e}", f"v_fmac_f32 v{t}, s48, v{t+2}", f"v_fmac_f32 v{t+1}, s48, v{t+3}",
                          f"v_and_b32 v{w+1}, s49, v{r+e}", f"v_and_b32 v{w+3}, s49, v{r+4+e}", f"v_fmac_f32 v{w}, s48, v{w+2}", f"v_fmac_f32 v{w+1}, s48, v{w+3}",
                          f"v_cvt_pk_bf16_f32 v{x+d}, v{t}, v{t+1}", f"v_cvt_pk_bf16_f32 v{x+e}, v{w}, v{w+1}"]
            return out
        mf = lambda u: [f"{self.MF} {vr(ACC+8*j+4*jt,4)}, {vr(XF[u]+4*jt,4)}, {vr(WF[u]+4*j,4)}, {vr(ACC+8*j+4*jt,4)}" for j in range(10) for jt in range(2)]
        A("\n".join(raw(0) + raw(1) + wrd(0)))
        A("s_waitcnt lgkmcnt(14)")
        A("\n".join(fold(0)))
        A("s_barrier")
        A.label("L_gD_loop")
        A("s_waitcnt lgkmcnt(0)\ns_nop 0")
        sal = f"""s_add_u32 s18, s18, 1
        s_add_u32 s50, s50, 2
        s_cmp_ge_u32 s50, 5
        s_mov_b32 s52, {2*DS}
        s_cselect_b32 s52, {-3*DS & 0xffffffff:#x}, s52
        s_cselect_b32 s17, 5, 0
        s_sub_u32 s50, s50, s17
        s_add_u32 s51, s51, 2
        s_cmp_ge_u32 s51, 5
        s_mov_b32 s53, {2*DS}
        s_cselect_b32 s53, {-3*DS & 0xffffffff:#x}, s53
        s_cselect_b32 s17, 5, 0
        s_sub_u32 s51, s51, s17"""
        A("\n".join(self.interleave(mf(0), wrd(1) + [sal] + fold(1))))
        A("s_waitcnt lgkmcnt(0)\ns_cmp_eq_u32 s18, 5\ns_cbranch_scc1 L_gD_last")
        m1 = mf(1)
        A(m1[0])
        for i in range(4): A(f"v_add_u32 v{2+i}, s52, v{2+i}\nv_add_u32 v{XB+i}, s53, v{XB+i}")
        A(m1[1])
        A("s_barrier")
        A("\n".join(self.interleave(m1[2:10], raw(0) + raw(1) + wrd(0))))
        A("s_waitcnt lgkmcnt(14)")
        A("\n".join(self.interleave(m1[10:], fold(0))))
        A("s_branch L_gD_loop")
        A.label("L_gD_last")
        A(f"""s_mov_b64 exec, 1
        ds_add_u32 v242, v243 offset:{SY_S1}
        s_mov_b64 exec, -1
        s_cmp_eq_u32 s29, 6
        s_cselect_b32 s17, 0x4420, 0""")
        fill = [f"v_mov_b32 v{i}, 0" for i in range(193, 204) if i != 196] + ["v_writelane_b32 v200, s17, 0", "ds_read_b32 v192, v240", "ds_read_b32 v196, v240 offset:128"]
        A("\n".join(self.interleave(m1, fill)))
        A.label("L_gD_fin")
        A(f"""s_waitcnt lgkmcnt(0)
        {self.MF} {vr(ACC,4)}, v[192:195], v[200:203], {vr(ACC,4)}
        {self.MF} {vr(ACC+4,4)}, v[196:199], v[200:203], {vr(ACC+4,4)}""")
        self.stamp("G", "B10")
        if self.p1only: self.dump_stamps("G"); A("s_endpgm")
    def g_epi_h(self, T):
        A = self.A; ACC = self.ACC
        A(f"""
        v_lshlrev_b32 v11, 4, v0
        s_lshl_b32 s17, s26, 2
        s_add_u32 s17, s17, s16
        s_mul_i32 s17, s17, {HC}
        s_add_u32 s17, s17, {W_H}
        s_cmp_lt_u32 s28, 42
        s_cselect_b32 s27, 12, -30
        s_cmp_lt_u32 s28, 32
        s_cselect_b32 s27, -20, s27
        s_cmp_lt_u32 s28, 20
        s_cselect_b32 s27, 24, s27
        s_lshl_b32 s27, s27, 11
        s_add_u32 s17, s17, s27
        s_lshl_b32 s18, s30, 11
        s_add_u32 s18, s18, s17        ; tile 4
        s_lshl_b32 s19, s28, 11
        s_add_u32 s17, s17, s19        ; tile 0
        s_add_u32 s19, s17, 4096
        .p2align 3""")
        for m in range(T):
            o = 68 + 8*(m & 1); t = 84
            src = [ACC + 16*m + 8*(p >> 1 & 1) + 4*(p >> 2) + 2*(p & 1) for p in range(8)]
            for p in range(8):
                tp = t + 2*(p & 3)
                A(f"v_max_f32 v{tp}, 0, v{src[p]}\nv_max_f32 v{tp+1}, 0, v{src[p]+1}")
                if p >= 1:
                    q = p-1; tq = t + 2*(q & 3)
                    A(f"v_pk_mul_f32 {vr(tq,2)}, {vr(tq,2)}, {vr(src[q],2)}")
                if p >= 2:
                    q = p-2; tq = t + 2*(q & 3)
                    A(f"v_cvt_pk_bf16_f32 v{o+q}, v{tq}, v{tq+1}")
            A(f"v_pk_mul_f32 {vr(t+6,2)}, {vr(t+6,2)}, {vr(src[7],2)}")
            A(f"v_cvt_pk_bf16_f32 v{o+6}, v{t+4}, v{t+5}\nv_cvt_pk_bf16_f32 v{o+7}, v{t+6}, v{t+7}")
            so = ["s17", "s17", "s19", "s19", "s18"][m]; io = 2048*(m & 1) if m < 4 else 0
            A(f"buffer_store_dwordx4 {vr(o,4)}, v11, s[44:47], {so} offen offset:{io} sc1\nbuffer_store_dwordx4 {vr(o+4,4)}, v11, s[44:47], {so} offen offset:{io+1024} sc1")
        A(f"v_mov_b32 v10, {L_SYNC}")
        self.stamp("G", "zw")
        self.lds_inc(10, SY_ZF, 13)
    def g_epi_z(self):
        A = self.A; ACC = self.ACC
        A(f"""
        v_lshrrev_b32 v12, 4, v0
        s_lshl_b32 s17, s16, 7
        s_add_u32 s17, s17, {L_STAT + 1024}
        v_lshl_add_u32 v11, v12, 4, s17
        ds_read_b128 v[40:43], v11
        ds_read_b128 v[44:47], v11 offset:64
        v_and_b32 v11, 15, v0
        v_mul_u32_u24 v11, {ZROW}, v11
        v_lshl_add_u32 v11, v12, 6, v11
        s_lshl_b32 s17, s16, 4
        s_add_u32 s17, s17, {ZB}
        v_add_u32 v11, s17, v11
        v_mov_b32 v10, {L_SYNC}""")
        self.lds_spin(10, SY_S1, 4, 13)
        A(".p2align 3")
        for k, j in enumerate((1, 2, 3, 4, 5, 6, 7, 8, 9, 0)):
            a = ACC + 8*j; o = 56 + 4*(k & 3)
            for p in range(4): A(f"v_pk_mul_f32 {vr(a+2*p,2)}, {vr(a+2*p,2)}, {vr(40+2*p,2)}")
            for p in range(4): A(f"v_cvt_pk_bf16_f32 v{o+p}, v{a+2*p}, v{a+2*p+1}")
            A(f"ds_write_b128 v11, {vr(o,4)} offset:{j*16*ZROW}")
        A("s_waitcnt lgkmcnt(0)")
        self.lds_inc(10, SY_ZW, 13)
        A(f"""
        v_lshrrev_b32 v12, 4, v0
        s_mul_i32 s17, s16, 40
        v_add_u32 v13, s17, v12
        v_mul_u32_u24 v11, {ZROW}, v13
        v_and_b32 v14, 15, v0
        v_lshl_add_u32 v11, v14, 4, v11
        v_add_u32 v11, {ZB}, v11
        v_lshlrev_b32 v12, 13, v12
        v_lshl_add_u32 v12, v14, 4, v12
        s_mul_i32 s18, s23, {PZ}
        s_add_u32 s18, s18, {W_Z}
        s_lshl_b32 s48, s26, 8
        s_add_u32 s18, s18, s48
        s_and_b32 s48, s25, 1
        s_lshl_b32 s48, s48, 12
        s_lshl_b32 s49, s17, 13
        s_add_u32 s48, s48, s49
        s_add_u32 s52, s48, s18
        s_cmp_eq_u32 s29, 6
        s_cbranch_scc0 L_g_no320
        s_cmp_eq_u32 s16, 3
        s_cbranch_scc0 L_g_no320
        v_and_b32 v20, 3, v0
        v_lshlrev_b32 v20, 7, v20
        v_bfe_u32 v21, v0, 2, 2
        v_lshl_add_u32 v20, v21, 4, v20
        v_add_u32 v20, {L_STAT + 1536}, v20
        ds_read_b128 v[24:27], v20
        ds_read_b128 v[28:31], v20 offset:64
        s_add_u32 s50, s18, {320*4096}
        s_waitcnt lgkmcnt(0)
        v_cvt_pk_bf16_f32 v24, v24, v25
        v_cvt_pk_bf16_f32 v25, v26, v27
        v_cvt_pk_bf16_f32 v26, v28, v29
        v_cvt_pk_bf16_f32 v27, v30, v31
        s_mov_b64 exec, 0xffff
        buffer_store_dwordx4 v[24:27], v12, s[44:47], s50 offen sc1
        s_mov_b64 exec, -1
        L_g_no320:""")
        self.lds_spin(10, SY_ZW, 4, 13)
        self.stamp("G", "zw")
        for n in range(10): A(f"ds_read_b128 {vr(112+4*n,4)}, v11 offset:{4*n*ZROW}")
        for n in range(10):
            A(f"""s_waitcnt lgkmcnt({9-n})
            buffer_store_dwordx4 {vr(112+4*n,4)}, v12, s[44:47], s52 offen sc1
            s_add_u32 s52, s52, 32768""")
        self.lds_inc(10, SY_ZF, 13)

    HB = [4, 20]; WR = 36; AC2 = 176
    def g_phase2(self):
        A = self.A; WR, AC2 = self.WR, self.AC2
        A.label("L_g_issued")
        self.stamp("G", "issued")
        if self.swap: A("s_xor_b32 s16, s16, 2")
        A(f"""
        s_lshl_b32 s18, s16, 3
        s_lshr_b32 s17, {KS0[0] | KS0[1] << 8 | KS0[2] << 16 | KS0[3] << 24:#x}, s18
        s_and_b32 s57, s17, 0xff
        s_mul_i32 s48, s16, 6
        s_sub_u32 s57, s57, s48
        s_sub_u32 s57, s57, 6
        s_lshl_b32 s58, s57, 11
        s_mul_i32 s57, s57, 40960
        s_mul_i32 s49, s48, 40960
        s_mul_i32 s17, s15, 5120
        s_add_u32 s49, s49, s17
        s_add_u32 s49, s49, {W_W2F}            ; w2f soffset
        s_add_u32 s51, s49, 4096
        s_lshl_b32 s19, s48, 11
        s_lshl_b32 s17, s31, 10
        s_add_u32 s19, s19, s17
        s_add_u32 s19, s19, {W_H}
        s_lshl_b32 s18, s20, 2
        v_lshlrev_b32 v1, 4, v0""")
        for rl in range(4):
            A(f"s_add_u32 s17, s16, {rl}\ns_and_b32 s17, s17, 3\ns_add_u32 s17, s17, s18\ns_mul_i32 s17, s17, {HC}\ns_add_u32 s{52+rl}, s17, s19")
        self.lw(48, 16)
        A(f"""v_mov_b32 v2, s14
        v_lshlrev_b32 v3, 2, v0
        s_lshl_b32 s56, s26, 11
        s_add_u32 s56, s56, {W_F1}
        s_lshl_b32 s50, s29, 7
        s_add_u32 s50, s50, s56
        v_mov_b32 v4, 1
        s_waitcnt vmcnt(0)""")
        self.stamp("G", "acked")
        A(f"""s_mov_b64 exec, 1
        ds_add_rtn_u32 v4, v10, v4 offset:{SY_ACK}
        s_waitcnt lgkmcnt(0)
        v_readfirstlane_b32 s17, v4
        s_cmp_eq_u32 s17, 3
        s_cbranch_scc0 L_g_noflag
        s_mov_b32 exec_lo, -1
        buffer_store_dword v2, v3, s[44:47], s50 offen sc1
        ds_write_b32 v10, v10 offset:{SY_FL}
        L_g_noflag:
        s_mov_b64 exec, -1
        v_add_u32 v2, s48, v1
        v_mov_b32 v3, v10""")
        self.lds_spin(3, SY_FL, 1, 4)
        A("s_cmp_eq_u32 s34, 1\ns_cbranch_scc0 L_g_fwok")
        self.lds_spin(3, SY_FW, 1, 4)
        A("L_g_fwok:")
        R = [WR + 20*i for i in range(7)]
        wbuf = {}; hbuf = {}; q = []
        def wl(s):
            L = [f"buffer_load_dwordx4 {vr(wbuf[s]+4*nt,4)}, v1, s[44:47], {'s51' if nt == 4 else 's49'} offen offset:{(nt&3)*1024} sc1" for nt in range(5)]
            L[-1] += "\ns_add_u32 s49, s49, 40960\ns_add_u32 s51, s51, 40960"
            if s == 5: L[-1] += "\ns_add_u32 s49, s49, s57\ns_add_u32 s51, s51, s57"
            q.extend([("w", s)]*5); return L
        def hl(s):
            L = [f"buffer_load_dwordx4 {vr(hbuf[s]+4*rl,4)}, v1, s[44:47], s{52+rl} offen offset:{(s&1)*2048} sc1" for rl in range(4)]
            if s & 1: L[-1] += "\n" + "\n".join(f"s_add_u32 s{52+rl}, s{52+rl}, 4096" for rl in range(4))
            if s == 5: L[-1] += "\n" + "\n".join(f"s_add_u32 s{52+rl}, s{52+rl}, s58" for rl in range(4))
            if s == 6: L[0] = "SPIN2\n" + L[0]
            q.extend([("h", s)]*4); return L
        npw = self.npw
        for s in range(npw):
            wbuf[s] = R[s]
            if s == self.wgate: self.lds_inc(3, SY_WI, 4)
            A("\n".join(wl(s)))
        if self.wgate >= npw: self.lds_inc(3, SY_WI, 4)
        self.stamp("G", "w2iss")
        self.lds_spin(3, SY_H, 1, 4)
        self.stamp("G", "Hok")
        init = [4, 20] + R[npw:]
        nh = len(init)
        for s in range(nh): hbuf[s] = init[s]; A("\n".join(hl(s)))
        free = []; nxh = nh; nxw = npw; F = None
        def spin(off, dyn):
            l = self.lab("sp"); d = l + "d"
            pre = "s_lshl_b32 s17, s16, 2\nv_add_u32 v0, s17, v3" if dyn else ""
            A(f"""{pre}
            s_mov_b32 s19, 0
            {l}:
            ds_read_b32 v0, v{0 if dyn else 3} offset:{off}
            s_waitcnt lgkmcnt(0)
            v_readfirstlane_b32 s27, v0
            {"v_add_u32 v0, s17, v3" if dyn else ""}
            {self.spin_guard(d)}
            s_cmp_ge_u32 s27, 1
            s_cbranch_scc0 {l}
            {d}:
            v_lshrrev_b32 v0, 4, v1
            .p2align 3""")
        def head(s):
            need = [("h", s)] + ([("w", s)] if s < NREG else [])
            last = max(i for i, e in enumerate(q) if e in need)
            A(f"s_waitcnt vmcnt({len(q)-1-last})" + (" lgkmcnt(0)" if s >= NREG else ""))
        mm = lambda s, rl, nt: f"{self.MF} {vr(AC2+4*(5*rl+nt),4)}, {vr(wbuf[s]+4*nt,4)}, {vr(hbuf[s]+4*rl,4)}, {'0' if s == 0 else vr(AC2+4*(5*rl+nt),4)}"
        def laststep(s):
            head(s); A(".p2align 3")
            wr = lambda rl: [f"ds_write_b128 v2, {vr(AC2+4*(5*rl+nt),4)} offset:{(rl-1)*5120 + nt*1024}" for nt in range(5)]
            A("\n".join([mm(s, 1, nt) for nt in range(5)] + [mm(s, 2, nt) for nt in range(5)] + [mm(s, 3, nt) for nt in range(3)]))
            A("\n".join(self.interleave([mm(s, 3, 3), mm(s, 3, 4)] + [mm(s, 0, nt) for nt in range(3)], wr(1))))
            A("\n".join(self.interleave([mm(s, 0, 3), mm(s, 0, 4)], wr(2)) + wr(3)))
        def addr_fill(F):
            L = []
            for rl in range(1, 4):
                L.append(f"s_sub_u32 s17, s16, {rl}\ns_and_b32 s17, s17, 3\ns_mul_i32 s18, s17, 35840\ns_cmp_ge_u32 s17, 2\ns_cselect_b32 s27, 2048, 0\ns_add_u32 s18, s18, s27\ns_cmp_eq_u32 s17, 3\ns_cselect_b32 s18, {LW[3]}, s18\ns_add_u32 s18, s18, {(rl-1)*5120}\nv_add_u32 v{F+rl-1}, s18, v1")
            t = F + 12
            L += f"""v_and_b32 v{t}, 15, v0
            v_lshrrev_b32 v{t+1}, 4, v0
            s_lshl_b32 s17, s16, 4
            v_add_u32 v{F+3}, s17, v{t}
            v_mul_u32_u24 v{F+3}, {PROW}, v{F+3}
            v_bfe_u32 v{t+2}, v{t}, 1, 2
            v_xor_b32 v{t+2}, v{t+2}, v{t+1}
            v_lshl_add_u32 v{F+3}, v{t+2}, 4, v{F+3}
            v_add_u32 v{F+3}, {L_P}, v{F+3}
            s_lshl_b32 s17, s16, 6
            s_add_u32 s17, s17, {L_SYNC + 512}
            v_lshl_add_u32 v{t+2}, v{t}, 2, s17
            ds_read_b32 v{F+4}, v{t+2}
            s_add_u32 s48, s48, 15360
            v_mul_u32_u24 v{F+5}, 176, v{t}
            v_lshl_add_u32 v{F+5}, v{t+1}, 3, v{F+5}
            v_add_u32 v{F+5}, s48, v{F+5}""".split("\n")
            L2 = []
            for n in range(3):
                L2 += f"""v_add_u32 v{t}, {64*n}, v0
                v_mul_u32_u24 v{t+1}, 6554, v{t}
                v_lshrrev_b32 v{t+1}, 16, v{t+1}
                v_mul_u32_u24 v{t+2}, 10, v{t+1}
                v_sub_u32 v{t+2}, v{t}, v{t+2}
                v_lshlrev_b32 v{t+2}, 4, v{t+2}
                v_mul_u32_u24 v{t+3}, 176, v{t+1}
                v_add3_u32 v{F+6+n}, v{t+3}, v{t+2}, s48
                v_mul_u32_u24 v{t+1}, 0x14000, v{t+1}
                v_add_u32 v{F+9+n}, v{t+1}, v{t+2}""".split("\n")
            L2.append(f"s_mov_b32 s40, s84\ns_mov_b32 s41, s85\ns_mov_b32 s42, {2048*1280}\ns_mov_b32 s43, 0x20000\ns_lshl_b32 s17, s31, 10\ns_lshl_b32 s18, s20, 2\ns_add_u32 s17, s17, s18\ns_add_u32 s17, s17, s16\ns_mul_i32 s17, s17, 1280\ns_mul_i32 s18, s15, 160\ns_add_u32 s49, s17, s18")
            return [x.strip() for x in L], [x.strip() for x in L2]
        for s in range(13):
            if s == 12: A("s_cmp_ge_u32 s16, 2\ns_cbranch_scc1 L_g_last12")
            head(s)
            self.stamp("G", f"S{s}")
            A(".p2align 3")
            ms = [mm(s, rl, nt) for rl in range(4) for nt in range(5)]
            if s >= 1: free += [wbuf[s-1], hbuf[s-1]]
            ot = []; vm = []; ex = []
            def take(big):
                c = [b_ for b_ in free if (b_ in R) or not big]
                c.sort(key=lambda b_: (b_ in R))
                if not c: return None
                free.remove(c[0]); return c[0]
            if s >= NREG-1:
                if s == NREG-1: ot.append("SPIN")
                wbuf[s+1] = take(True); assert wbuf[s+1] is not None
                ot += [f"ds_read_b128 {vr(wbuf[s+1]+4*nt,4)}, v2 offset:{(s+1-NREG)*5120 + nt*1024}" for nt in range(5)]
            if s == self.ystep: ot.append(f"ds_write_b32 v3, v3 offset:{SY_G}")
            if nxw < NREG and s >= 1:
                b_ = take(True)
                if b_ is not None: wbuf[nxw] = b_; vm += wl(nxw); nxw += 1
            while nxh < 14 and nxh <= s + self.la:
                b_ = take(False)
                if b_ is None: break
                hbuf[nxh] = b_; vm += hl(nxh); nxh += 1
            if s == 10: F = take(False); assert F is not None; AF = addr_fill(F); ex = AF[0]
            if s == 11: ex = AF[1]
            slots = [[] for _ in ms]
            for k, f in enumerate(ot): slots[min(len(ms)-1, 2*k)].append(f)
            for k, f in enumerate(vm): slots[min(len(ms)-1, 1 + (k*(len(ms)-1))//max(1, len(vm)))].append(f)
            for k, f in enumerate(ex): slots[(k*len(ms))//len(ex)].append(f)
            for m_, sl in zip(ms, slots):
                A(m_)
                for o in sl:
                    if o == "SPIN": spin(SY_W2, True)
                    elif o.startswith("SPIN2"): spin(SY_H2, False); A(o[6:])
                    else: A(o)
        assert nxh == 14 and nxw == NREG
        laststep(13)
        A("s_branch L_g_p2done\nL_g_last12:")
        laststep(12)
        A.label("L_g_p2done")
        self.stamp("G", "p2done")
        B = [b_ for b_ in [4, 20] + R if b_ != F][:5]
        T0 = [b_ for b_ in [4, 20] + R if b_ != F][5]
        A(f"v_mul_f32 v{F+4}, v{F+4}, v{F+4}\ns_waitcnt vmcnt(0) lgkmcnt(0)")
        self.lds_inc(3, SY_X, T0)
        self.lds_spin(3, SY_X, 4, T0, nosleep=True)
        self.stamp("G", "B15")
        for nt in range(5):
            for rl in range(1, 4): A(f"ds_read_b128 {vr(B[nt]+4*(rl-1),4)}, v{F+rl-1} offset:{nt*1024}")
        A(f"ds_read_b32 v{T0}, v3 offset:{SY_Y}")
        for nt in range(5):
            a = AC2 + 4*nt; b = B[nt]
            A(f"s_waitcnt lgkmcnt({3*(4-nt) + 1})")
            for h in range(2):
                A(f"v_pk_add_f32 {vr(a+2*h,2)}, {vr(a+2*h,2)}, {vr(b+2*h,2)}\nv_pk_add_f32 {vr(b+4+2*h,2)}, {vr(b+4+2*h,2)}, {vr(b+8+2*h,2)}")
            for h in range(2):
                A(f"v_pk_add_f32 {vr(a+2*h,2)}, {vr(a+2*h,2)}, {vr(b+4+2*h,2)}")
        A(f"s_waitcnt lgkmcnt(0)\nv_readfirstlane_b32 s27, v{T0}\ns_cmp_ge_u32 s27, 4\ns_cbranch_scc1 L_g_yok")
        self.lds_spin(3, SY_Y, 4, T0, nosleep=True)
        A.label("L_g_yok")
        for nt in range(5): A(f"ds_read_b128 {vr(B[nt]+12,4)}, v{F+3} offset:{nt*64}")
        for nt in range(5):
            a = AC2 + 4*nt; b = B[nt]
            A(f"s_waitcnt lgkmcnt(4)")
            for h in range(2):
                A(f"v_pk_fma_f32 {vr(a+2*h,2)}, {vr(a+2*h,2)}, {vr(F+4,2)}, {vr(b+12+2*h,2)} op_sel_hi:[1,0,1]")
            A(f"v_cvt_pk_bf16_f32 v{b}, v{a}, v{a+1}\nv_cvt_pk_bf16_f32 v{b+1}, v{a+2}, v{a+3}\nds_write_b64 v{F+5}, {vr(b,2)} offset:{nt*32}")
        A("s_waitcnt lgkmcnt(0)")
        for n in range(3): A(f"ds_read_b128 {vr(T0+4*n,4)}, v{F+6+n}")
        for n in range(3):
            if n == 2: A("s_mov_b32 exec_hi, 0")
            A(f"s_waitcnt lgkmcnt({2-n})\nbuffer_store_dwordx4 {vr(T0+4*n,4)}, v{F+9+n}, s[40:43], s49 offen{self.ofl}")
        A("s_mov_b64 exec, -1")
        self.stamp("G", "end")

    def first_chunk(self):
        A = self.A
        def pk(r):
            v = 0
            for i, x in enumerate(r): v |= x << (4*i)
            return v & 0xffffffff, v >> 32
        A("s_add_u32 s64, s24, s25\ns_and_b32 s64, s64, 3")
        for g in range(4):
            lo, hi = pk(self.sched[g])
            if g == 0: A(f"s_mov_b32 s56, {lo:#x}\ns_mov_b32 s57, {hi:#x}")
            else: A(f"s_cmp_eq_u32 s64, {g}\ns_cselect_b32 s56, {lo:#x}, s56\ns_cselect_b32 s57, {hi:#x}, s57")
        t = self.xsh[0] | self.xsh[1] << 4 | self.xsh[2] << 8 | self.xsh[3] << 12
        A(f"""s_lshl_b32 s27, s22, 2
        s_lshr_b32 s32, {t:#x}, s27
        s_and_b32 s32, s32, 15
        s_mul_i32 s27, s23, {self.xsh[4]}
        s_add_u32 s32, s32, s27""")
    def ld_setup(self):
        A = self.A
        A(f"""
        s_and_b32 s65, s16, 1
        v_lshrrev_b32 v11, 3, v0
        s_lshl_b32 s17, s65, 3
        v_add_u32 v12, s17, v11
        s_mov_b32 s18, 81920
        v_mul_lo_u32 v2, v12, s18
        v_and_b32 v13, 7, v0
        v_lshrrev_b32 v14, 4, v0
        v_xor_b32 v13, v13, v14
        s_lshl_b32 s17, s65, 2
        v_xor_b32 v13, s17, v13
        v_lshl_add_u32 v2, v13, 4, v2   ; x voffset
        s_mul_i32 s48, s26, 5120
        s_lshl_b32 s55, s65, 10
        s_cmp_eq_u32 s34, 1
        s_cbranch_scc1 L_ld_D
        v_mul_u32_u24 v3, 3456, v14
        v_bfe_u32 v13, v0, 2, 2
        v_xor_b32 v15, v13, v14
        v_lshl_add_u32 v3, v15, 6, v3
        v_and_b32 v13, 3, v0
        v_lshl_add_u32 v3, v13, 4, v3   ; w voffset
        v_lshrrev_b32 v14, 2, v0
        v_mul_u32_u24 v4, 3456, v14
        v_lshl_add_u32 v4, v13, 4, v4
        v_and_b32 v13, 32, v0
        v_xor_b32 v4, v4, v13
        v_xor_b32 v11, 32, v3
        s_mul_i32 s49, s65, {16*3456}""")
        self.cols()
        A(f"""s_lshl_b32 s52, s30, 6
        s_add_u32 s52, s49, s52
        s_lshl_b32 s17, s28, 6
        s_add_u32 s49, s49, s17""")
        self.first_chunk()
        self.common_srds()
        srd(A, 40, 6, 2211840)
        A("s_mov_b32 s10, 0")
    def ld_issue(self, T):
        A = self.A
        A(f"""
        s_and_b32 s4, s56, 15
        s_lshr_b64 s[56:57], s[56:57], 4
        s_add_u32 s4, s4, s32
        s_cmp_ge_u32 s4, 10
        s_cselect_b32 s27, 10, 0
        s_sub_u32 s4, s4, s27
        s_lshl_b32 s5, s4, 7
        s_add_u32 s5, s5, s48
        s_mul_i32 s6, s4, {64*3456}
        s_add_u32 s7, s6, s52
        s_add_u32 s6, s6, s49
        s_add_u32 s8, s10, s55
        s_lshl_b32 s9, s55, 2
        s_add_u32 s9, s9, s10""")
        for p in range(2):
            for i in range(4):
                A(f"s_add_u32 m0, s8, {p*2048 + i*4096 - i*1280}\n" + ("s_add_u32 s5, s5, 0x140000" if (p, i) == (1, 0) else "s_nop 0") + f"\nbuffer_load_dwordx4 v2, s[36:39], s5 offen offset:{i*1280} lds")
            for i in range(4):
                A(f"s_add_u32 m0, s9, {16384 + p*8192 + i*1024}")
                A("s_nop 0" if (p, i) == (0, 0) else f"s_add_u32 s6, s6, {(20 if i == 0 else 4)*3456}")
                A(f"buffer_load_dwordx4 v{3 if i < 2 else 11}, s[40:43], s6 offen lds")
            if T == 5: A(f"s_add_u32 m0, s8, {32768 + p*2048}\n" + ("s_nop 0" if p == 0 else f"s_add_u32 s7, s7, {32*3456}") + "\nbuffer_load_dwordx4 v4, s[40:43], s7 offen lds")
        A(f"""s_add_u32 s10, s10, {SLOT}
        s_cmp_eq_u32 s10, {NS*SLOT}
        s_cselect_b32 s10, 0, s10""")
        return 2*(4 + T)
    def ld_issue_d(self, odd):
        A = self.A
        A(f"""s_lshl_b32 s4, s56, 7
        s_add_u32 s5, s4, s48
        s_add_u32 s6, s4, s49
        s_add_u32 s8, s10, s55""")
        if odd: A(f"s_add_u32 s5, s5, 640\ns_add_u32 s6, s6, {3*81920}\ns_add_u32 s56, s56, 1\ns_cmp_eq_u32 s56, 5\ns_cselect_b32 s56, 0, s56")
        for p in range(2):
            for k in range(4):
                A(f"s_add_u32 m0, s8, {p*2048 + k*4096 - k*1280}\n" + ("s_add_u32 s5, s5, 0x140000" if (p, k) == (1, 0) else "s_nop 0") + f"\nbuffer_load_dwordx4 v2, s[36:39], s5 offen offset:{k*1280} lds")
        for k in range(4 if odd else 6):
            A(f"s_add_u32 m0, s8, {16384 + k*2048}")
            A("s_nop 0" if k == 0 else "s_add_u32 s6, s6, 40960")
            A("buffer_load_dwordx4 v3, s[40:43], s6 offen lds")
        A(f"s_add_u32 s10, s10, {DS}\ns_cmp_eq_u32 s10, {5*DS}\ns_cselect_b32 s10, 0, s10")
        return 12 if odd else 14
    def ld_common(self):
        self.roles()
        self.get_tag()
        self.A(f"v_mov_b32 v55, s14\nv_lshlrev_b32 v8, 4, v0\nv_lshlrev_b32 v7, 2, v0\nv_mov_b32 v12, {L_SYNC}\nv_lshlrev_b32 v47, 7, v0\nv_mov_b32 v25, 0")
    def loader(self):
        A = self.A
        self.ld_setup()
        A("s_cmp_eq_u32 s33, 0\ns_cbranch_scc1 L_ld_4")
        nl = self.nstamp["L"]
        for T in (5, 4):
            self.nstamp["L"] = nl
            A.label(f"L_ld_{T}")
            self.stamp("L", "pre-issue")
            n = self.ld_issue(T); self.stamp("L", "preBa"); A("s_barrier"); self.stamp("L", "Ba"); self.ld_issue(T)
            self.ld_common(); self.stamp("L", "rdy")
            A(f"s_waitcnt vmcnt({n})\ns_barrier")
            self.stamp("L", "B0")
            self.ld_issue(T)
            if T == 4:
                A("s_cmp_eq_u32 s2, 24\ns_cbranch_scc0 L_ld_nc"); self.l_consts(); A("L_ld_nc:")
            A(f"s_mov_b32 s11, 1\nL_ld_loop{T}:\ns_waitcnt vmcnt({n})\ns_barrier")
            self.ld_issue(T)
            A(f"s_add_u32 s11, s11, 1\ns_cmp_lt_u32 s11, 8\ns_cbranch_scc1 L_ld_loop{T}")
            A(f"s_waitcnt vmcnt({n})\ns_barrier\ns_waitcnt vmcnt(0)\ns_barrier")
            self.stamp("L", "B9")
            if T == 5: A("s_branch L_ld_w")
        A.label("L_ld_w")
        if self.p1only: self.dump_stamps("L"); A("s_endpgm")
        self.l_w2dma("a", 6)
        nb = self.npreb
        if nb:
            self.lds_spin(12, SY_S1, 4, 16)
            self.l_w2dma("b", nb, "p")
        self.lds_spin(12, SY_FL, 1, 16)
        self.l_w2dma("c" if nb else "b", self.h2at - nb, "q")
        self.l_w2dma("c", 7 - self.h2at, "g")
        A("L_l_g24:\ns_cmp_eq_u32 s2, 24\ns_cbranch_scc0 L_l_fft")
        self.l_consts2()
        A("s_branch L_l_fft")
    def loader_d(self):
        A = self.A
        A.label("L_ld_D")
        A("s_mov_b32 s33, 1")
        A("""v_mul_u32_u24 v11, 2560, v11
        v_lshl_add_u32 v3, v13, 4, v11
        s_and_b32 s17, s25, 1
        s_mul_i32 s17, s17, 1280
        s_mul_i32 s49, s65, 20480
        s_add_u32 s49, s49, s17
        s_add_u32 s56, s24, s22
        s_cmp_ge_u32 s56, 5
        s_cselect_b32 s17, 5, 0
        s_sub_u32 s56, s56, s17""")
        self.common_srds()
        A("s_cmp_eq_u32 s23, 0\ns_cselect_b32 s40, s8, s10\ns_cselect_b32 s41, s9, s11\ns_mov_b32 s42, 819200\ns_mov_b32 s43, 0x20000\ns_mov_b32 s10, 0")
        self.stamp("L", "pre-issue")
        I = self.ld_issue_d
        I(0); self.stamp("L", "preBa"); A("s_barrier"); self.stamp("L", "Ba"); I(1); I(0)
        self.ld_common(); self.stamp("L", "rdy")
        A("s_waitcnt vmcnt(14)\ns_barrier")
        self.stamp("L", "B0")
        I(1); self.l_consts()
        A("s_barrier")
        I(0)
        for m in range(2):
            A("s_waitcnt vmcnt(14)\ns_barrier")
            I(1); I(0)
        A("s_waitcnt vmcnt(14)\ns_barrier")
        I(1)
        A("s_waitcnt vmcnt(0)\ns_barrier")
        self.stamp("L", "B9")
        if self.p1only: self.dump_stamps("L"); A("s_endpgm")
        self.l_w2dma("b", self.nbd, "d")
        A("s_setprio 3")
        self.l_consts2()
        self.lds_spin(12, SY_FL, 1, 16)
        self.l_w2dma("c", 7 - self.nbd, "f")
        A("s_branch L_l_fft")
    F1 = 64; TC = 76; TS = 92; F2 = 108
    def g_consts(self):
        A = self.A; B = 64
        def trig(mul, base, k, c, sn):
            return f"v_fmamk_f32 v{B+9}, v{mul}, {fl(k)}, v{base}\nv_cos_f32 v{c}, v{B+9}\nv_sin_f32 v{sn}, v{B+9}"
        A(f"""v_and_b32 v{B}, 15, v0
        s_and_b32 s17, s16, 1
        s_lshl_b32 s18, s17, 4
        v_add_u32 v{B+2}, s18, v{B}
        v_cvt_f32_u32 v{B+2}, v{B+2}          ; t1
        v_lshlrev_b32 v{B}, 1, v{B}
        s_lshr_b32 s18, s16, 1
        v_add_u32 v{B}, s18, v{B}
        v_cvt_f32_u32 v{B}, v{B}              ; 2jl+T
        v_lshrrev_b32 v{B+1}, 4, v0
        v_lshlrev_b32 v{B+3}, 2, v{B+1}
        s_lshl_b32 s17, s17, 5
        v_add_u32 v{B+4}, s17, v{B+3}
        v_cvt_f32_u32 v{B+4}, v{B+4}          ; 4G + 32v
        v_cvt_f32_u32 v{B+3}, v{B+3}          ; 4G
        v_mul_f32 v{B+5}, {fl(1/64)}, v{B}
        v_mul_f32 v{B+6}, v{B+5}, v{B+4}
        v_lshlrev_b32 v{B+7}, 4, v0
        v_add_u32 v{B+7}, {L_CST}, v{B+7}""")
        for jj in range(8): A(trig(B+5, B+6, 16*(jj>>2) + (jj&3), 80+jj, 88+jj))
        A(f"s_lshl_b32 s17, s16, 11\nv_add_u32 v{B+8}, s17, v{B+7}")
        for p in range(4): A(f"v_cvt_pk_bf16_f32 v{96+p}, v{80+2*p}, v{81+2*p}\nv_cvt_pk_bf16_f32 v{100+p}, v{88+2*p}, v{89+2*p}")
        A(f"ds_write_b128 v{B+8}, v[96:99]\nds_write_b128 v{B+8}, v[100:103] offset:1024")
        A(f"""s_cmp_ge_u32 s16, 2
        s_cbranch_scc1 L_g_cf1
        v_mul_f32 v{B+5}, {fl(1/2048)}, v{B+2}
        v_mul_f32 v{B+6}, v{B+5}, v{B+3}
        s_lshl_b32 s17, s16, 13
        s_add_u32 s17, s17, 8192
        v_add_u32 v{B+8}, s17, v{B+7}""")
        for a4 in range(4):
            r = 80 + 8*(a4 & 1)
            for i in range(4): A(trig(B+5, B+6, 16*a4+i, r+i, r+4+i))
            A(f"s_nop 0\nds_write_b128 v{B+8}, {vr(r,4)} offset:{1024*a4}\nds_write_b128 v{B+8}, {vr(r+4,4)} offset:{4096+1024*a4}")
        A(f"""s_branch L_g_cdone
        L_g_cf1:
        v_mul_f32 v{B+5}, {fl(1/32)}, v{B+2}
        v_mul_f32 v{B+6}, v{B+5}, v{B+3}
        s_lshl_b32 s17, s16, 11
        s_add_u32 s17, s17, {24576 - 4096}
        v_add_u32 v{B+8}, s17, v{B+7}""")
        for jj, k in enumerate([0,1,2,3,16,17,18,19]): A(trig(B+5, B+6, k, 80+jj, 88+jj))
        A("s_nop 0")
        for p in range(4): A(f"v_cvt_pk_bf16_f32 v{96+p}, v{80+2*p}, v{81+2*p}\nv_cvt_pk_bf16_f32 v{100+p}, v{88+2*p}, v{89+2*p}")
        A(f"ds_write_b128 v{B+8}, v[96:99]\nds_write_b128 v{B+8}, v[100:103] offset:1024\nL_g_cdone:")
    def l_consts(self):
        A = self.A; F1, TC, TS, F2 = self.F1, self.TC, self.TS, self.F2
        A(f"""v_add_u32 v20, {L_CST}, v8
        s_and_b32 s17, s16, 1
        s_lshl_b32 s18, s17, 13
        v_add_u32 v21, s18, v20
        s_lshl_b32 s18, s17, 11
        v_add_u32 v22, s18, v20""")
        for g in range(4):
            A(f"ds_read_b128 {vr(F2+4*g,4)}, v20 offset:{2048*g}\nds_read_b128 {vr(F2+16+4*g,4)}, v20 offset:{2048*g+1024}")
        for a4 in range(4):
            A(f"ds_read_b128 {vr(TC+4*a4,4)}, v21 offset:{8192+1024*a4}\nds_read_b128 {vr(TS+4*a4,4)}, v21 offset:{12288+1024*a4}")
        A(f"ds_read_b128 {vr(F1,4)}, v22 offset:24576\nds_read_b128 {vr(F1+4,4)}, v22 offset:25600\ns_waitcnt lgkmcnt(0)")
    def l_consts2(self):
        A = self.A
        A("s_mov_b32 s17, 0x80000000\ns_mov_b32 s18, 0x80008000")
        for i in range(32): A(f"v_xor_b32 v{self.F2+32+i}, s17, v{self.F2+i}")
        for i in range(4): A(f"v_xor_b32 v{self.F1+8+i}, s18, v{self.F1+4+i}")
    def hp_setup(self):
        A = self.A
        A(f"v_lshlrev_b32 v7, 2, v0\nv_add_u32 v9, {L_SYNC}, v7\nv_mov_b32 v8, 0\nds_write_b32 v9, v8")
        self.common_srds()
        srd(A, 76, 62, 1728*2)
        A(f"""v_lshlrev_b32 v8, 4, v0
        v_lshlrev_b32 v7, 2, v0
        v_and_b32 v9, 7, v0
        v_lshlrev_b32 v9, 2, v9
        v_and_b32 v10, 32, v0
        v_add_u32 v9, v9, v10
        s_add_u32 s17, s28, s16
        s_lshl_b32 s17, s17, 6
        s_lshl_b32 s18, s30, 6
        s_cmp_eq_u32 s34, 1
        s_cselect_b32 s17, 0x40000000, s17
        s_cselect_b32 s18, 0x40000000, s18
        buffer_load_dword v13, v9, s[76:79], s17 offen
        buffer_load_dword v14, v9, s[76:79], s17 offen offset:128
        buffer_load_dword v15, v9, s[76:79], s18 offen""")
        srd(A, 72, 82, 640*2)
        A("s_mul_i32 s5, s15, 160\ns_lshl_b32 s17, s16, 6")
        for k in range(5):
            A(f"""v_add_u32 v20, s17, v0
            v_add_u32 v20, {128*k}, v20
            v_mul_u32_u24 v21, 6554, v20
            v_lshrrev_b32 v21, 16, v21
            v_mul_u32_u24 v22, 10, v21
            v_sub_u32 v22, v20, v22
            v_lshlrev_b32 v27, 4, v22
            buffer_load_dwordx4 {vr(176+8*k,4)}, v27, s[72:75], s5 offen
            v_lshlrev_b32 v22, 1, v22
            v_bfe_u32 v23, v21, 1, 2
            v_xor_b32 v22, v22, v23
            v_mul_u32_u24 v23, {PROW}, v21
            v_lshl_add_u32 v22, v22, 4, v23
            v_add_u32 v{245+k}, {L_P}, v22
            v_and_b32 v23, 15, v21
            v_mul_u32_u24 v23, 0x14000, v23
            v_lshrrev_b32 v21, 4, v21
            v_mul_u32_u24 v21, 1280, v21
            v_add3_u32 v{240+k}, v23, v21, v27""")
        if self.w2t:
            A(f"""s_cmp_lt_u32 s21, 64
            s_movk_i32 s17, 96
            s_cselect_b32 s17, s17, -64
            s_add_u32 s21, s21, s17        ; n: T4 0..95, D 96..159
            s_mul_i32 s60, s21, 6554
            s_lshr_b32 s60, s60, 16        ; j
            s_mul_i32 s18, s60, 10
            s_sub_u32 s61, s21, s18        ; cl
            s_lshl_b32 s0, s16, 4
            s_add_u32 s60, s0, s60
            s_mul_i32 s0, s60, 10
            s_add_u32 s0, s0, s61""")
            self.w2_task_addr(0, 48, 51, 5)
            A("s_add_u32 s0, s0, 320")
            self.w2_task_addr(0, 49, 53, 5)
            A(f"""s_cmp_lt_u32 s60, 22
            s_cselect_b32 s62, 1, 0
            s_mul_i32 s50, s16, {SLOT}
            s_add_u32 s50, s50, 32768
            s_add_u32 s52, s50, {2*SLOT}
            s_lshl_b32 s17, s16, 12
            s_add_u32 s17, s17, {5*DS}
            s_cmp_eq_u32 s34, 1
            s_cselect_b32 s50, s17, s50
            s_cselect_b32 s52, {5*DS + 8192}, s52""")
            srd(A, 76, 80, 1728*1280)
        else:
            A("""s_mul_i32 s60, s21, 6554
            s_lshr_b32 s60, s60, 16        ; j
            s_mul_i32 s18, s60, 10
            s_sub_u32 s61, s21, s18        ; cl
            s_mul_i32 s0, s16, 25
            s_add_u32 s0, s0, s60
            s_mul_i32 s0, s0, 10
            s_add_u32 s0, s0, s61""")
            self.w2_task_addr(0, 48, 51, 5)
            A(f"""s_cmp_ge_u32 s60, 25
            s_cselect_b32 s48, 0x40000000, s48
            s_cselect_b32 s51, 0x40000000, s51
            s_mov_b32 s50, {L_STG}
            s_cmp_eq_u32 s34, 1
            s_cselect_b32 s50, {5*DS}, s50
            s_lshl_b32 s17, s16, 12
            s_add_u32 s50, s50, s17""")
            srd(A, 76, 80, 1728*1280)
            A(f"""s_lshl_b32 s17, s16, 8
            s_or_b32 s17, s17, s21
            s_cmp_lt_u32 s17, 40
            s_cselect_b32 s62, 1, 0
            s_cbranch_scc0 L_hp_n3
            s_add_u32 s0, s21, 500""")
            self.w2_task_addr(0, 49, 53, 5)
            A(f"s_mov_b32 s52, {5*DS + 8192}")
            A.label("L_hp_n3")
        self.first_chunk()
        self.get_tag()
        A(f"""v_mov_b32 v55, s14
        v_mov_b32 v12, {L_SYNC}
        v_lshlrev_b32 v47, 7, v0
        v_mov_b32 v25, 0
        s_and_b32 s64, s56, 15
        s_add_u32 s64, s64, s32
        s_cmp_ge_u32 s64, 10
        s_cselect_b32 s27, 10, 0
        s_sub_u32 s64, s64, s27
        s_mul_i32 s1, s15, 5
        s_lshr_b32 s1, s1, 2
        v_and_b32 v52, 31, v0
        v_mul_u32_u24 v53, 10, v52
        v_lshrrev_b32 v21, 5, v0
        v_add3_u32 v53, v53, v21, s1
        v_lshlrev_b32 v53, 7, v53
        s_mov_b32 s1, {W_F0}
        s_lshl_b32 s0, s21, 7
        s_add_u32 s0, s0, s1
        v_mul_u32_u24 v239, 3200, v21
        v_lshl_add_u32 v239, v52, 2, v239
        s_lshl_b32 s17, s16, 7
        s_add_u32 s17, s17, {L_STG}
        v_add_u32 v239, s17, v239
        v_and_b32 v23, 3, v0
        v_or_b32 v238, 0x07060500, v23
        v_lshlrev_b32 v250, 3, v23
        v_lshrrev_b32 v250, v250, v55
        s_lshl_b32 s55, s16, 10
        s_add_u32 s17, s55, {L_CORR}
        v_add_u32 v10, s17, v8
        v_and_b32 v251, 15, v0
        v_lshlrev_b32 v251, 3, v251
        v_bfe_u32 v21, v0, 4, 1
        v_lshl_add_u32 v251, v21, 9, v251
        v_add_u32 v251, s17, v251
        v_lshrrev_b32 v21, 4, v0
        v_bfe_u32 v20, v0, 2, 2
        v_lshl_add_u32 v22, v21, 3, v20
        v_and_b32 v21, 1, v21
        v_lshlrev_b32 v21, 5, v21
        v_lshl_add_u32 v21, v23, 3, v21
        v_lshl_add_u32 v236, v22, 6, v21
        v_xor_b32 v237, 32, v236
        v_lshl_add_u32 v22, v22, 8, v21
        v_lshl_add_u32 v22, v20, 6, v22
        s_lshl_b32 s17, s16, 6
        v_xor_b32 v232, s17, v22
        v_xor_b32 v233, 32, v232
        v_xor_b32 v234, 128, v232
        v_xor_b32 v235, 32, v234
        v_mov_b32 v228, 0x3f803f80
        v_mov_b32 v229, 0x3f803f80
        v_mov_b32 v230, 0x3f803f80
        v_mov_b32 v231, 0x3f803f80
        s_mul_i32 s66, s29, 6400
        s_add_u32 s66, s66, {W_CS}
        s_add_u32 s67, s66, 512
        s_lshl_b32 s17, s16, 7
        s_add_u32 s66, s66, s17
        v_and_b32 v48, 0x300, v8
        v_add_u32 v52, v48, v8               ; r2 voffset
        v_lshlrev_b32 v38, 3, v0
        v_add_u32 v252, {L_STAT}, v38
        v_add_u32 v253, {L_STAT + 1024}, v7
        v_add_u32 v9, v12, v7
        v_bfe_u32 v17, v0, 3, 2
        v_cmp_eq_u32 vcc, 1, v17
        """)
        self.stamp("L", "pre-issue"); self.stamp("L", "preBa")
        A("s_barrier")
        self.stamp("L", "Ba")
        self.l_consts()
        A(f"""v_mov_b32 v17, 0
        v_mov_b32 v19, 0
        v_mov_b32 v21, 0
        v_mov_b32 v23, 0
        s_waitcnt vmcnt(5)
        v_cndmask_b32 v13, 0, v13, vcc
        v_cndmask_b32 v14, 0, v14, vcc
        v_cndmask_b32 v15, 0, v15, vcc
        v_and_b32 v16, 0xffff, v13
        v_lshrrev_b32 v18, 16, v13
        v_and_b32 v20, 0xffff, v14
        v_lshrrev_b32 v22, 16, v14
        ds_write_b128 v10, v[16:19]
        ds_write_b128 v10, v[20:23] offset:2048
        s_cmp_eq_u32 s16, 0
        s_cbranch_scc0 L_hp_n0
        v_and_b32 v16, 0xffff, v15
        v_lshrrev_b32 v18, 16, v15
        ds_write_b128 v10, v[16:19] offset:4096
        L_hp_n0:
        """)
        A("s_waitcnt lgkmcnt(0)")
        A("v_cmp_gt_u32 vcc, 16, v0")
        self.stamp("L", "rdy")
        if self.lprio: A(f"s_setprio {self.lprio}")
    def helper(self, K):
        A0 = self.A; D = K == "D"; T5 = K == "5"
        class W:
            def __call__(s_, t): A0(t.replace("@", K))
            def label(s_, t): A0.label(t.replace("@", K))
        A = W()
        def only(w, f):
            def g():
                l = self.lab("on"); A(f"s_cmp_eq_u32 s16, {w}\ns_cbranch_scc0 {l}"); f(); A.label(l)
            return g
        mk = "0xffff" if self.w2t else "0x1ffffff"
        PL = [(54, 1, 53, "s1", f"s_mov_b32 exec_lo, {mk}\ns_mov_b32 exec_hi, {mk}")]
        stl = f"s_lshl_b32 s17, s26, 11\ns_add_u32 s17, s17, {W_STAT}\nbuffer_load_dwordx4 v[56:59], v8, s[44:47], s17 offen sc1\nbuffer_load_dwordx4 v[60:63], v8, s[44:47], s17 offen offset:1024 sc1\ns_lshl_b32 s17, s20, 11\ns_lshl_b32 s18, s31, 8\ns_add_u32 s17, s17, s18\ns_add_u32 s17, s17, {W_STAT}\nbuffer_load_dwordx4 v[48:51], v52, s[44:47], s17 offen sc1"
        def statline():
            A(f"""ds_read_b32 v24, v9 offset:{SY_ST}
            s_lshl_b32 s17, s26, 4
            s_add_u32 s17, s17, s29
            s_lshl_b32 s17, s17, 7
            s_add_u32 s17, s17, {W_STAT}
            s_mov_b32 exec_hi, 0
            s_waitcnt lgkmcnt(0)
            buffer_store_dword v24, v7, s[44:47], s17 offen sc1
            s_mov_b64 exec, -1""")
        def csprod(fifth=False):
            n = 2 if fifth else 4
            for j in range(n):
                for u in range(2):
                    for t in range(2):
                        A(f"ds_read_b64_tr_b16 {vr(16+8*j+4*u+2*t,2)}, v{(236 if fifth else 232)+j} offset:{32768 + 2048*u + 256*t if fifth else 16384 + 8192*u + 1024*t}")
            A(f"s_mul_i32 s18, s64, 640\ns_add_u32 s17, {'s67' if fifth else 's66'}, s18\ns_waitcnt lgkmcnt(0)")
            for u in range(2):
                for j in range(n): A(f"{self.MF} {vr(212+4*j,4)}, v[228:231], {vr(16+8*j+4*u,4)}, {'0' if u == 0 else vr(212+4*j,4)}")
            A("s_nop 7\nv_cndmask_b32 v212, v216, v212, vcc")
            if not fifth: A("v_cndmask_b32 v220, v224, v220, vcc")
            A("v_perm_b32 v212, v212, v55, v238")
            if not fifth: A("v_perm_b32 v220, v220, v55, v238")
            A("s_mov_b32 exec_hi, 0\nbuffer_store_dword v212, v7, s[44:47], s17 offen sc1")
            if not fifth: A("buffer_store_dword v220, v7, s[44:47], s17 offen offset:256 sc1")
            A("s_mov_b64 exec, -1")
        csd = f"s_mul_i32 s17, s29, 6400\ns_add_u32 s17, s17, {W_CS}\ns_mov_b32 m0, {L_STG}\ns_add_u32 s18, s17, 4096\n" + "\n".join(f"buffer_load_dwordx4 v8, s[44:47], s17 offen offset:{1024*k} sc1 lds" for k in range(4)) \
              + f"\ns_mov_b32 m0, {L_STG + 4096}\ns_nop 0\n" + "\n".join(f"buffer_load_dwordx4 v8, s[44:47], s18 offen offset:{1024*k} sc1 lds" for k in range(3))
        csr = lambda b_, o: "\n".join(f"ds_read_b32 v{b_+k}, v239 offset:{640*k + o}" for k in range(5))
        def csread(): A(csr(16, 0) + "\n" + csr(21, 256) + ("\n" + csr(26, 512) if T5 else ""))
        def cschk(o, tile_off):
            l = self.lab("ck"); b_ = 16 + 5*(o // 256)
            A(f"""s_mov_b32 s19, 0
            {l}:
            s_waitcnt lgkmcnt(0)
            v_xor_b32 v38, v250, v{b_}
            v_xor_b32 v39, v250, v{b_+1}
            v_xor_b32 v40, v250, v{b_+2}
            v_xor_b32 v41, v250, v{b_+3}
            v_xor_b32 v42, v250, v{b_+4}
            v_or3_b32 v38, v38, v39, v40
            v_add_f32 v39, v{b_}, v{b_+1}
            v_or3_b32 v38, v38, v41, v42
            v_add_f32 v40, v{b_+2}, v{b_+3}
            v_and_b32 v38, 0xff, v38
            v_add_f32 v39, v39, v{b_+4}
            v_cmp_ne_u32 vcc, 0, v38
            v_add_f32 v39, v39, v40
            {self.spin_guard(l + "d") or "s_nop 1"}
            s_cbranch_vccz {l}d
            s_sleep 4
            {csd}
            s_waitcnt vmcnt(0)
            {csr(b_, o)}
            s_branch {l}
            {l}d:
            v_mov_b32 v40, v39
            s_nop 1
            v_permlane32_swap_b32 v39, v40
            s_nop 1
            v_add_f32 v39, v39, v40
            v_cvt_pk_bf16_f32 v40, v39, v39
            v_lshlrev_b32 v40, 16, v40
            v_sub_f32 v39, v39, v40
            v_cvt_pk_bf16_f32 v39, v40, v39
            s_mov_b32 exec_hi, 0
            ds_write_b32 v251, v39 offset:{tile_off}
            s_mov_b64 exec, -1""")
        def w2dma():
            if self.w2t and T5: return
            self.w2_task_dma(48, 50, 5, 76)
            if D or self.w2t:
                A("s_cmp_eq_u32 s62, 1\ns_cbranch_scc0 L_hp_d3@")
                self.w2_task_dma(49, 52, 5, 76)
                A("L_hp_d3@:")
        def w2fin():
            if self.w2t and T5: return
            A("s_waitcnt vmcnt(0)")
            self.w2_task_fin(51, 50, 30, 32)
            if D or self.w2t:
                A("s_cmp_eq_u32 s62, 1\ns_cbranch_scc0 L_hp_f3@")
                self.w2_task_fin(53, 52, 30, 212)
                A("L_hp_f3@:")
        def flag():
            if not (self.w2t and T5): A("s_mov_b32 exec_hi, 0\nbuffer_store_dword v55, v7, s[44:47], s0 offen sc1\ns_mov_b64 exec, -1")
        def statchk():
            A(f"""s_mov_b32 s19, 0
            s_mov_b32 s17, 0x01000100
            L_l_sc@:
            v_cmp_ne_u32 vcc, v55, v59
            v_cmp_ne_u32 s[68:69], v55, v63
            v_cmp_ne_u32 s[70:71], v55, v51
            {self.spin_guard("L_l_scd@")}
            s_or_b64 vcc, vcc, s[68:69]
            s_or_b64 vcc, vcc, s[70:71]
            s_cbranch_vccz L_l_scd@
            s_sleep 4
            {stl}
            s_mov_b32 s17, 0x01000100
            s_waitcnt vmcnt(0)
            s_branch L_l_sc@
            L_l_scd@:
            v_perm_b32 v40, v56, v56, s17
            v_lshrrev_b32 v41, 16, v56
            v_perm_b32 v42, v60, v60, s17
            v_lshrrev_b32 v43, 16, v60
            ds_write_b32 v253, v57
            ds_write_b32 v253, v61 offset:256
            ds_write_b32 v253, v58 offset:512
            ds_write_b32 v253, v62 offset:768
            ds_write_b32 v253, v49 offset:{L_SYNC + 512 - L_STAT - 1024}
            ds_write_b64 v252, v[40:41]
            ds_write_b64 v252, v[42:43] offset:512""")
        def xload():
            A(f"""s_lshl_b32 s17, s31, 10
            s_lshl_b32 s18, s20, 2
            s_add_u32 s17, s17, s18
            s_mul_i32 s17, s17, 1280
            s_mul_i32 s18, s15, 160
            s_add_u32 s17, s17, s18""")
            for k in range(5): A(f"buffer_load_dwordx4 {vr(172+8*k,4)}, v{240+k}, s[36:39], s17 offen")
        def f0issue():
            for (dst, n, va, so, ex) in PL: A(f"{ex}\nbuffer_load_dword v{dst}, v{va}, s[44:47], {so} offen sc1\ns_mov_b64 exec, -1")
        def f0chk(): self.poll(PL, 55, first_issued=True)
        W0 = lambda: A("s_waitcnt vmcnt(0)")
        E = dict(w2dma=w2dma, csread=csread, statline=only(0, statline), csprod=csprod, csprod5=(only(1, lambda: csprod(True)) if T5 else None), w2fin=w2fin, flag=only(0, flag),
                 stl=only(1, lambda: A(stl)), csl=only(0, lambda: A(csd)),
                 f0issue=only(0, f0issue), statchk=only(1, statchk), cschk0=lambda: cschk(0, 0), cschk1=lambda: cschk(256, 2048),
                 cschk5=(only(0, lambda: cschk(512, 4096)) if T5 else None), f0chk=only(0, f0chk), xload=xload, fw=only(0, lambda: self.lds_set(12, SY_FW, 16)))
        for n_ in (0, 1, 5, 10): E[f"W{n_}"] = (lambda n_=n_: A(f"s_waitcnt vmcnt({n_})"))
        E["LG"] = lambda: A("s_waitcnt lgkmcnt(0)")
        E["W0_1"] = only(1, E["W0"]); E["W0_0"] = only(0, E["W0"]); E["W3_0"] = only(0, lambda: A("s_waitcnt vmcnt(0)"))
        P = self.hplan or {}
        if not D:
            plan = P.get("W") or ["|", "w2dma", "statline", "csprod", "|", "csprod5", "|", "w2fin", "|", "W0", "|", "flag", "stl", "csl", "|", "W0", "|", "csread", "statchk", "cschk5",
                    "|", "f0issue", "cschk0", "|", "cschk1", "W0", "f0chk", "LG", "|", "xload"]
        else:
            plan = ["|", "w2dma", "statline", "|", "|", "w2fin", "W0", "|", "flag", "|", "stl", "f0issue", "xload", "W5", "statchk", "f0chk", "fw", "LG", "|"]
        i = 0
        for n_ in plan:
            if n_ == "|":
                A("s_barrier"); self.stamp("L", f"B{i}" if not D else ["B0", "X", "B3", "B5", "B7", "B9"][i]); i += 1
            elif n_ not in self.off and E[n_]: E[n_]()
        assert i == (6 if D else 10)
        if self.p1only: self.dump_stamps("L"); A("s_endpgm")
    def hp_gap(self):
        A = self.A
        A.label("L_hp_gap")
        A("s_setprio 0")
        self.l_consts2()
        if self.pgate: self.lds_spin(12, SY_ZF, 4, 16)
        A("s_setprio 3\ns_waitcnt vmcnt(0)")
        for k in range(5):
            x = 172 + 8*k; b = x + 4
            for d in range(4):
                A(f"""v_lshlrev_b32 v{32+2*d}, 16, v{x+d}
                v_and_b32 v{33+2*d}, 0xffff0000, v{x+d}
                v_lshlrev_b32 v40, 16, v{b+d}
                v_and_b32 v41, 0xffff0000, v{b+d}
                v_add_f32 v{32+2*d}, v{32+2*d}, v40
                v_add_f32 v{33+2*d}, v{33+2*d}, v41""")
            A(f"v_xor_b32 v40, 16, v{245+k}\nds_write_b128 v{245+k}, v[32:35]\nds_write_b128 v40, v[36:39]")
        A("s_waitcnt lgkmcnt(0)")
        self.lds_inc(12, SY_P, 16)
        A("s_cmp_eq_u32 s34, 1\ns_cbranch_scc0 L_l_fft")
        self.lds_spin(12, SY_FL, 1, 16)
        self.l_w2dma("a2", 6)
    def l_w2dma(self, tag, count, sfx=''):
        A = self.A
        if tag in ("a", "a2", "b"):
            kr = 16 if tag == "a" else 9
            if kr == 9: A("s_xor_b32 s9, s16, 2")
            A(f"""s_lshl_b32 s18, s{kr}, 3
            s_lshr_b32 s17, {KS0[0] | KS0[1] << 8 | KS0[2] << 16 | KS0[3] << 24:#x}, s18
            s_and_b32 s17, s17, 0xff
            s_add_u32 s17, s17, 1
            s_mul_i32 s8, s17, 40960
            s_mul_i32 s17, s15, 5120
            s_add_u32 s8, s8, s17
            s_add_u32 s8, s8, {W_W2F}""")
            self.lw(7, kr)
            n = 7 if tag == "b" else 6
            A(f"""s_lshl_b32 s17, s24, 1
            s_add_u32 s17, s17, s31
            s_cmp_ge_u32 s17, {n}
            s_cselect_b32 s18, {n}, 0
            s_sub_u32 s17, s17, s18            ; rot
            s_sub_u32 s6, {n}, s17
            s_mul_i32 s4, s17, 5120
            s_add_u32 s4, s4, s7
            s_mul_i32 s5, s17, 40960
            s_add_u32 s5, s5, s8""")
        A(f"s_mov_b32 s18, {count}\nL_l_dma{tag}{sfx}:\ns_mov_b32 m0, s4\ns_add_u32 s17, s5, 4096")
        for nt in range(4): A(f"buffer_load_dwordx4 v8, s[44:47], s5 offen offset:{1024*nt} sc1 lds")
        A(f"""s_add_u32 m0, s4, 4096
        s_add_u32 s4, s4, 5120
        buffer_load_dwordx4 v8, s[44:47], s17 offen sc1 lds
        s_add_u32 s5, s5, 40960
        s_sub_u32 s6, s6, 1
        s_cmp_eq_u32 s6, 0
        s_cselect_b32 s4, s7, s4
        s_cselect_b32 s5, s8, s5
        s_sub_u32 s18, s18, 1
        s_cmp_lg_u32 s18, 0
        s_cbranch_scc1 L_l_dma{tag}{sfx}""")
    def l_gap2(self):
        A = self.A
        A("s_cmp_lt_u32 s16, 2\ns_cbranch_scc1 L_l_gq\ns_cmp_le_u32 s4, 320\ns_cbranch_scc1 L_l_gq")
        A(f"""s_lshl_b32 s17, s16, 2
        v_add_u32 v16, s17, v12
        v_mov_b32 v17, 1
        s_waitcnt vmcnt(0)
        ds_write_b32 v16, v17 offset:{SY_W2}
        ds_write_b32 v16, v17 offset:{SY_W2 - 8}""")
        self.stamp("L", "w2land")
        A.label("L_l_gq")
    def gate(self, t4flag):
        A = self.A; l = self.lab("gt")
        A(f"s_cmp_eq_u32 s34, 1\ns_cbranch_scc0 {l}w")
        self.lds_spin(12, SY_FL, 1, 16)
        A(f"s_sleep {self.zsleepd}\ns_branch {l}e\n{l}w:")
        self.lds_spin(12, SY_WI, 4, 16)
        if t4flag is not None:
            A(f"s_cmp_eq_u32 s33, 1\ns_cbranch_scc1 {l}e")
            self.lds_spin(12, t4flag, 1, 16)
        A(f"{l}e:")
    def h2poll(self, issue):
        A = self.A
        P = [(56, 1, 47, "s0", "s_mov_b64 exec, 0x0707")]
        if issue:
            A(f"v_lshlrev_b32 v47, 7, v0\ns_lshl_b32 s0, s20, 11\ns_add_u32 s0, s0, {W_F1}\ns_mov_b64 exec, 0x0707\nbuffer_load_dword v56, v47, s[44:47], s0 offen sc1\ns_mov_b64 exec, -1")
        else:
            self.poll(P, 55, first_issued=True, sleep=self.zret)
            self.lds_set(12, SY_H2, 16)
    def l_fft(self):
        self.A.label("L_l_fft")
        self.stamp("L", "w2iss")
        A = self.A; F1, TC, TS, F2 = self.F1, self.TC, self.TS, self.F2
        Z = 172; D1 = 204; P = 172; D3 = 236
        A(f"""s_mov_b32 s17, s21
        s_lshr_b32 s18, s17, 2
        s_lshl_b32 s18, s18, 2             ; 4*rb
        s_and_b32 s5, s17, 1
        s_lshl_b32 s5, s5, 1               ; 2*(cbl&1)
        s_add_u32 s18, s18, s5
        s_add_u32 s18, s18, s23
        s_add_u32 s17, s18, 256
        s_cmp_eq_u32 s2, 24
        s_movk_i32 s18, 320
        s_cselect_b32 s18, s18, -1
        s_cmp_eq_u32 s34, 1
        s_cselect_b32 s17, s17, s18
        s_cmp_lt_u32 s16, 2
        s_cselect_b32 s4, s2, s17
        s_cmp_eq_u32 s16, 1
        s_cbranch_scc0 L_l_nhp""")
        self.gate(None)
        A(f"v_lshlrev_b32 v14, 7, v0\ns_lshl_b32 s17, s20, 11\ns_add_u32 s17, s17, {W_F1}")
        self.poll([(16, 1, 14, "s17", "s_mov_b64 exec, 0x3838")], 55, sleep=self.zret)
        self.lds_set(12, SY_H, 16)
        A(f"""L_l_nhp:
        s_cmp_gt_u32 s4, 320
        s_cbranch_scc1 L_l_nofft
        s_bitcmp1_b32 s4, 0
        s_cselect_b32 s17, 128, 0
        s_add_u32 s17, s17, {W_F1 + 6*128}
        v_and_b32 v14, 15, v0
        v_lshlrev_b32 v14, 11, v14
        v_bfe_u32 v15, v0, 4, 1
        v_lshl_add_u32 v14, v15, 10, v14
        v_mov_b32 v15, v12
        s_cmp_eq_u32 s16, 0
        s_cbranch_scc0 L_l_zspin""")
        self.gate(SY_H)
        self.poll([(16, 1, 14, "s17", "s_mov_b32 exec_hi, 0")], 55, sleep=self.zret)
        self.lds_set(12, SY_ZOK, 16)
        A("s_branch L_l_zok\nL_l_zspin:")
        self.lds_spin(12, SY_ZOK, 1, 16)
        A.label("L_l_zok")
        A("s_and_b32 s18, s16, 2\ns_lshl_b32 s18, s18, 1\nv_add_u32 v15, s18, v12")
        self.stamp("L", "Zok")
        A("s_setprio 3")
        A(f"""v_bfe_u32 v16, v0, 2, 2
        v_lshlrev_b32 v16, 8, v16
        v_lshrrev_b32 v17, 4, v0
        v_lshl_add_u32 v16, v17, 6, v16
        v_and_b32 v18, 3, v0
        v_lshl_add_u32 v16, v18, 4, v16     ; z voffset
        s_lshl_b32 s5, s4, 12
        s_add_u32 s5, s5, {W_Z}
        s_add_u32 s6, s5, {PZ}
        s_cmp_eq_u32 s4, 320
        s_cselect_b32 s6, 0x40000000, s6""")
        for a4 in range(4):
            A(f"buffer_load_dwordx4 {vr(Z+4*a4,4)}, v16, s[44:47], s5 offen offset:{1024*a4} sc1")
            A(f"buffer_load_dwordx4 {vr(Z+16+4*a4,4)}, v16, s[44:47], s6 offen offset:{1024*a4} sc1")
        A("s_mov_b32 s9, s16\ns_cmp_eq_u32 s9, 1\ns_cbranch_scc0 L_l_nzi")
        self.h2poll(True)
        A(f"""L_l_nzi:
        v_and_b32 v18, 15, v0
        v_lshlrev_b32 v18, 4, v18
        v_lshl_add_u32 v18, v17, 9, v18
        s_lshl_b32 s5, s4, 13
        s_and_b32 s17, s16, 1
        s_lshl_b32 s18, s17, 11
        s_add_u32 s5, s5, s18
        s_add_u32 s5, s5, {W_Y}
        s_add_u32 s6, s5, 4096
        """)
        mf = "v_mfma_f32_16x16x32_bf16"
        for a4 in range(4):
            zr, zi = vr(Z+4*a4,4), vr(Z+16+4*a4,4); re, im = vr(D1+4*a4,4), vr(D1+16+4*a4,4)
            if a4 == 0:
                A(f"""s_waitcnt vmcnt(6)
                s_lshl_b32 s17, s34, 1
                s_or_b32 s17, s17, s16
                s_cmp_lt_u32 s17, 2
                s_cbranch_scc1 L_l_nw2f
                s_xor_b32 s17, s16, 2
                s_lshl_b32 s17, s17, 2
                v_add_u32 v16, s17, v12
                ds_write_b32 v16, v12 offset:{SY_W2}
                s_cmp_eq_u32 s34, 1
                s_cbranch_scc1 L_l_nw2f
                ds_write_b32 v16, v12 offset:{SY_W2 + 8}
                L_l_nw2f:""")
                self.stamp("L", "zland")
            A(f"""s_waitcnt vmcnt({6-2*a4})
            {mf} {re}, {zr}, {vr(F1,4)}, 0
            {mf} {im}, {zi}, {vr(F1,4)}, 0
            {mf} {re}, {zi}, {vr(F1+4,4)}, {re}
            {mf} {im}, {zr}, {vr(F1+8,4)}, {im}""")
        A(f"""s_cmp_eq_u32 s9, 1
        s_cbranch_scc0 L_l_h2a
        s_mov_b64 exec, 0x0707
        v_cmp_ne_u32 vcc, v55, v56
        s_mov_b64 exec, -1
        s_nop 0
        s_cbranch_vccnz L_l_h2a
        ds_write_b32 v12, v12 offset:{SY_H2}
        s_mov_b32 s9, 0
        L_l_h2a:""")
        for a4 in range(4):
            if a4 == 3: A("s_nop 0")
            for i in range(4):
                r = D1+4*a4+i; m = r+16; c = TC+4*a4+i; s = TS+4*a4+i
                A(f"""v_mul_f32 v{32+i}, v{r}, v{c}
                v_mul_f32 v{36+i}, v{m}, v{c}
                v_fmac_f32 v{32+i}, v{m}, v{s}
                v_fma_f32 v{36+i}, -v{r}, v{s}, v{36+i}""")
            pr = P + 4*(a4 >> 1) + 2*(a4 & 1); pi = pr + 8
            A(f"""v_cvt_pk_bf16_f32 v{pr}, v32, v33
            v_cvt_pk_bf16_f32 v{pr+1}, v34, v35
            v_cvt_pk_bf16_f32 v{pi}, v36, v37
            v_cvt_pk_bf16_f32 v{pi+1}, v38, v39""")
        A("s_nop 1")
        for k in range(4):
            for T in range(2):
                for jh in range(2):
                    d = vr(D3 + 8*T + 4*jh, 4)
                    f = F2 + 32*jh + 16*(k >> 1) + 8*T + 4*(k & 1)
                    A(f"{mf} {d}, {vr(P+4*k,4)}, {vr(f,4)}, {'0' if k == 0 else d}")
        for i in range(4): A(f"s_mov_b32 s{60+i}, {0x07060500 + i:#x}")
        A("s_nop 1")
        for T in range(2):
            for jh in range(2):
                d = D3+8*T+4*jh
                for i in range(4): A(f"v_perm_b32 v{d+i}, v{d+i}, v55, s{60+i}")
                A(f"buffer_store_dwordx4 {vr(d,4)}, v18, s[44:47], {'s5' if T == 0 else 's6'} offen offset:{256*jh} sc1")
        A("s_cmp_eq_u32 s9, 1\ns_cbranch_scc0 L_l_nofft")
        self.h2poll(True); A("s_waitcnt vmcnt(0)"); self.h2poll(False)
        A.label("L_l_nofft")
        self.stamp("L", "fftdone")
    def l_y(self):
        A = self.A
        A(f"s_setprio {self.yprio}")
        A(f"""v_and_b32 v16, 15, v0               ; jl
        v_lshrrev_b32 v17, 4, v0                  ; e sub
        s_mul_i32 s17, s16, 20
        v_mul_u32_u24 v18, {PROW}, v16
        v_lshl_add_u32 v18, v17, 2, v18
        v_add_u32 v18, {L_P}, v18
        v_bfe_u32 v19, v16, 1, 2
        s_mul_i32 s18, s16, 5""")
        for n in range(5): A(f"s_add_u32 s27, s18, {n}\nv_xor_b32 v{28+n}, s27, v19\nv_lshl_add_u32 v{28+n}, v{28+n}, 4, v18")
        A(f"""s_mul_i32 s4, s15, 80
        s_add_u32 s4, s4, s17
        s_cmp_ge_u32 s15, 4
        s_cbranch_scc1 L_l_mir
        v_lshlrev_b32 v24, 13, v17
        v_lshl_add_u32 v24, v16, 4, v24
        s_lshl_b32 s5, s4, 13
        s_lshl_b32 s17, s20, 9
        s_lshl_b32 s18, s31, 8
        s_add_u32 s17, s17, s18
        s_add_u32 s5, s5, s17
        s_add_u32 s5, s5, {W_Y}
        s_mov_b32 s6, 32768
        s_branch L_l_mird
        L_l_mir:
        v_sub_u32 v26, 3, v17
        v_lshlrev_b32 v26, 13, v26                ; (3 - esub)*8192
        v_sub_u32 v24, 15, v16
        v_lshl_add_u32 v24, v24, 4, v26
        s_cmp_eq_u32 s20, 0
        s_cselect_b32 s17, 32, 31
        s_lshl_b32 s18, s31, 4
        s_sub_u32 s17, s17, s18
        v_sub_u32 v25, s17, v16
        v_and_b32 v25, 31, v25
        v_lshl_add_u32 v25, v25, 4, v26
        s_sub_u32 s17, 637, s4
        s_lshl_b32 s5, s17, 13
        s_add_u32 s5, s5, {W_Y}
        s_sub_u32 s17, 16, s20
        s_and_b32 s17, s17, 15
        s_lshl_b32 s17, s17, 9
        s_add_u32 s8, s5, s17
        s_sub_u32 s17, 15, s20
        s_lshl_b32 s17, s17, 9
        s_sub_u32 s18, 1, s31
        s_lshl_b32 s18, s18, 8
        s_add_u32 s17, s17, s18
        s_add_u32 s5, s5, s17
        s_mov_b32 s6, -32768
        L_l_mird:""")
        self.lds_spin(12, SY_P, 2, 16)
        for n in range(5):
            for i in range(4): A(f"ds_read_b32 v{172+4*n+i}, v{28+n} offset:{16*PROW*i}")
        self.lds_spin(12, SY_G, 1, 16)
        def chk(b, first):
            A(f"v_perm_b32 v20, v{b+1}, v{b}, s60\nv_perm_b32 v21, v{b+3}, v{b+2}, s61")
            A("v_bitop3_b32 v22, v20, v21, v55 bitop3:0x56" if first else "v_bitop3_b32 v20, v20, v21, v55 bitop3:0x56\nv_or_b32 v22, v22, v20")
        A("s_mov_b32 s60, 0x0c0c0400\ns_mov_b32 s61, 0x04000c0c\ns_mov_b32 s19, 0\nL_l_yl:\ns_mov_b32 s62, s5\ns_mov_b32 s63, s8")
        self.stamp("L", "Yok")
        for n in range(5):
            A(f"buffer_load_dwordx4 {vr(192+4*n,4)}, v24, s[44:47], s62 offen sc1\ns_add_u32 s62, s62, s6")
        A("s_cmp_ge_u32 s15, 4\ns_cbranch_scc1 L_l_ex")
        for n in range(5): A(f"s_waitcnt vmcnt({4-n})"); chk(192+4*n, n == 0)
        A("s_branch L_l_yc\nL_l_ex:")
        for n in range(5):
            A(f"buffer_load_dwordx4 {vr(212+4*n,4)}, v25, s[44:47], s63 offen sc1\ns_add_u32 s63, s63, s6")
        for n in range(5): A(f"s_waitcnt vmcnt({9-n})"); chk(192+4*n, n == 0)
        for n in range(5):
            A(f"s_waitcnt vmcnt({4-n})"); chk(212+4*n, False)
            A(f"v_mov_b32 v{192+4*n}, v{212+4*n}\nv_swap_b32 v{193+4*n}, v{195+4*n}")
        A(f"""L_l_yc:
        v_cmp_ne_u32 vcc, 0, v22
        {self.spin_guard("L_l_yd") or "s_nop 1"}
        s_cbranch_vccz L_l_yd
        s_sleep {self.yret}
        s_branch L_l_yl
        L_l_yd:""")
        A("s_waitcnt vmcnt(0) lgkmcnt(0)")
        for n in range(5):
            for i in range(4): A(f"v_add_f32 v{172+4*n+i}, v{172+4*n+i}, v{192+4*n+i}\nds_write_b32 v{28+n}, v{172+4*n+i} offset:{16*PROW*i}")
        A("s_waitcnt lgkmcnt(0)")
        self.stamp("L", "ydone")
        self.lds_inc(12, SY_Y, 16)
        A("""s_or_b32 s17, s2, s16
        s_cmp_eq_u32 s17, 0
        s_cbranch_scc0 L_l_noep
        v_mov_b32 v8, 0
        s_mov_b64 exec, 1
        buffer_store_dword v55, v8, s[44:47], 0 offen sc1
        s_mov_b64 exec, -1
        L_l_noep:""")

    def build(self):
        A = self.A
        self.prologue()
        nl = self.nstamp["L"]
        self.loader()
        self.nstamp["L"] = nl
        self.loader_d()
        self.notld()
        A.label("L_hp")
        self.nstamp["L"] = nl
        self.hp_setup()
        nl = self.nstamp["L"]
        A("s_cmp_eq_u32 s34, 1\ns_cbranch_scc1 L_hp_D\ns_cmp_eq_u32 s33, 0\ns_cbranch_scc1 L_hp_4")
        self.helper("5"); self.hp_gap(); self.l_fft(); self.l_gap2(); self.l_y()
        self.dump_stamps("L")
        A("s_endpgm\nL_hp_D:")
        self.nstamp["L"] = nl
        self.helper("D"); A("s_branch L_hp_gap\nL_hp_4:")
        self.nstamp["L"] = nl
        self.helper("4"); A("s_branch L_hp_gap")
        self.g_phase0()
        self.stamp("G", "p0done")
        A("s_cmp_eq_u32 s34, 1\ns_cbranch_scc1 L_gD\ns_cmp_eq_u32 s33, 0\ns_cbranch_scc1 L_g4")
        n0 = self.nstamp["G"]
        self.g_main("5", 5); self.g_epi_h(5); A("s_branch L_g_issued")
        self.nstamp["G"] = n0
        self.g_main_d(); self.g_epi_z(); A("s_branch L_g_issued")
        self.nstamp["G"] = n0
        self.g_main("4", 4); self.g_epi_h(4)
        self.g_phase2()
        self.dump_stamps("G")
        A.label("L_end")
        hdr = open("cdna_kernels/" + KNAME[:-7] + ".s.ref").read().split("; Override")[0]
        s = hdr + f"; @launch grid=(256,1,1) block=(512,1,1) lds={LDS_BYTES}\n" + '.amdgcn_target "amdgcn-amd-amdhsa--gfx950"\n'
        return s + kernel(KNAME, A.text(), vgpr=256, accum=256).replace("s_endpgm\n.section .rodata", "s_endpgm\n.fill 512, 4, 0xbf810000\n.section .rodata")

if __name__ == "__main__":
    for m in ("", "lb", "s0", "ck"):
        g = Gen(mode=m); open(f"megaT{m}.s", "w").write(g.build()); print(g.names)
    open("megaT_rel.s", "w").write(Gen(dbg=False).build())
    for k, v in {"a": dict(swap=0), "b": dict(touchp=1), "c": dict(ystep=10), "d": dict(yprio=1), "e": dict(npw=6, wgate=4), "f": dict(la=2)}.items():
        open(f"megaT_{k}_rel.s", "w").write(Gen(dbg=False, **v).build())
```

```python
import sys, struct
from alib import *

KNAME = "parallel_sum__spectral_fnet__dense_activation_squared_relu__prompt_kernel"
SLOT = 36864; NS = 4; DS = 28672
LDS_BYTES = 163840
L_STG = 4*SLOT
L_STG3 = 3*SLOT
M = 155648
L_CORR = M; L_STAT = M + 5120; L_SYNC = M + 7168
L_CST = 3*SLOT + 4096
SY_ACK, SY_ZW, SY_ZF, SY_FW, SY_P, SY_H, SY_ZI, SY_W2, SY_ZOK, SY_FD = 0, 4, 8, 12, 16, 20, 24, 32, 48, 56
SY_G = 28; SY_FL = 64; SY_WI = 68; SY_H2 = 72; SY_S1 = 76; SY_X = 84; SY_Y = 88
SY_C = 80
SY_ST = 256
ZROW = 272; ZB = 3*DS
LW = [0, 35840, 73728, 104448]; L_P = 135168; PROW = 320
KS0 = [24, 32, 40, 47]; NREG = 7
FTM = lambda f: f + 24 if f < 20 else f - 20 if f < 32 else f + 12 if f < 42 else f - 30
W_F0, W_F1, W_FY = 0x40000, 0x48000, 0x50000
W_CS = 0x60000
W_STAT = 0x10000; W_DBG = 0x20000
W_W2F = 0x100000; W_H = 0x400000; W_Z = 0xB00000; PZ = 0x150000; W_Y = 0xE00000
WS_SIZE = 0x1200000
HC = 54*2048
tA = [[0,192,320,640,768,896,0,192],[512,1024,1216,1344,1472,1600,0,192]]
tB = [[128,160,448,0,0,0,128,160],[480,1152,1184,0,0,0,128,160]]
SCHED = [[0,3,1,2,4,7,5,6,8,9],[0,1,4,2,3,5,8,6,7,9],[1,0,2,5,3,4,6,9,7,8],[2,0,1,3,6,4,5,7,8,9]]
XSH = (0,2,5,7,1)
def fl(x): return "0x%08x" % struct.unpack("<I", struct.pack("<f", x))[0]

class Gen:
    def __init__(self, dbg=True, spin=200000, mode='', lprio=0, noslice=False, ysleep=16, zsleep=8, zret=8, zbound=0, dfirst=1, wprio=0, wgate=3, npw=5, h2at=4, kearly=3, wgate5=4, z5=6, swap=1, touchp=0, ofl=' sc1', npreb=1, w2t=0, pgate=1, hplan=None, plan=1, off=(), p1only=False, rtail=4, yret=6, yprio=3, map2=0, nbd=5, nbc=0, bgate=0, spf=0, nb0=0, voff=1, skew=0, roles=None, hsleep=10, nb=0, dpf=0, zsleep4=12, zsleepd=0, ystep=11, ngate=4, touch=False, sched=None, xsh=None, gbit=10, rmul=0, npre=0, la=3, pfi=()):
        self.A = Asm(); self.dbg = dbg; self.SPIN = spin; self.mode = mode; self.lprio = lprio; self.noslice = noslice; self.la = la; self.kearly = kearly; self.wgate5 = wgate5; self.z5 = z5; self.swap = swap; self.touchp = touchp; self.ofl = ofl; self.npreb = npreb; self.w2t = w2t; self.pgate = pgate; self.hplan = hplan; self.plan = plan; self.off = off; self.p1only = p1only; self.rtail = rtail; self.yprio = yprio; self.yret = yret; self.h2at = h2at; self.bgate = bgate; self.nbc = nbc; self.nbd = nbd; self.map2 = map2; self.npw = npw; self.spf = spf; self.wgate = wgate; self.nb0 = nb0; self.voff = voff; self.skew = skew
        roles = roles or [(0,0,0),(0,1,0),(0,2,0),(0,3,0),(1,0,0),(1,1,0),(1,2,0),(1,3,0)]
        self.rolemap = sum(((g << 3) | (jh << 2) | e) << (4*i) for i, (jh, e, g) in enumerate(roles)); self.hsleep = hsleep; self.nb = nb; self.dpf = dpf; self.wprio = wprio; self.dfirst = dfirst; self.zsleep4 = zsleep4; self.zsleepd = zsleepd; self.ystep = ystep; self.zbound = zbound; self.ngate = ngate; self.sched = sched or SCHED; self.xsh = xsh or XSH; self.touch = touch; self.zret = zret; self.pfi = pfi; self.gbit = gbit; self.rmul = rmul; self.npre = npre; self.ysleep = ysleep; self.zsleep = zsleep
        self.nstamp = {"G": 0, "L": 0}; self.names = {}; self.uid = 0
    def lab(self, p):
        self.uid += 1; return f"L_{p}{self.uid}"
    @staticmethod
    def sreg(i): return 86+2*i if i < 8 else [60, 62, 14][i-8]
    def stamp(self, role, name=''):
        if not self.dbg: return
        sel = {"": {"G": ["start","B0","B10","issued","acked","Hok","p2done","end"], "L": ["B9","w2iss","Zok","fftdone","w2land","Yok","ydone"]},
               "lb": {"G": ["start","B0","fin","B10","issued","acked","w2iss","Hok"], "L": ["B0","B1","B3","B5","B7","B9"]},
               "l2": {"G": ["start","B0","B10","issued","acked","w2iss","Hok","B15"], "L": ["B5","W6","B6","W7","B7","W8","B8"]},
               "l1": {"G": ["start","B0","B10","issued","acked","w2iss","Hok","B15"], "L": ["B0","W1","B1","W2","B2","W3","B3"]},
               "fl": {"G": ["start","B10","issued","acked","flagack","w2iss","Hok","B15"], "L": ["B9","zpoll","Zok","zland","fftst","fftdone"]},
               "nv": {"G": ["start","B10","issued","acked","w2iss","Hok","p2done"], "L": ["Zok","fftdone","w2iss","w2land","Yok","ydone"]},
               "p2": {"G": ["start","Hok","S0","S1","S4","S7","S10","p2done"], "L": ["Zok","fftdone","w2iss","w2land","Yok","ydone"]},
               "ck": {"G": ["start","B0","B10","issued","acked","Hok","p2done","end"], "L": []},
               "s0": {"G": ["start","gl","preBa","Ba","xland","p0done","B0"], "L": ["pre-issue","preBa","Ba","rdy","B0"]},
               "st": {"G": ["start","B10","zw","issued","acked","w2iss","Hok","B15"], "L": ["pre-issue","B0","B9","w2iss","zland"]}}[self.mode]
        if name not in sel[role]: return
        i = self.nstamp[role]; self.nstamp[role] += 1
        assert i < 8, name
        self.names.setdefault(role, {})[i] = name
        r = self.sreg(i); self.A(f"s_memtime s[{r}:{r+1}]" if not (self.mode == "ck" and role == "G") else f"s_memrealtime s[{r}:{r+1}]")
    def dump_stamps(self, role):
        if not self.dbg: return
        A = self.A
        A(f"""s_waitcnt lgkmcnt(0)
        s_lshl_b32 s17, s2, 3
        s_add_u32 s17, s17, s3
        s_lshl_b32 s17, s17, 6
        s_add_u32 s17, s17, {W_DBG}
        v_mov_b32 v1, s17""")
        for i in range(self.nstamp[role]):
            A(f"v_mov_b32 v2, s{self.sreg(i)}\nbuffer_store_dword v2, v1, s[44:47], 0 offen offset:{4*i}")
        A("s_memrealtime s[72:73]\ns_waitcnt lgkmcnt(0)\nv_mov_b32 v2, s70\nbuffer_store_dword v2, v1, s[44:47], 0 offen offset:32\nv_mov_b32 v2, s72\nbuffer_store_dword v2, v1, s[44:47], 0 offen offset:36\ns_getreg_b32 s72, hwreg(HW_REG_XCC_ID)\nv_mov_b32 v2, s72\nbuffer_store_dword v2, v1, s[44:47], 0 offen offset:40\ns_getreg_b32 s72, hwreg(HW_REG_HW_ID)\nv_mov_b32 v2, s72\nbuffer_store_dword v2, v1, s[44:47], 0 offen offset:44")
        A("s_waitcnt vmcnt(0)")
    def spin_guard(self, done):
        if self.SPIN: return f"s_add_u32 s19, s19, 1\ns_cmp_gt_u32 s19, {self.SPIN}\ns_cbranch_scc1 {done}"
        return ""
    def lds_spin(self, vaddr, off, val, vt, bound=None, nosleep=False):
        l = self.lab("sp"); d = l + "d"
        self.A(f"""s_mov_b32 s19, 0
        {l}:
        ds_read_b32 v{vt}, v{vaddr} offset:{off}
        s_waitcnt lgkmcnt(0)
        v_readfirstlane_b32 s27, v{vt}
        {self.spin_guard(d) if bound is None else f"s_add_u32 s19, s19, 1; s_cmp_gt_u32 s19, {bound}; s_cbranch_scc1 {d}".replace("; ", chr(10))}
        s_cmp_ge_u32 s27, {val}
        s_cbranch_scc1 {d}
        {"" if nosleep else "s_sleep 1"}
        s_branch {l}
        {d}:""")
    def lw(self, sd, sk):
        self.A(f"s_mul_i32 s{sd}, s{sk}, 35840\ns_cmp_ge_u32 s{sk}, 2\ns_cselect_b32 s27, 2048, 0\ns_add_u32 s{sd}, s{sd}, s27\ns_cmp_eq_u32 s{sk}, 3\ns_cselect_b32 s{sd}, {LW[3]}, s{sd}")
    def lds_set(self, vaddr, off, vt):
        self.A(f"v_mov_b32 v{vt}, 1\nds_write_b32 v{vaddr}, v{vt} offset:{off}")
    def lds_inc(self, vaddr, off, vt):
        self.A(f"""v_mov_b32 v{vt}, 1
        s_mov_b64 exec, 1
        ds_add_u32 v{vaddr}, v{vt} offset:{off}
        s_mov_b64 exec, -1""")
    def poll(self, loads, vtag, first_issued=False, sleep=4):
        A = self.A; l = self.lab("po"); d = l + "d"; c = l + "c"
        A("s_mov_b32 s19, 0")
        if first_issued: A(f"s_branch {c}")
        A(f"{l}:")
        for (dst, n, va, so, ex) in loads:
            if ex: A(ex)
            A(f"buffer_load_dword{'x%d' % n if n > 1 else ''} {vr(dst, n)}, v{va}, s[44:47], {so} offen sc1")
            if ex and len(loads) > 1: A("s_mov_b64 exec, -1")
        A(f"s_waitcnt vmcnt(0)\n{c}:")
        for k, (dst, n, va, so, ex) in enumerate(loads):
            if ex: A(ex)
            if n == 1: A(f"v_cmp_ne_u32 vcc, v{vtag}, v{dst}")
            else:
                for i in range(n): A(f"v_xor_b32 v{dst+i}, v{vtag}, v{dst+i}")
                A(f"v_or3_b32 v{dst}, v{dst}, v{dst+1}, v{dst+2}\nv_or_b32 v{dst}, v{dst}, v{dst+3}\nv_cmp_ne_u32 vcc, 0, v{dst}")
            A("s_mov_b64 exec, -1")
            if len(loads) > 1:
                A("s_nop 0\ns_mov_b64 s[64:65], vcc" if k == 0 else "s_nop 0\ns_or_b64 vcc, vcc, s[64:65]")
        A(self.spin_guard(d) or "s_nop 1")
        A(f"s_cbranch_vccz {d}\ns_sleep {sleep}\ns_branch {l}\n{d}:")

    def spoll(self, base, loads, words, soff, first_issued=False, sleep=2, issue_only=False):
        A = self.A
        ld = "\n".join(f"s_load_dwordx{n} s[{d}:{d+n-1}], s[12:13], {soff} offset:{base+imm} glc" for d, n, imm in loads)
        if issue_only: A(ld); return
        l = self.lab("sq"); d_ = l + "d"; c = l + "c"
        A("s_mov_b32 s19, 0")
        if first_issued: A(f"s_branch {c}")
        A(f"{l}:\n{ld}\n{c}:\ns_waitcnt lgkmcnt(0)")
        w = list(words); f = w[0]
        A(f"s_xor_b32 s27, s{f}, s14")
        for x in w[1:]: A(f"s_xor_b32 s{x}, s{x}, s14\ns_or_b32 s27, s27, s{x}")
        A(self.spin_guard(d_))
        A(f"s_cmp_eq_u32 s27, 0\ns_cbranch_scc1 {d_}\ns_sleep {sleep}\ns_branch {l}\n{d_}:")

    def prologue(self):
        A = self.A
        A("s_cmp_ge_u32 s2, 256\ns_cbranch_scc1 L_end")
        self.stamp("G", "start"); self.nstamp["L"] = self.nstamp["G"]
        if self.dbg: A("s_memrealtime s[70:71]")
        A("""
        s_getpc_b64 s[18:19]
        L_pf:
        s_lshr_b32 s21, s2, 3         ; slot
        v_lshlrev_b32 v2, 4, v0
        s_lshl_b32 s17, s21, 11
        v_add_u32 v2, s17, v2
        v_cmp_gt_u32 vcc, 128, v0
        s_cmp_lt_u32 s17, L_end - L_pf
        s_cselect_b64 vcc, vcc, 0
        s_cbranch_vccz L_nopf
        global_load_dwordx4 v[252:255], v2, s[18:19]
        L_nopf:
        s_load_dwordx2 s[4:5], s[0:1], 0
        s_load_dwordx2 s[6:7], s[0:1], 48
        s_load_dwordx2 s[12:13], s[0:1], 96
        s_load_dwordx4 s[8:11], s[0:1], 24
        v_lshrrev_b32 v1, 6, v0
        s_bfe_u32 s22, s2, 0x20001    ; xr
        v_readfirstlane_b32 s3, v1    ; wave 0..7
        s_and_b32 s23, s2, 1          ; xc
        s_lshr_b32 s24, s21, 3        ; rbl
        s_and_b32 s25, s21, 7         ; cbl
        s_lshl2_add_u32 s26, s22, s24 ; rb
        s_and_b32 s16, s3, 3
        s_cmp_ge_u32 s25, 6
        s_cselect_b32 s34, 1, 0       ; isDFT
        s_cmp_lt_u32 s3, 6
        s_cbranch_scc1 L_notld
        v_and_b32 v0, 63, v0""")
    def cols(self):
        def pack(t):
            v = 0
            for i, x in enumerate(t[:6]): v |= (x//32) << (5*i) if False else 0
            return v
        pa = [sum((x//64) << (5*i) for i, x in enumerate(t[:6])) for t in tA]
        pb = [sum((1 if tB[c][i] > tA[c][i] else 0) << i for i in range(3)) for c in range(2)]
        self.A(f"""s_cmp_eq_u32 s23, 0
        s_mov_b32 s28, {pa[1]:#x}
        s_cselect_b32 s28, {pa[0]:#x}, s28
        s_cselect_b32 s30, {pb[0]}, {pb[1]}
        s_mul_i32 s27, s25, 5
        s_lshr_b32 s28, s28, s27
        s_and_b32 s28, s28, 31
        s_lshl_b32 s28, s28, 1        ; colA/32
        s_bitcmp1_b32 s30, s25
        s_cselect_b32 s30, 4, -1
        s_add_u32 s30, s30, s28       ; colB/32
        s_cmp_lt_u32 s25, 3
        s_cselect_b32 s33, 1, s34     ; T5""")
    def roles(self):
        self.A("""s_lshl3_add_u32 s29, s23, s25  ; cb
        s_and_b32 s15, s21, 3
        s_lshl2_add_u32 s15, s23, s15 ; eb
        s_bfe_u32 s31, s21, 0x10002   ; jh
        s_mov_b32 s20, s26            ; rb2
        s_lshl1_add_u32 s27, s26, s23
        s_mul_i32 s21, s27, 3
        s_add_u32 s21, s21, s25
        s_add_u32 s21, s21, 61
        s_cmp_lt_u32 s25, 3
        s_cselect_b32 s17, 99, 0
        s_add_u32 s21, s21, s17
        s_lshl1_add_u32 s27, s27, s25
        s_sub_u32 s27, s27, 6
        s_cmp_eq_u32 s34, 1
        s_cselect_b32 s21, s27, s21   ; p'""")
    def notld(self):
        A = self.A
        A("""L_notld:
        s_load_dwordx2 s[62:63], s[0:1], 56
        s_load_dwordx4 s[80:83], s[0:1], 64
        s_load_dwordx2 s[84:85], s[0:1], 80
        v_and_b32 v0, 63, v0""")
        A("s_cmp_lt_u32 s3, 4\ns_cbranch_scc1 L_gstart")
        self.cols(); self.roles()
    def common_srds(self):
        A = self.A
        A("s_waitcnt lgkmcnt(0)")
        srd(A, 36, 4, 2048*1280)
        srd(A, 44, 12, WS_SIZE)
        A("s_load_dword s14, s[12:13], 0")
    def get_tag(self):
        self.A("s_waitcnt lgkmcnt(0)\ns_mul_i32 s14, s14, 0x9E3779B1\ns_add_u32 s14, s14, 0x85EBCA6B")
    def w2_task_addr(self, st, so, sd, vo):
        self.A(f"""
        v_lshrrev_b32 v{vo}, 3, v0
        v_mul_u32_u24 v{vo}, 1280, v{vo}
        v_and_b32 v{vo+1}, 7, v0
        v_lshl_add_u32 v{vo}, v{vo+1}, 4, v{vo}
        s_mul_i32 s17, s{st}, 6554
        s_lshr_b32 s17, s17, 16        ; ks
        s_mul_i32 s18, s17, 10
        s_sub_u32 s18, s{st}, s18      ; cl
        s_mul_i32 s{so}, s17, 40960
        s_cmp_lt_u32 s17, 42
        s_cselect_b32 s27, 12, -30
        s_cmp_lt_u32 s17, 32
        s_cselect_b32 s27, -20, s27
        s_cmp_lt_u32 s17, 20
        s_cselect_b32 s27, 24, s27
        s_add_u32 s17, s17, s27
        s_mul_i32 s{sd}, s17, 40960
        s_lshl_b32 s17, s18, 12
        s_add_u32 s{sd}, s{sd}, s17
        s_add_u32 s{sd}, s{sd}, {W_W2F}
        s_lshl_b32 s17, s18, 7
        s_add_u32 s{so}, s{so}, s17""")
    def w2_task_dma(self, so, sstg, vo, srd_):
        for n in range(4):
            self.A(f"s_add_u32 m0, s{sstg}, {1024*n}\n" + ("s_nop 0" if n == 0 else f"s_add_u32 s{so}, s{so}, 10240") + f"\nbuffer_load_dwordx4 v{vo}, s[{srd_}:{srd_+3}], s{so} offen lds")
    def w2_task_fin(self, sd, sstg, t, d, wait=None):
        A = self.A
        A(f"""v_lshrrev_b32 v{t}, 2, v0
        v_lshlrev_b32 v{t}, 7, v{t}
        v_and_b32 v{t+1}, 3, v0
        v_lshl_add_u32 v{t}, v{t+1}, 3, v{t}
        v_add_u32 v{t}, s{sstg}, v{t}
        v_lshlrev_b32 v{t+1}, 4, v0""")
        if wait: A(wait)
        for nl in range(4):
            for k in range(2): A(f"ds_read_b64_tr_b16 {vr(d+4*nl+2*k,2)}, v{t} offset:{2048*k + 32*nl}")
        for nl in range(4):
            A(f"s_waitcnt lgkmcnt({6-2*nl})\nbuffer_store_dwordx4 {vr(d+4*nl,4)}, v{t+1}, s[44:47], s{sd} offen offset:{1024*nl} sc1")

    def g_phase0(self):
        A = self.A
        A.label("L_gstart")
        A(f"""
        s_lshl3_add_u32 s29, s23, s25
        v_and_b32 v11, 31, v0          ; l'
        v_lshrrev_b32 v12, 5, v0       ; hh
        s_mov_b32 s17, 81920
        v_mul_lo_u32 v13, v12, s17
        v_lshl_add_u32 v13, v11, 4, v13
        s_and_b32 s17, s29, 3
        s_lshl_b32 s17, s17, 2
        s_add_u32 s17, s17, s16
        s_lshl_b32 s48, s17, 1         ; j0 = 8(cb&3)+2g
        s_lshr_b32 s49, s29, 2         ; cb>>2
        s_lshl_b32 s50, s26, 2
        s_add_u32 s50, s50, s49        ; c
        s_lshl_b32 s17, s48, 6
        s_add_u32 s17, s17, s50
        s_mul_i32 s51, s17, 1280
        """)
        self.common_srds()
        A("""
        buffer_load_dwordx4 v[20:23], v13, s[36:39], s51 offen
        buffer_load_dwordx4 v[24:27], v13, s[36:39], s51 offen offset:512
        s_mov_b32 exec_lo, 0xffff
        s_mov_b32 exec_hi, 0xffff
        buffer_load_dwordx4 v[28:31], v13, s[36:39], s51 offen offset:1024
        s_mov_b64 exec, -1
        """)
        if self.touchp:
            A(f"""s_cmp_eq_u32 s16, 3
            s_cbranch_scc0 L_g_ntp
            v_mul_u32_u24 v64, {WS_SIZE // 64}, v0
            buffer_load_dword v65, v64, s[44:47], 0 offen
            s_mov_b32 s40, s84
            s_mov_b32 s41, s85
            s_mov_b32 s42, {2048*1280}
            s_mov_b32 s43, 0x20000
            v_mul_u32_u24 v64, 40960, v0
            buffer_load_dword v66, v64, s[40:43], 0 offen
            L_g_ntp:""".replace("v64", "v244").replace("v65", "v245").replace("v66", "v246"))
        self.stamp("G", "gl")
        self.g_consts()
        self.cols(); self.roles()
        self.g_addr_setup()
        for i in range(80): A(f"v_mov_b32 v{self.ACC+i}, 0")
        self.get_tag()
        self.stamp("G", "preBa")
        A("s_barrier")
        self.stamp("G", "Ba")
        A("s_waitcnt vmcnt(0)")
        self.stamp("G", "xland")
        lo16 = "s_mov_b32 exec_lo, 0xffff\ns_mov_b32 exec_hi, 0xffff"
        A("v_mov_b32 v40, 0x3f803f80\nv_mov_b32 v41, 0xbf803f80")
        for k in range(6): A(f"v_mov_b32 v{56+k}, 0")
        def dots(d):
            k = 3*(d & 1)
            A(f"v_dot2c_f32_bf16 v{56+k}, v{20+d}, v40\nv_dot2c_f32_bf16 v{57+k}, v{20+d}, v41\nv_dot2c_f32_bf16 v{58+k}, v{20+d}, v{20+d}")
        for d in range(8): dots(d)
        A(lo16)
        for d in range(8, 12): dots(d)
        A("s_mov_b64 exec, -1\ns_nop 2\nv_add_f32 v56, v56, v59\nv_add_f32 v57, v57, v60\nv_add_f32 v59, v58, v61")
        regs = [56, 57, 59]; t = 60
        for mode in ("quad_perm:[1,0,3,2]", "quad_perm:[2,3,0,1]", "row_half_mirror", "row_mirror"):
            for r in regs: A(f"v_add_f32_dpp v{r}, v{r}, v{r} {mode} row_mask:0xf bank_mask:0xf")
        for k, r in enumerate(regs): A(f"v_mov_b32 v{t+k}, v{r}")
        A("s_nop 1")
        for k, r in enumerate(regs): A(f"v_permlane16_swap_b32 v{r}, v{t+k}")
        for k, r in enumerate(regs): A(f"v_add_f32 v{r}, v{r}, v{t+k}")
        A("""v_mul_f32 v58, 0x3acccccd, v56 ; mean
        v_fma_f32 v59, -v58, v56, v59
        v_max_f32 v59, 0, v59""")
        A(f"""
        v_mul_f32 v59, 0x3acccccd, v59          ; var
        v_cvt_pk_bf16_f32 v59, v59, v59
        v_lshlrev_b32 v59, 16, v59
        v_add_f32 v59, 0x3727c5ac, v59
        v_cvt_pk_bf16_f32 v59, v59, v59
        v_lshlrev_b32 v59, 16, v59
        v_sqrt_f32 v59, v59
        v_mov_b32 v35, s14
        v_cvt_pk_bf16_f32 v32, -v58, v59        ; (-m, sd)
        v_and_b32 v59, 0xffff0000, v32
        v_rcp_f32 v33, v59                      ; r
        s_lshl_b32 s17, s16, 1
        v_mul_f32 v34, v33, v57                 ; z320
        v_lshrrev_b32 v36, 5, v0
        v_add_u32 v36, s17, v36                 ; i = 2g + hh
        v_lshlrev_b32 v37, 4, v36
        v_add_u32 v37, {L_SYNC + SY_ST}, v37
        s_mov_b32 exec_lo, 1
        s_mov_b32 exec_hi, 1
        ds_write_b128 v37, v[32:35]
        s_mov_b64 exec, -1
        """)
        A("s_waitcnt lgkmcnt(0)")

    XA = 2; WA = 4; FR = [16, 64]; ACC = 112; CSA = 192; SEL = 204
    MF = "v_mfma_f32_16x16x32_bf16"
    def g_addr_setup(self):
        XA, WA = self.XA, self.WA; A = self.A
        A(f"""
        s_lshl_b32 s17, s16, 12
        v_and_b32 v60, 15, v0
        v_lshrrev_b32 v61, 4, v0          ; G
        v_lshrrev_b32 v62, 1, v60
        v_xor_b32 v62, v62, v61
        v_lshlrev_b32 v62, 4, v62
        v_lshl_add_u32 v62, v60, 7, v62
        v_add_u32 v{XA}, s17, v62
        v_xor_b32 v{XA+1}, 64, v{XA}
        v_bfe_u32 v60, v0, 2, 2           ; r4
        v_lshl_add_u32 v62, v61, 3, v60   ; 8G + r4
        v_and_b32 v61, 1, v61
        v_lshlrev_b32 v61, 5, v61
        v_and_b32 v63, 3, v0
        v_lshl_add_u32 v61, v63, 3, v61   ; (G&1)*32 + cq*8
        v_lshl_add_u32 v{WA+8}, v62, 6, v61
        v_add_u32 v{WA+8}, 32768, v{WA+8}
        v_xor_b32 v{WA+9}, 32, v{WA+8}
        v_lshl_add_u32 v62, v62, 8, v61
        v_lshl_add_u32 v62, v60, 6, v62
        v_add_u32 v62, 16384, v62
        """)
        for j in range(8): A(f"v_xor_b32 v{WA+j}, {32*j}, v62")
        A(f"""v_and_b32 v60, 15, v0
        s_lshl_b32 s17, s16, 8
        s_add_u32 s17, s17, {L_STAT}
        v_lshl_add_u32 v240, v60, 3, s17
        v_lshlrev_b32 v241, 3, v0
        v_add_u32 v241, {L_CORR}, v241
        v_mov_b32 v242, {L_SYNC}
        v_mov_b32 v243, 1
        v_lshrrev_b32 v60, 4, v0
        v_cmp_eq_u32 s[66:67], 0, v60
        v_cmp_eq_u32 s[68:69], 1, v60""")
        for i in range(192, 240):
            if i & 2: A(f"v_mov_b32 v{i}, 0")
    def reads(self, u, T, off):
        f = self.FR[u]; L = [f"ds_read_b128 {vr(f+4*jt,4)}, v{self.XA+u} offset:{off + 2048*jt}" for jt in range(2)]
        for j in range(2*T):
            for t in range(2):
                o = off + (8192*u + 1024*t if j < 8 else 2048*u + 256*t)
                L.append(f"ds_read_b64_tr_b16 {vr(f+8+4*j+2*t,2)}, v{self.WA+j} offset:{o}")
        return L
    def mfmas(self, u, T):
        f = self.FR[u]
        return [f"{self.MF} {vr(self.ACC+8*j+4*jt,4)}, {vr(f+8+4*j,4)}, {vr(f+4*jt,4)}, {vr(self.ACC+8*j+4*jt,4)}" for j in range(2*T) for jt in range(2)]
    @staticmethod
    def interleave(ms, rs):
        out = []; n = len(ms); k = 0
        for i, m in enumerate(ms):
            out.append(m)
            cnt = (len(rs) - k + (n - i) - 1) // (n - i)
            out += rs[k:k+cnt]; k += cnt
        return out
    def csm(self, u, T, wv):
        f = self.FR[u]; c = self.CSA
        L = [f"{self.MF} {vr(c+4*j,4)}, {vr(self.SEL,4)}, {vr(f+8+4*j,4)}, {vr(c+4*j,4)}" for j in range(2)]
        if T == 5 and (wv >> 1) == u:
            L.append(f"{self.MF} {vr(c+8,4)}, {vr(self.SEL,4)}, {vr(f+8+4*(8+(wv&1)),4)}, {vr(c+8,4)}")
        return L
    def g_main(self, tag, T):
        A = self.A
        A.label(f"L_g{tag}")
        t = tag
        A(f"s_mov_b32 s18, 0\ns_mov_b32 s17, {2*SLOT}")
        A("s_barrier")
        self.stamp("G", "B0")
        A("\n".join(self.reads(0, T, 0)))
        A(".p2align 3")
        A.label(f"L_g{t}_loop")
        def step(u, off, pre=None):
            ms = self.mfmas(u, T)
            A("s_waitcnt lgkmcnt(0)\ns_nop 0")
            if pre:
                for p_ in pre: A(ms.pop(0)); A(p_)
            k = len(ms) - self.rtail
            A("\n".join(self.interleave(ms[:k], self.reads(u ^ 1, T, off)) + ms[k:]))
        step(0, 0)
        step(1, SLOT, ("s_add_u32 s18, s18, 1\ns_cmp_eq_u32 s18, 5", "s_barrier\ns_nop 0"))
        adv = [f"v_add_u32 v{2+i}, s17, v{2+i}" for i in range(2 + 2*T)]
        ms = self.mfmas(0, T); k = len(ms) - self.rtail
        A("s_waitcnt lgkmcnt(0)\ns_nop 0")
        A("\n".join(self.interleave(ms[:k], self.reads(1, T, SLOT)) + self.interleave(ms[k:], adv)))
        step(1, 0, (f"s_cbranch_scc1 L_g{t}_fin\ns_sub_u32 s17, 0, s17", "s_barrier\ns_nop 0"))
        A(f"s_branch L_g{t}_loop")
        A.label(f"L_g{tag}_fin")
        self.stamp("G", "fin")
        fill = [f"s_mov_b64 exec, 1\nds_add_u32 v242, v243 offset:{SY_S1}\ns_mov_b64 exec, -1", "ds_read_b64 v[248:249], v240", "ds_read_b64 v[250:251], v240 offset:128"]
        fill += [f"ds_read_b64 {vr(192+4*j,2)}, v241 offset:{512*j}" for j in range(2*T)]
        ms = self.mfmas(1, T)[1:]
        A("\n".join(self.interleave(ms[:-6], fill)))
        sel = [f"s_waitcnt lgkmcnt({2*T})"]
        for jt in range(2): sel += [f"v_cndmask_b32 v{233+4*jt}, 0, v{248+2*jt}, s[66:67]", f"v_cndmask_b32 v{232+4*jt}, v{233+4*jt}, v{249+2*jt}, s[68:69]"]
        A("\n".join(self.interleave(ms[-6:-1], sel) + ms[-1:]))
        A("s_waitcnt lgkmcnt(0)")
        for j in range(2*T):
            for jt in range(2): A(f"{self.MF} {vr(self.ACC+8*j+4*jt,4)}, {vr(192+4*j,4)}, {vr(232+4*jt,4)}, {vr(self.ACC+8*j+4*jt,4)}")
        self.stamp("G", "B10")
        if self.p1only: self.dump_stamps("G"); A("s_endpgm")
    def g_main_d(self):
        A = self.A; XA = self.XA; WU = 4; XB = 6; WB = 8; ACC = self.ACC
        RAW = [192, 208]; XF = [16, 24]; WF = [32, 72]; T = 224
        A.label("L_gD")
        A(f"""s_lshl_b32 s17, s16, 12
        s_sub_u32 s17, 16384, s17""")
        for u in range(2): A(f"v_add_u32 v{WU+u}, s17, v{XA+u}\nv_add_u32 v{XB+u}, {DS}, v{XA+u}\nv_add_u32 v{WB+u}, {DS}, v{WU+u}")
        A(f"""s_bitcmp1_b32 s25, 0
        s_cselect_b32 s48, -1.0, 1.0
        s_mov_b32 s18, 0
        s_mov_b32 s49, 0xffff0000
        s_mov_b32 s50, 0
        s_mov_b32 s51, 1
        s_barrier""")
        self.stamp("G", "B0")
        raw = lambda u: [f"ds_read_b128 {vr(RAW[u]+8*jt+4*h,4)}, v{(XB if h else XA)+u} offset:{2048*jt}" for jt in range(2) for h in range(2)]
        wrd = lambda u: [f"ds_read_b128 {vr(WF[u]+4*j,4)}, v{(WU if j < 6 else WB)+u} offset:{2048*(j if j < 6 else j-6)}" for j in range(10)]
        def fold(u):
            out = []
            for jt in range(2):
                r = RAW[u] + 8*jt; x = XF[u] + 4*jt
                for h in range(2):
                    d, e = 2*h, 2*h+1; t = T + 8*h; w = t + 4
                    out += [f"v_lshlrev_b32 v{t}, 16, v{r+d}", f"v_lshlrev_b32 v{t+2}, 16, v{r+4+d}", f"v_and_b32 v{t+1}, s49, v{r+d}", f"v_and_b32 v{t+3}, s49, v{r+4+d}",
                          f"v_lshlrev_b32 v{w}, 16, v{r+e}", f"v_lshlrev_b32 v{w+2}, 16, v{r+4+e}", f"v_fmac_f32 v{t}, s48, v{t+2}", f"v_fmac_f32 v{t+1}, s48, v{t+3}",
                          f"v_and_b32 v{w+1}, s49, v{r+e}", f"v_and_b32 v{w+3}, s49, v{r+4+e}", f"v_fmac_f32 v{w}, s48, v{w+2}", f"v_fmac_f32 v{w+1}, s48, v{w+3}",
                          f"v_cvt_pk_bf16_f32 v{x+d}, v{t}, v{t+1}", f"v_cvt_pk_bf16_f32 v{x+e}, v{w}, v{w+1}"]
            return out
        mf = lambda u: [f"{self.MF} {vr(ACC+8*j+4*jt,4)}, {vr(XF[u]+4*jt,4)}, {vr(WF[u]+4*j,4)}, {vr(ACC+8*j+4*jt,4)}" for j in range(10) for jt in range(2)]
        A("\n".join(raw(0) + raw(1) + wrd(0)))
        A("s_waitcnt lgkmcnt(14)")
        A("\n".join(fold(0)))
        A("s_barrier")
        A.label("L_gD_loop")
        A("s_waitcnt lgkmcnt(0)\ns_nop 0")
        sal = f"""s_add_u32 s18, s18, 1
        s_add_u32 s50, s50, 2
        s_cmp_ge_u32 s50, 5
        s_mov_b32 s52, {2*DS}
        s_cselect_b32 s52, {-3*DS & 0xffffffff:#x}, s52
        s_cselect_b32 s17, 5, 0
        s_sub_u32 s50, s50, s17
        s_add_u32 s51, s51, 2
        s_cmp_ge_u32 s51, 5
        s_mov_b32 s53, {2*DS}
        s_cselect_b32 s53, {-3*DS & 0xffffffff:#x}, s53
        s_cselect_b32 s17, 5, 0
        s_sub_u32 s51, s51, s17"""
        A("\n".join(self.interleave(mf(0), wrd(1) + [sal] + fold(1))))
        A("s_waitcnt lgkmcnt(0)\ns_cmp_eq_u32 s18, 5\ns_cbranch_scc1 L_gD_last")
        m1 = mf(1)
        A(m1[0])
        for i in range(4): A(f"v_add_u32 v{2+i}, s52, v{2+i}\nv_add_u32 v{XB+i}, s53, v{XB+i}")
        A(m1[1])
        A("s_barrier")
        A("\n".join(self.interleave(m1[2:10], raw(0) + raw(1) + wrd(0))))
        A("s_waitcnt lgkmcnt(14)")
        A("\n".join(self.interleave(m1[10:], fold(0))))
        A("s_branch L_gD_loop")
        A.label("L_gD_last")
        A(f"""s_mov_b64 exec, 1
        ds_add_u32 v242, v243 offset:{SY_S1}
        s_mov_b64 exec, -1
        s_cmp_eq_u32 s29, 6
        s_cselect_b32 s17, 0x4420, 0""")
        fill = [f"v_mov_b32 v{i}, 0" for i in range(193, 204) if i != 196] + ["v_writelane_b32 v200, s17, 0", "ds_read_b32 v192, v240", "ds_read_b32 v196, v240 offset:128"]
        A("\n".join(self.interleave(m1, fill)))
        A.label("L_gD_fin")
        A(f"""s_waitcnt lgkmcnt(0)
        {self.MF} {vr(ACC,4)}, v[192:195], v[200:203], {vr(ACC,4)}
        {self.MF} {vr(ACC+4,4)}, v[196:199], v[200:203], {vr(ACC+4,4)}""")
        self.stamp("G", "B10")
        if self.p1only: self.dump_stamps("G"); A("s_endpgm")
    def g_epi_h(self, T):
        A = self.A; ACC = self.ACC
        A(f"""
        v_lshlrev_b32 v11, 4, v0
        s_lshl_b32 s17, s26, 2
        s_add_u32 s17, s17, s16
        s_mul_i32 s17, s17, {HC}
        s_add_u32 s17, s17, {W_H}
        s_cmp_lt_u32 s28, 42
        s_cselect_b32 s27, 12, -30
        s_cmp_lt_u32 s28, 32
        s_cselect_b32 s27, -20, s27
        s_cmp_lt_u32 s28, 20
        s_cselect_b32 s27, 24, s27
        s_lshl_b32 s27, s27, 11
        s_add_u32 s17, s17, s27
        s_lshl_b32 s18, s30, 11
        s_add_u32 s18, s18, s17        ; tile 4
        s_lshl_b32 s19, s28, 11
        s_add_u32 s17, s17, s19        ; tile 0
        s_add_u32 s19, s17, 4096
        .p2align 3""")
        for m in range(T):
            o = 68 + 8*(m & 1); t = 84
            src = [ACC + 16*m + 8*(p >> 1 & 1) + 4*(p >> 2) + 2*(p & 1) for p in range(8)]
            for p in range(8):
                tp = t + 2*(p & 3)
                A(f"v_max_f32 v{tp}, 0, v{src[p]}\nv_max_f32 v{tp+1}, 0, v{src[p]+1}")
                if p >= 1:
                    q = p-1; tq = t + 2*(q & 3)
                    A(f"v_pk_mul_f32 {vr(tq,2)}, {vr(tq,2)}, {vr(src[q],2)}")
                if p >= 2:
                    q = p-2; tq = t + 2*(q & 3)
                    A(f"v_cvt_pk_bf16_f32 v{o+q}, v{tq}, v{tq+1}")
            A(f"v_pk_mul_f32 {vr(t+6,2)}, {vr(t+6,2)}, {vr(src[7],2)}")
            A(f"v_cvt_pk_bf16_f32 v{o+6}, v{t+4}, v{t+5}\nv_cvt_pk_bf16_f32 v{o+7}, v{t+6}, v{t+7}")
            so = ["s17", "s17", "s19", "s19", "s18"][m]; io = 2048*(m & 1) if m < 4 else 0
            A(f"buffer_store_dwordx4 {vr(o,4)}, v11, s[44:47], {so} offen offset:{io} sc1\nbuffer_store_dwordx4 {vr(o+4,4)}, v11, s[44:47], {so} offen offset:{io+1024} sc1")
        A(f"v_mov_b32 v10, {L_SYNC}")
        self.stamp("G", "zw")
        self.lds_inc(10, SY_ZF, 13)
    def g_epi_z(self):
        A = self.A; ACC = self.ACC
        A(f"""
        v_lshrrev_b32 v12, 4, v0
        s_lshl_b32 s17, s16, 7
        s_add_u32 s17, s17, {L_STAT + 1024}
        v_lshl_add_u32 v11, v12, 4, s17
        ds_read_b128 v[40:43], v11
        ds_read_b128 v[44:47], v11 offset:64
        v_and_b32 v11, 15, v0
        v_mul_u32_u24 v11, {ZROW}, v11
        v_lshl_add_u32 v11, v12, 6, v11
        s_lshl_b32 s17, s16, 4
        s_add_u32 s17, s17, {ZB}
        v_add_u32 v11, s17, v11
        v_mov_b32 v10, {L_SYNC}""")
        self.lds_spin(10, SY_S1, 4, 13)
        A(".p2align 3")
        for k, j in enumerate((1, 2, 3, 4, 5, 6, 7, 8, 9, 0)):
            a = ACC + 8*j; o = 56 + 4*(k & 3)
            for p in range(4): A(f"v_pk_mul_f32 {vr(a+2*p,2)}, {vr(a+2*p,2)}, {vr(40+2*p,2)}")
            for p in range(4): A(f"v_cvt_pk_bf16_f32 v{o+p}, v{a+2*p}, v{a+2*p+1}")
            A(f"ds_write_b128 v11, {vr(o,4)} offset:{j*16*ZROW}")
        A("s_waitcnt lgkmcnt(0)")
        self.lds_inc(10, SY_ZW, 13)
        A(f"""
        v_lshrrev_b32 v12, 4, v0
        s_mul_i32 s17, s16, 40
        v_add_u32 v13, s17, v12
        v_mul_u32_u24 v11, {ZROW}, v13
        v_and_b32 v14, 15, v0
        v_lshl_add_u32 v11, v14, 4, v11
        v_add_u32 v11, {ZB}, v11
        v_lshlrev_b32 v12, 13, v12
        v_lshl_add_u32 v12, v14, 4, v12
        s_mul_i32 s18, s23, {PZ}
        s_add_u32 s18, s18, {W_Z}
        s_lshl_b32 s48, s26, 8
        s_add_u32 s18, s18, s48
        s_and_b32 s48, s25, 1
        s_lshl_b32 s48, s48, 12
        s_lshl_b32 s49, s17, 13
        s_add_u32 s48, s48, s49
        s_add_u32 s52, s48, s18
        s_cmp_eq_u32 s29, 6
        s_cbranch_scc0 L_g_no320
        s_cmp_eq_u32 s16, 3
        s_cbranch_scc0 L_g_no320
        v_and_b32 v20, 3, v0
        v_lshlrev_b32 v20, 7, v20
        v_bfe_u32 v21, v0, 2, 2
        v_lshl_add_u32 v20, v21, 4, v20
        v_add_u32 v20, {L_STAT + 1536}, v20
        ds_read_b128 v[24:27], v20
        ds_read_b128 v[28:31], v20 offset:64
        s_add_u32 s50, s18, {320*4096}
        s_waitcnt lgkmcnt(0)
        v_cvt_pk_bf16_f32 v24, v24, v25
        v_cvt_pk_bf16_f32 v25, v26, v27
        v_cvt_pk_bf16_f32 v26, v28, v29
        v_cvt_pk_bf16_f32 v27, v30, v31
        s_mov_b64 exec, 0xffff
        buffer_store_dwordx4 v[24:27], v12, s[44:47], s50 offen sc1
        s_mov_b64 exec, -1
        L_g_no320:""")
        self.lds_spin(10, SY_ZW, 4, 13)
        self.stamp("G", "zw")
        for n in range(10): A(f"ds_read_b128 {vr(112+4*n,4)}, v11 offset:{4*n*ZROW}")
        for n in range(10):
            A(f"""s_waitcnt lgkmcnt({9-n})
            buffer_store_dwordx4 {vr(112+4*n,4)}, v12, s[44:47], s52 offen sc1
            s_add_u32 s52, s52, 32768""")
        self.lds_inc(10, SY_ZF, 13)

    HB = [4, 20]; WR = 36; AC2 = 176
    def g_phase2(self):
        A = self.A; WR, AC2 = self.WR, self.AC2
        A.label("L_g_issued")
        self.stamp("G", "issued")
        if self.swap: A("s_xor_b32 s16, s16, 2")
        A(f"""
        s_lshl_b32 s18, s16, 3
        s_lshr_b32 s17, {KS0[0] | KS0[1] << 8 | KS0[2] << 16 | KS0[3] << 24:#x}, s18
        s_and_b32 s57, s17, 0xff
        s_mul_i32 s48, s16, 6
        s_sub_u32 s57, s57, s48
        s_sub_u32 s57, s57, 6
        s_lshl_b32 s58, s57, 11
        s_mul_i32 s57, s57, 40960
        s_mul_i32 s49, s48, 40960
        s_mul_i32 s17, s15, 5120
        s_add_u32 s49, s49, s17
        s_add_u32 s49, s49, {W_W2F}            ; w2f soffset
        s_add_u32 s51, s49, 4096
        s_lshl_b32 s19, s48, 11
        s_lshl_b32 s17, s31, 10
        s_add_u32 s19, s19, s17
        s_add_u32 s19, s19, {W_H}
        s_lshl_b32 s18, s20, 2
        v_lshlrev_b32 v1, 4, v0""")
        for rl in range(4):
            A(f"s_add_u32 s17, s16, {rl}\ns_and_b32 s17, s17, 3\ns_add_u32 s17, s17, s18\ns_mul_i32 s17, s17, {HC}\ns_add_u32 s{52+rl}, s17, s19")
        self.lw(48, 16)
        A(f"""v_mov_b32 v5, s14
        v_lshlrev_b32 v6, 2, v0
        s_lshl_b32 s56, s26, 11
        s_add_u32 s56, s56, {W_F1}
        s_lshl_b32 s50, s29, 7
        s_add_u32 s50, s50, s56
        v_add_u32 v2, s48, v1
        v_mov_b32 v3, v10""")
        def ackflag(n):
            l = self.lab("nf")
            A(f"v_mov_b32 v4, 1\ns_waitcnt vmcnt({n})")
            self.stamp("G", "acked")
            A(f"""s_mov_b64 exec, 1
            ds_add_rtn_u32 v4, v3, v4 offset:{SY_ACK}
            s_waitcnt lgkmcnt(0)
            v_readfirstlane_b32 s17, v4
            s_cmp_eq_u32 s17, 3
            s_cbranch_scc0 {l}
            s_mov_b32 exec_lo, -1
            buffer_store_dword v5, v6, s[44:47], s50 offen sc1
            ds_write_b32 v3, v3 offset:{SY_FL}
            {l}:
            s_mov_b64 exec, -1""")
        R = [WR + 20*i for i in range(7)]
        wbuf = {}; hbuf = {}; q = []
        def wl(s):
            L = [f"buffer_load_dwordx4 {vr(wbuf[s]+4*nt,4)}, v1, s[44:47], {'s51' if nt == 4 else 's49'} offen offset:{(nt&3)*1024} sc1" for nt in range(5)]
            L[-1] += "\ns_add_u32 s49, s49, 40960\ns_add_u32 s51, s51, 40960"
            if s == 5: L[-1] += "\ns_add_u32 s49, s49, s57\ns_add_u32 s51, s51, s57"
            q.extend([("w", s)]*5); return L
        def hl(s):
            L = [f"buffer_load_dwordx4 {vr(hbuf[s]+4*rl,4)}, v1, s[44:47], s{52+rl} offen offset:{(s&1)*2048} sc1" for rl in range(4)]
            if s & 1: L[-1] += "\n" + "\n".join(f"s_add_u32 s{52+rl}, s{52+rl}, 4096" for rl in range(4))
            if s == 5: L[-1] += "\n" + "\n".join(f"s_add_u32 s{52+rl}, s{52+rl}, s58" for rl in range(4))
            if s == 6: L[0] = "SPIN2\n" + L[0]
            q.extend([("h", s)]*4); return L
        npw = self.npw; ke = self.kearly
        for s in range(npw): wbuf[s] = R[s]
        WL = ["\n".join(wl(s)) for s in range(npw)]
        ns = self.nstamp["G"]
        if ke:
            A("s_cmp_lt_u32 s25, 3\ns_cbranch_scc0 L_g_gated")
            for s in range(ke):
                if s == self.wgate5: self.lds_inc(3, SY_WI, 4)
                A(WL[s])
            ackflag(5*ke)
            for s in range(ke, npw):
                if s == self.wgate5: self.lds_inc(3, SY_WI, 4)
                A(WL[s])
            if self.wgate5 >= npw: self.lds_inc(3, SY_WI, 4)
            A("s_branch L_g_wdone\nL_g_gated:")
        self.nstamp["G"] = ns
        ackflag(0)
        self.lds_spin(3, SY_FL, 1, 4)
        A("s_cmp_eq_u32 s34, 1\ns_cbranch_scc0 L_g_fwok")
        self.lds_spin(3, SY_FW, 1, 4)
        A("L_g_fwok:")
        for s in range(npw):
            if s == self.wgate: self.lds_inc(3, SY_WI, 4)
            A(WL[s])
        if self.wgate >= npw: self.lds_inc(3, SY_WI, 4)
        A("L_g_wdone:")
        self.stamp("G", "w2iss")
        self.lds_spin(3, SY_H, 1, 4)
        self.stamp("G", "Hok")
        init = [4, 20] + R[npw:]
        nh = len(init)
        for s in range(nh): hbuf[s] = init[s]; A("\n".join(hl(s)))
        free = []; nxh = nh; nxw = npw; F = None
        def spin(off, dyn):
            l = self.lab("sp"); d = l + "d"
            pre = "s_lshl_b32 s17, s16, 2\nv_add_u32 v0, s17, v3" if dyn else ""
            A(f"""{pre}
            s_mov_b32 s19, 0
            {l}:
            ds_read_b32 v0, v{0 if dyn else 3} offset:{off}
            s_waitcnt lgkmcnt(0)
            v_readfirstlane_b32 s27, v0
            {"v_add_u32 v0, s17, v3" if dyn else ""}
            {self.spin_guard(d)}
            s_cmp_ge_u32 s27, 1
            s_cbranch_scc0 {l}
            {d}:
            v_lshrrev_b32 v0, 4, v1
            .p2align 3""")
        def head(s):
            need = [("h", s)] + ([("w", s)] if s < NREG else [])
            last = max(i for i, e in enumerate(q) if e in need)
            A(f"s_waitcnt vmcnt({len(q)-1-last})" + (" lgkmcnt(0)" if s >= NREG else ""))
        mm = lambda s, rl, nt: f"{self.MF} {vr(AC2+4*(5*rl+nt),4)}, {vr(wbuf[s]+4*nt,4)}, {vr(hbuf[s]+4*rl,4)}, {'0' if s == 0 else vr(AC2+4*(5*rl+nt),4)}"
        def laststep(s):
            head(s); A(".p2align 3")
            wr = lambda rl: [f"ds_write_b128 v2, {vr(AC2+4*(5*rl+nt),4)} offset:{(rl-1)*5120 + nt*1024}" for nt in range(5)]
            A("\n".join([mm(s, 1, nt) for nt in range(5)] + [mm(s, 2, nt) for nt in range(5)] + [mm(s, 3, nt) for nt in range(3)]))
            A("\n".join(self.interleave([mm(s, 3, 3), mm(s, 3, 4)] + [mm(s, 0, nt) for nt in range(3)], wr(1))))
            A("\n".join(self.interleave([mm(s, 0, 3), mm(s, 0, 4)], wr(2)) + wr(3)))
        def addr_fill(F):
            L = []
            for rl in range(1, 4):
                L.append(f"s_sub_u32 s17, s16, {rl}\ns_and_b32 s17, s17, 3\ns_mul_i32 s18, s17, 35840\ns_cmp_ge_u32 s17, 2\ns_cselect_b32 s27, 2048, 0\ns_add_u32 s18, s18, s27\ns_cmp_eq_u32 s17, 3\ns_cselect_b32 s18, {LW[3]}, s18\ns_add_u32 s18, s18, {(rl-1)*5120}\nv_add_u32 v{F+rl-1}, s18, v1")
            t = F + 12
            L += f"""v_and_b32 v{t}, 15, v0
            v_lshrrev_b32 v{t+1}, 4, v0
            s_lshl_b32 s17, s16, 4
            v_add_u32 v{F+3}, s17, v{t}
            v_mul_u32_u24 v{F+3}, {PROW}, v{F+3}
            v_bfe_u32 v{t+2}, v{t}, 1, 2
            v_xor_b32 v{t+2}, v{t+2}, v{t+1}
            v_lshl_add_u32 v{F+3}, v{t+2}, 4, v{F+3}
            v_add_u32 v{F+3}, {L_P}, v{F+3}
            s_lshl_b32 s17, s16, 6
            s_add_u32 s17, s17, {L_SYNC + 512}
            v_lshl_add_u32 v{t+2}, v{t}, 2, s17
            ds_read_b32 v{F+4}, v{t+2}
            s_add_u32 s48, s48, 15360
            v_mul_u32_u24 v{F+5}, 176, v{t}
            v_lshl_add_u32 v{F+5}, v{t+1}, 3, v{F+5}
            v_add_u32 v{F+5}, s48, v{F+5}""".split("\n")
            L2 = []
            for n in range(3):
                L2 += f"""v_add_u32 v{t}, {64*n}, v0
                v_mul_u32_u24 v{t+1}, 6554, v{t}
                v_lshrrev_b32 v{t+1}, 16, v{t+1}
                v_mul_u32_u24 v{t+2}, 10, v{t+1}
                v_sub_u32 v{t+2}, v{t}, v{t+2}
                v_lshlrev_b32 v{t+2}, 4, v{t+2}
                v_mul_u32_u24 v{t+3}, 176, v{t+1}
                v_add3_u32 v{F+6+n}, v{t+3}, v{t+2}, s48
                v_mul_u32_u24 v{t+1}, 0x14000, v{t+1}
                v_add_u32 v{F+9+n}, v{t+1}, v{t+2}""".split("\n")
            L2.append(f"s_mov_b32 s40, s84\ns_mov_b32 s41, s85\ns_mov_b32 s42, {2048*1280}\ns_mov_b32 s43, 0x20000\ns_lshl_b32 s17, s31, 10\ns_lshl_b32 s18, s20, 2\ns_add_u32 s17, s17, s18\ns_add_u32 s17, s17, s16\ns_mul_i32 s17, s17, 1280\ns_mul_i32 s18, s15, 160\ns_add_u32 s49, s17, s18")
            return [x.strip() for x in L], [x.strip() for x in L2]
        for s in range(13):
            if s == 12: A("s_cmp_ge_u32 s16, 2\ns_cbranch_scc1 L_g_last12")
            head(s)
            self.stamp("G", f"S{s}")
            A(".p2align 3")
            ms = [mm(s, rl, nt) for rl in range(4) for nt in range(5)]
            if s >= 1: free += [wbuf[s-1], hbuf[s-1]]
            ot = []; vm = []; ex = []
            def take(big):
                c = [b_ for b_ in free if (b_ in R) or not big]
                c.sort(key=lambda b_: (b_ in R))
                if not c: return None
                free.remove(c[0]); return c[0]
            if s >= NREG-1:
                if s == NREG-1: ot.append("SPIN")
                wbuf[s+1] = take(True); assert wbuf[s+1] is not None
                ot += [f"ds_read_b128 {vr(wbuf[s+1]+4*nt,4)}, v2 offset:{(s+1-NREG)*5120 + nt*1024}" for nt in range(5)]
            if s == self.ystep: ot.append(f"ds_write_b32 v3, v3 offset:{SY_G}")
            if nxw < NREG and s >= 1:
                b_ = take(True)
                if b_ is not None: wbuf[nxw] = b_; vm += wl(nxw); nxw += 1
            while nxh < 14 and nxh <= s + self.la:
                b_ = take(False)
                if b_ is None: break
                hbuf[nxh] = b_; vm += hl(nxh); nxh += 1
            if s == 10: F = take(False); assert F is not None; AF = addr_fill(F); ex = AF[0]
            if s == 11: ex = AF[1]
            slots = [[] for _ in ms]
            for k, f in enumerate(ot): slots[min(len(ms)-1, 2*k)].append(f)
            for k, f in enumerate(vm): slots[min(len(ms)-1, 1 + (k*(len(ms)-1))//max(1, len(vm)))].append(f)
            for k, f in enumerate(ex): slots[(k*len(ms))//len(ex)].append(f)
            for m_, sl in zip(ms, slots):
                A(m_)
                for o in sl:
                    if o == "SPIN": spin(SY_W2, True)
                    elif o.startswith("SPIN2"): spin(SY_H2, False); A(o[6:])
                    else: A(o)
        assert nxh == 14 and nxw == NREG
        laststep(13)
        A("s_branch L_g_p2done\nL_g_last12:")
        laststep(12)
        A.label("L_g_p2done")
        self.stamp("G", "p2done")
        B = [b_ for b_ in [4, 20] + R if b_ != F][:5]
        T0 = [b_ for b_ in [4, 20] + R if b_ != F][5]
        A(f"v_mul_f32 v{F+4}, v{F+4}, v{F+4}\ns_waitcnt vmcnt(0) lgkmcnt(0)")
        self.lds_inc(3, SY_X, T0)
        self.lds_spin(3, SY_X, 4, T0, nosleep=True)
        self.stamp("G", "B15")
        for nt in range(5):
            for rl in range(1, 4): A(f"ds_read_b128 {vr(B[nt]+4*(rl-1),4)}, v{F+rl-1} offset:{nt*1024}")
        A(f"ds_read_b32 v{T0}, v3 offset:{SY_Y}")
        for nt in range(5):
            a = AC2 + 4*nt; b = B[nt]
            A(f"s_waitcnt lgkmcnt({3*(4-nt) + 1})")
            for h in range(2):
                A(f"v_pk_add_f32 {vr(a+2*h,2)}, {vr(a+2*h,2)}, {vr(b+2*h,2)}\nv_pk_add_f32 {vr(b+4+2*h,2)}, {vr(b+4+2*h,2)}, {vr(b+8+2*h,2)}")
            for h in range(2):
                A(f"v_pk_add_f32 {vr(a+2*h,2)}, {vr(a+2*h,2)}, {vr(b+4+2*h,2)}")
        A(f"s_waitcnt lgkmcnt(0)\nv_readfirstlane_b32 s27, v{T0}\ns_cmp_ge_u32 s27, 4\ns_cbranch_scc1 L_g_yok")
        self.lds_spin(3, SY_Y, 4, T0, nosleep=True)
        A.label("L_g_yok")
        for nt in range(5): A(f"ds_read_b128 {vr(B[nt]+12,4)}, v{F+3} offset:{nt*64}")
        for nt in range(5):
            a = AC2 + 4*nt; b = B[nt]
            A(f"s_waitcnt lgkmcnt(4)")
            for h in range(2):
                A(f"v_pk_fma_f32 {vr(a+2*h,2)}, {vr(a+2*h,2)}, {vr(F+4,2)}, {vr(b+12+2*h,2)} op_sel_hi:[1,0,1]")
            A(f"v_cvt_pk_bf16_f32 v{b}, v{a}, v{a+1}\nv_cvt_pk_bf16_f32 v{b+1}, v{a+2}, v{a+3}\nds_write_b64 v{F+5}, {vr(b,2)} offset:{nt*32}")
        A("s_waitcnt lgkmcnt(0)")
        for n in range(3): A(f"ds_read_b128 {vr(T0+4*n,4)}, v{F+6+n}")
        for n in range(3):
            if n == 2: A("s_mov_b32 exec_hi, 0")
            A(f"s_waitcnt lgkmcnt({2-n})\nbuffer_store_dwordx4 {vr(T0+4*n,4)}, v{F+9+n}, s[40:43], s49 offen{self.ofl}")
        A("s_mov_b64 exec, -1")
        self.stamp("G", "end")

    def first_chunk(self):
        A = self.A
        def pk(r):
            v = 0
            for i, x in enumerate(r): v |= x << (4*i)
            return v & 0xffffffff, v >> 32
        A("s_add_u32 s64, s24, s25\ns_and_b32 s64, s64, 3")
        for g in range(4):
            lo, hi = pk(self.sched[g])
            if g == 0: A(f"s_mov_b32 s56, {lo:#x}\ns_mov_b32 s57, {hi:#x}")
            else: A(f"s_cmp_eq_u32 s64, {g}\ns_cselect_b32 s56, {lo:#x}, s56\ns_cselect_b32 s57, {hi:#x}, s57")
        t = self.xsh[0] | self.xsh[1] << 4 | self.xsh[2] << 8 | self.xsh[3] << 12
        A(f"""s_lshl_b32 s27, s22, 2
        s_lshr_b32 s32, {t:#x}, s27
        s_and_b32 s32, s32, 15
        s_mul_i32 s27, s23, {self.xsh[4]}
        s_add_u32 s32, s32, s27""")
    def ld_setup(self):
        A = self.A
        A(f"""
        s_and_b32 s65, s16, 1
        v_lshrrev_b32 v11, 3, v0
        s_lshl_b32 s17, s65, 3
        v_add_u32 v12, s17, v11
        s_mov_b32 s18, 81920
        v_mul_lo_u32 v2, v12, s18
        v_and_b32 v13, 7, v0
        v_lshrrev_b32 v14, 4, v0
        v_xor_b32 v13, v13, v14
        s_lshl_b32 s17, s65, 2
        v_xor_b32 v13, s17, v13
        v_lshl_add_u32 v2, v13, 4, v2   ; x voffset
        s_mul_i32 s48, s26, 5120
        s_lshl_b32 s55, s65, 10
        s_cmp_eq_u32 s34, 1
        s_cbranch_scc1 L_ld_D
        v_mul_u32_u24 v3, 3456, v14
        v_bfe_u32 v13, v0, 2, 2
        v_xor_b32 v15, v13, v14
        v_lshl_add_u32 v3, v15, 6, v3
        v_and_b32 v13, 3, v0
        v_lshl_add_u32 v3, v13, 4, v3   ; w voffset
        v_lshrrev_b32 v14, 2, v0
        v_mul_u32_u24 v4, 3456, v14
        v_lshl_add_u32 v4, v13, 4, v4
        v_and_b32 v13, 32, v0
        v_xor_b32 v4, v4, v13
        v_xor_b32 v11, 32, v3
        s_mul_i32 s49, s65, {16*3456}""")
        self.cols()
        A(f"""s_lshl_b32 s52, s30, 6
        s_add_u32 s52, s49, s52
        s_lshl_b32 s17, s28, 6
        s_add_u32 s49, s49, s17""")
        self.first_chunk()
        self.common_srds()
        srd(A, 40, 6, 2211840)
        A("s_mov_b32 s10, 0")
    def ld_issue(self, T):
        A = self.A
        A(f"""
        s_and_b32 s4, s56, 15
        s_lshr_b64 s[56:57], s[56:57], 4
        s_add_u32 s4, s4, s32
        s_cmp_ge_u32 s4, 10
        s_cselect_b32 s27, 10, 0
        s_sub_u32 s4, s4, s27
        s_lshl_b32 s5, s4, 7
        s_add_u32 s5, s5, s48
        s_mul_i32 s6, s4, {64*3456}
        s_add_u32 s7, s6, s52
        s_add_u32 s6, s6, s49
        s_add_u32 s8, s10, s55
        s_lshl_b32 s9, s55, 2
        s_add_u32 s9, s9, s10""")
        for p in range(2):
            for i in range(4):
                A(f"s_add_u32 m0, s8, {p*2048 + i*4096 - i*1280}\n" + ("s_add_u32 s5, s5, 0x140000" if (p, i) == (1, 0) else "s_nop 0") + f"\nbuffer_load_dwordx4 v2, s[36:39], s5 offen offset:{i*1280} lds")
            for i in range(4):
                A(f"s_add_u32 m0, s9, {16384 + p*8192 + i*1024}")
                A("s_nop 0" if (p, i) == (0, 0) else f"s_add_u32 s6, s6, {(20 if i == 0 else 4)*3456}")
                A(f"buffer_load_dwordx4 v{3 if i < 2 else 11}, s[40:43], s6 offen lds")
            if T == 5: A(f"s_add_u32 m0, s8, {32768 + p*2048}\n" + ("s_nop 0" if p == 0 else f"s_add_u32 s7, s7, {32*3456}") + "\nbuffer_load_dwordx4 v4, s[40:43], s7 offen lds")
        A(f"""s_add_u32 s10, s10, {SLOT}
        s_cmp_eq_u32 s10, {NS*SLOT}
        s_cselect_b32 s10, 0, s10""")
        return 2*(4 + T)
    def ld_issue_d(self, odd):
        A = self.A
        A(f"""s_lshl_b32 s4, s56, 7
        s_add_u32 s5, s4, s48
        s_add_u32 s6, s4, s49
        s_add_u32 s8, s10, s55""")
        if odd: A(f"s_add_u32 s5, s5, 640\ns_add_u32 s6, s6, {3*81920}\ns_add_u32 s56, s56, 1\ns_cmp_eq_u32 s56, 5\ns_cselect_b32 s56, 0, s56")
        for p in range(2):
            for k in range(4):
                A(f"s_add_u32 m0, s8, {p*2048 + k*4096 - k*1280}\n" + ("s_add_u32 s5, s5, 0x140000" if (p, k) == (1, 0) else "s_nop 0") + f"\nbuffer_load_dwordx4 v2, s[36:39], s5 offen offset:{k*1280} lds")
        for k in range(4 if odd else 6):
            A(f"s_add_u32 m0, s8, {16384 + k*2048}")
            A("s_nop 0" if k == 0 else "s_add_u32 s6, s6, 40960")
            A("buffer_load_dwordx4 v3, s[40:43], s6 offen lds")
        A(f"s_add_u32 s10, s10, {DS}\ns_cmp_eq_u32 s10, {5*DS}\ns_cselect_b32 s10, 0, s10")
        return 12 if odd else 14
    def ld_common(self):
        self.roles()
        self.get_tag()
        self.A(f"v_mov_b32 v55, s14\nv_lshlrev_b32 v8, 4, v0\nv_lshlrev_b32 v7, 2, v0\nv_mov_b32 v12, {L_SYNC}\nv_lshlrev_b32 v47, 7, v0\nv_mov_b32 v25, 0")
    def loader(self):
        A = self.A
        self.ld_setup()
        A("s_cmp_eq_u32 s33, 0\ns_cbranch_scc1 L_ld_4")
        nl = self.nstamp["L"]
        for T in (5, 4):
            self.nstamp["L"] = nl
            A.label(f"L_ld_{T}")
            self.stamp("L", "pre-issue")
            n = self.ld_issue(T); self.stamp("L", "preBa"); A("s_barrier"); self.stamp("L", "Ba"); self.ld_issue(T)
            self.ld_common(); self.stamp("L", "rdy")
            A(f"s_waitcnt vmcnt({n})\ns_barrier")
            self.stamp("L", "B0")
            self.ld_issue(T)
            if T == 4:
                A("s_cmp_eq_u32 s2, 24\ns_cbranch_scc0 L_ld_nc"); self.l_consts(); A("L_ld_nc:")
            A(f"s_mov_b32 s11, 1\nL_ld_loop{T}:\ns_waitcnt vmcnt({n})\ns_barrier")
            self.ld_issue(T)
            A(f"s_add_u32 s11, s11, 1\ns_cmp_lt_u32 s11, 8\ns_cbranch_scc1 L_ld_loop{T}")
            A(f"s_waitcnt vmcnt({n})\ns_barrier\ns_waitcnt vmcnt(0)\ns_barrier")
            self.stamp("L", "B9")
            if T == 5: A("s_branch L_ld_w")
        A.label("L_ld_w")
        if self.p1only: self.dump_stamps("L"); A("s_endpgm")
        self.l_w2dma("a", 6)
        nb = self.npreb
        if nb:
            self.lds_spin(12, SY_S1, 4, 16)
            self.l_w2dma("b", nb, "p")
        self.lds_spin(12, SY_FL, 1, 16)
        self.l_w2dma("c" if nb else "b", self.h2at - nb, "q")
        self.l_w2dma("c", 7 - self.h2at, "g")
        A("L_l_g24:\ns_cmp_eq_u32 s2, 24\ns_cbranch_scc0 L_l_fft")
        self.l_consts2()
        A("s_branch L_l_fft")
    def loader_d(self):
        A = self.A
        A.label("L_ld_D")
        A("s_mov_b32 s33, 1")
        A("""v_mul_u32_u24 v11, 2560, v11
        v_lshl_add_u32 v3, v13, 4, v11
        s_and_b32 s17, s25, 1
        s_mul_i32 s17, s17, 1280
        s_mul_i32 s49, s65, 20480
        s_add_u32 s49, s49, s17
        s_add_u32 s56, s24, s22
        s_cmp_ge_u32 s56, 5
        s_cselect_b32 s17, 5, 0
        s_sub_u32 s56, s56, s17""")
        self.common_srds()
        A("s_cmp_eq_u32 s23, 0\ns_cselect_b32 s40, s8, s10\ns_cselect_b32 s41, s9, s11\ns_mov_b32 s42, 819200\ns_mov_b32 s43, 0x20000\ns_mov_b32 s10, 0")
        self.stamp("L", "pre-issue")
        I = self.ld_issue_d
        I(0); self.stamp("L", "preBa"); A("s_barrier"); self.stamp("L", "Ba"); I(1); I(0)
        self.ld_common(); self.stamp("L", "rdy")
        A("s_waitcnt vmcnt(14)\ns_barrier")
        self.stamp("L", "B0")
        I(1); self.l_consts()
        A("s_barrier")
        I(0)
        for m in range(2):
            A("s_waitcnt vmcnt(14)\ns_barrier")
            I(1); I(0)
        A("s_waitcnt vmcnt(14)\ns_barrier")
        I(1)
        A("s_waitcnt vmcnt(0)\ns_barrier")
        self.stamp("L", "B9")
        if self.p1only: self.dump_stamps("L"); A("s_endpgm")
        self.l_w2dma("b", self.nbd, "d")
        A("s_setprio 3")
        self.l_consts2()
        self.lds_spin(12, SY_FL, 1, 16)
        self.l_w2dma("c", 7 - self.nbd, "f")
        A("s_branch L_l_fft")
    F1 = 64; TC = 76; TS = 92; F2 = 108
    def g_consts(self):
        A = self.A; B = 64
        def trig(mul, base, k, c, sn):
            return f"v_fmamk_f32 v{B+9}, v{mul}, {fl(k)}, v{base}\nv_cos_f32 v{c}, v{B+9}\nv_sin_f32 v{sn}, v{B+9}"
        A(f"""v_and_b32 v{B}, 15, v0
        s_and_b32 s17, s16, 1
        s_lshl_b32 s18, s17, 4
        v_add_u32 v{B+2}, s18, v{B}
        v_cvt_f32_u32 v{B+2}, v{B+2}          ; t1
        v_lshlrev_b32 v{B}, 1, v{B}
        s_lshr_b32 s18, s16, 1
        v_add_u32 v{B}, s18, v{B}
        v_cvt_f32_u32 v{B}, v{B}              ; 2jl+T
        v_lshrrev_b32 v{B+1}, 4, v0
        v_lshlrev_b32 v{B+3}, 2, v{B+1}
        s_lshl_b32 s17, s17, 5
        v_add_u32 v{B+4}, s17, v{B+3}
        v_cvt_f32_u32 v{B+4}, v{B+4}          ; 4G + 32v
        v_cvt_f32_u32 v{B+3}, v{B+3}          ; 4G
        v_mul_f32 v{B+5}, {fl(1/64)}, v{B}
        v_mul_f32 v{B+6}, v{B+5}, v{B+4}
        v_lshlrev_b32 v{B+7}, 4, v0
        v_add_u32 v{B+7}, {L_CST}, v{B+7}""")
        for jj in range(8): A(trig(B+5, B+6, 16*(jj>>2) + (jj&3), 80+jj, 88+jj))
        A(f"s_lshl_b32 s17, s16, 11\nv_add_u32 v{B+8}, s17, v{B+7}")
        for p in range(4): A(f"v_cvt_pk_bf16_f32 v{96+p}, v{80+2*p}, v{81+2*p}\nv_cvt_pk_bf16_f32 v{100+p}, v{88+2*p}, v{89+2*p}")
        A(f"ds_write_b128 v{B+8}, v[96:99]\nds_write_b128 v{B+8}, v[100:103] offset:1024")
        A(f"""s_cmp_ge_u32 s16, 2
        s_cbranch_scc1 L_g_cf1
        v_mul_f32 v{B+5}, {fl(1/2048)}, v{B+2}
        v_mul_f32 v{B+6}, v{B+5}, v{B+3}
        s_lshl_b32 s17, s16, 13
        s_add_u32 s17, s17, 8192
        v_add_u32 v{B+8}, s17, v{B+7}""")
        for a4 in range(4):
            r = 80 + 8*(a4 & 1)
            for i in range(4): A(trig(B+5, B+6, 16*a4+i, r+i, r+4+i))
            A(f"s_nop 0\nds_write_b128 v{B+8}, {vr(r,4)} offset:{1024*a4}\nds_write_b128 v{B+8}, {vr(r+4,4)} offset:{4096+1024*a4}")
        A(f"""s_branch L_g_cdone
        L_g_cf1:
        v_mul_f32 v{B+5}, {fl(1/32)}, v{B+2}
        v_mul_f32 v{B+6}, v{B+5}, v{B+3}
        s_lshl_b32 s17, s16, 11
        s_add_u32 s17, s17, {24576 - 4096}
        v_add_u32 v{B+8}, s17, v{B+7}""")
        for jj, k in enumerate([0,1,2,3,16,17,18,19]): A(trig(B+5, B+6, k, 80+jj, 88+jj))
        A("s_nop 0")
        for p in range(4): A(f"v_cvt_pk_bf16_f32 v{96+p}, v{80+2*p}, v{81+2*p}\nv_cvt_pk_bf16_f32 v{100+p}, v{88+2*p}, v{89+2*p}")
        A(f"ds_write_b128 v{B+8}, v[96:99]\nds_write_b128 v{B+8}, v[100:103] offset:1024\nL_g_cdone:")
    def l_consts(self):
        A = self.A; F1, TC, TS, F2 = self.F1, self.TC, self.TS, self.F2
        A(f"""v_add_u32 v20, {L_CST}, v8
        s_and_b32 s17, s16, 1
        s_lshl_b32 s18, s17, 13
        v_add_u32 v21, s18, v20
        s_lshl_b32 s18, s17, 11
        v_add_u32 v22, s18, v20""")
        for g in range(4):
            A(f"ds_read_b128 {vr(F2+4*g,4)}, v20 offset:{2048*g}\nds_read_b128 {vr(F2+16+4*g,4)}, v20 offset:{2048*g+1024}")
        for a4 in range(4):
            A(f"ds_read_b128 {vr(TC+4*a4,4)}, v21 offset:{8192+1024*a4}\nds_read_b128 {vr(TS+4*a4,4)}, v21 offset:{12288+1024*a4}")
        A(f"ds_read_b128 {vr(F1,4)}, v22 offset:24576\nds_read_b128 {vr(F1+4,4)}, v22 offset:25600\ns_waitcnt lgkmcnt(0)")
    def l_consts2(self):
        A = self.A
        A("s_mov_b32 s17, 0x80000000\ns_mov_b32 s18, 0x80008000")
        for i in range(32): A(f"v_xor_b32 v{self.F2+32+i}, s17, v{self.F2+i}")
        for i in range(4): A(f"v_xor_b32 v{self.F1+8+i}, s18, v{self.F1+4+i}")
    def hp_setup(self):
        A = self.A
        A(f"v_lshlrev_b32 v7, 2, v0\nv_add_u32 v9, {L_SYNC}, v7\nv_mov_b32 v8, 0\nds_write_b32 v9, v8")
        self.common_srds()
        srd(A, 76, 62, 1728*2)
        A(f"""v_lshlrev_b32 v8, 4, v0
        v_lshlrev_b32 v7, 2, v0
        v_and_b32 v9, 7, v0
        v_lshlrev_b32 v9, 2, v9
        v_and_b32 v10, 32, v0
        v_add_u32 v9, v9, v10
        s_add_u32 s17, s28, s16
        s_lshl_b32 s17, s17, 6
        s_lshl_b32 s18, s30, 6
        s_cmp_eq_u32 s34, 1
        s_cselect_b32 s17, 0x40000000, s17
        s_cselect_b32 s18, 0x40000000, s18
        buffer_load_dword v13, v9, s[76:79], s17 offen
        buffer_load_dword v14, v9, s[76:79], s17 offen offset:128
        buffer_load_dword v15, v9, s[76:79], s18 offen""")
        srd(A, 72, 82, 640*2)
        A("s_mul_i32 s5, s15, 160\ns_lshl_b32 s17, s16, 6")
        for k in range(5):
            A(f"""v_add_u32 v20, s17, v0
            v_add_u32 v20, {128*k}, v20
            v_mul_u32_u24 v21, 6554, v20
            v_lshrrev_b32 v21, 16, v21
            v_mul_u32_u24 v22, 10, v21
            v_sub_u32 v22, v20, v22
            v_lshlrev_b32 v27, 4, v22
            buffer_load_dwordx4 {vr(176+8*k,4)}, v27, s[72:75], s5 offen
            v_lshlrev_b32 v22, 1, v22
            v_bfe_u32 v23, v21, 1, 2
            v_xor_b32 v22, v22, v23
            v_mul_u32_u24 v23, {PROW}, v21
            v_lshl_add_u32 v22, v22, 4, v23
            v_add_u32 v{245+k}, {L_P}, v22
            v_and_b32 v23, 15, v21
            v_mul_u32_u24 v23, 0x14000, v23
            v_lshrrev_b32 v21, 4, v21
            v_mul_u32_u24 v21, 1280, v21
            v_add3_u32 v{240+k}, v23, v21, v27""")
        if self.w2t:
            A(f"""s_cmp_lt_u32 s21, 64
            s_movk_i32 s17, 96
            s_cselect_b32 s17, s17, -64
            s_add_u32 s21, s21, s17        ; n: T4 0..95, D 96..159
            s_mul_i32 s60, s21, 6554
            s_lshr_b32 s60, s60, 16        ; j
            s_mul_i32 s18, s60, 10
            s_sub_u32 s61, s21, s18        ; cl
            s_lshl_b32 s0, s16, 4
            s_add_u32 s60, s0, s60
            s_mul_i32 s0, s60, 10
            s_add_u32 s0, s0, s61""")
            self.w2_task_addr(0, 48, 51, 5)
            A("s_add_u32 s0, s0, 320")
            self.w2_task_addr(0, 49, 53, 5)
            A(f"""s_cmp_lt_u32 s60, 22
            s_cselect_b32 s62, 1, 0
            s_mul_i32 s50, s16, {SLOT}
            s_add_u32 s50, s50, 32768
            s_add_u32 s52, s50, {2*SLOT}
            s_lshl_b32 s17, s16, 12
            s_add_u32 s17, s17, {5*DS}
            s_cmp_eq_u32 s34, 1
            s_cselect_b32 s50, s17, s50
            s_cselect_b32 s52, {5*DS + 8192}, s52""")
            srd(A, 76, 80, 1728*1280)
        else:
            A("""s_mul_i32 s60, s21, 6554
            s_lshr_b32 s60, s60, 16        ; j
            s_mul_i32 s18, s60, 10
            s_sub_u32 s61, s21, s18        ; cl
            s_mul_i32 s0, s16, 25
            s_add_u32 s0, s0, s60
            s_mul_i32 s0, s0, 10
            s_add_u32 s0, s0, s61""")
            self.w2_task_addr(0, 48, 51, 5)
            A(f"""s_cmp_ge_u32 s60, 25
            s_cselect_b32 s48, 0x40000000, s48
            s_cselect_b32 s51, 0x40000000, s51
            s_mov_b32 s50, {L_STG}
            s_cmp_eq_u32 s34, 1
            s_cselect_b32 s50, {5*DS}, s50
            s_lshl_b32 s17, s16, 12
            s_add_u32 s50, s50, s17""")
            srd(A, 76, 80, 1728*1280)
            A(f"""s_lshl_b32 s17, s16, 8
            s_or_b32 s17, s17, s21
            s_cmp_lt_u32 s17, 40
            s_cselect_b32 s62, 1, 0
            s_cbranch_scc0 L_hp_n3
            s_add_u32 s0, s21, 500""")
            self.w2_task_addr(0, 49, 53, 5)
            A(f"s_mov_b32 s52, {5*DS + 8192}")
            A.label("L_hp_n3")
        self.first_chunk()
        self.get_tag()
        A(f"""v_mov_b32 v55, s14
        v_mov_b32 v12, {L_SYNC}
        v_lshlrev_b32 v47, 7, v0
        v_mov_b32 v25, 0
        s_and_b32 s64, s56, 15
        s_add_u32 s64, s64, s32
        s_cmp_ge_u32 s64, 10
        s_cselect_b32 s27, 10, 0
        s_sub_u32 s64, s64, s27
        s_mul_i32 s1, s15, 5
        s_lshr_b32 s1, s1, 2
        v_and_b32 v52, 31, v0
        v_mul_u32_u24 v53, 10, v52
        v_lshrrev_b32 v21, 5, v0
        v_add3_u32 v53, v53, v21, s1
        v_lshlrev_b32 v53, 7, v53
        s_mov_b32 s1, {W_F0}
        s_lshl_b32 s0, s21, 7
        s_add_u32 s0, s0, s1
        v_mul_u32_u24 v239, 3200, v21
        v_lshl_add_u32 v239, v52, 2, v239
        s_lshl_b32 s17, s16, 7
        s_add_u32 s17, s17, {L_STG}
        v_add_u32 v239, s17, v239
        v_and_b32 v23, 3, v0
        v_or_b32 v238, 0x07060500, v23
        v_lshlrev_b32 v250, 3, v23
        v_lshrrev_b32 v250, v250, v55
        s_lshl_b32 s55, s16, 10
        s_add_u32 s17, s55, {L_CORR}
        v_add_u32 v10, s17, v8
        v_and_b32 v251, 15, v0
        v_lshlrev_b32 v251, 3, v251
        v_bfe_u32 v21, v0, 4, 1
        v_lshl_add_u32 v251, v21, 9, v251
        v_add_u32 v251, s17, v251
        v_lshrrev_b32 v21, 4, v0
        v_bfe_u32 v20, v0, 2, 2
        v_lshl_add_u32 v22, v21, 3, v20
        v_and_b32 v21, 1, v21
        v_lshlrev_b32 v21, 5, v21
        v_lshl_add_u32 v21, v23, 3, v21
        v_lshl_add_u32 v236, v22, 6, v21
        v_xor_b32 v237, 32, v236
        v_lshl_add_u32 v22, v22, 8, v21
        v_lshl_add_u32 v22, v20, 6, v22
        s_lshl_b32 s17, s16, 6
        v_xor_b32 v232, s17, v22
        v_xor_b32 v233, 32, v232
        v_xor_b32 v234, 128, v232
        v_xor_b32 v235, 32, v234
        v_mov_b32 v228, 0x3f803f80
        v_mov_b32 v229, 0x3f803f80
        v_mov_b32 v230, 0x3f803f80
        v_mov_b32 v231, 0x3f803f80
        s_mul_i32 s66, s29, 6400
        s_add_u32 s66, s66, {W_CS}
        s_add_u32 s67, s66, 512
        s_lshl_b32 s17, s16, 7
        s_add_u32 s66, s66, s17
        v_and_b32 v48, 0x300, v8
        v_add_u32 v52, v48, v8               ; r2 voffset
        v_lshlrev_b32 v38, 3, v0
        v_add_u32 v252, {L_STAT}, v38
        v_add_u32 v253, {L_STAT + 1024}, v7
        v_add_u32 v9, v12, v7
        v_bfe_u32 v17, v0, 3, 2
        v_cmp_eq_u32 vcc, 1, v17
        """)
        self.stamp("L", "pre-issue"); self.stamp("L", "preBa")
        A("s_barrier")
        self.stamp("L", "Ba")
        self.l_consts()
        A(f"""v_mov_b32 v17, 0
        v_mov_b32 v19, 0
        v_mov_b32 v21, 0
        v_mov_b32 v23, 0
        s_waitcnt vmcnt(5)
        v_cndmask_b32 v13, 0, v13, vcc
        v_cndmask_b32 v14, 0, v14, vcc
        v_cndmask_b32 v15, 0, v15, vcc
        v_and_b32 v16, 0xffff, v13
        v_lshrrev_b32 v18, 16, v13
        v_and_b32 v20, 0xffff, v14
        v_lshrrev_b32 v22, 16, v14
        ds_write_b128 v10, v[16:19]
        ds_write_b128 v10, v[20:23] offset:2048
        s_cmp_eq_u32 s16, 0
        s_cbranch_scc0 L_hp_n0
        v_and_b32 v16, 0xffff, v15
        v_lshrrev_b32 v18, 16, v15
        ds_write_b128 v10, v[16:19] offset:4096
        L_hp_n0:
        """)
        A("s_waitcnt lgkmcnt(0)")
        A("v_cmp_gt_u32 vcc, 16, v0")
        self.stamp("L", "rdy")
        if self.lprio: A(f"s_setprio {self.lprio}")
    def helper(self, K):
        A0 = self.A; D = K == "D"; T5 = K == "5"
        class W:
            def __call__(s_, t): A0(t.replace("@", K))
            def label(s_, t): A0.label(t.replace("@", K))
        A = W()
        def only(w, f):
            def g():
                l = self.lab("on"); A(f"s_cmp_eq_u32 s16, {w}\ns_cbranch_scc0 {l}"); f(); A.label(l)
            return g
        mk = "0xffff" if self.w2t else "0x1ffffff"
        PL = [(54, 1, 53, "s1", f"s_mov_b32 exec_lo, {mk}\ns_mov_b32 exec_hi, {mk}")]
        stl = f"s_lshl_b32 s17, s26, 11\ns_add_u32 s17, s17, {W_STAT}\nbuffer_load_dwordx4 v[56:59], v8, s[44:47], s17 offen sc1\nbuffer_load_dwordx4 v[60:63], v8, s[44:47], s17 offen offset:1024 sc1\ns_lshl_b32 s17, s20, 11\ns_lshl_b32 s18, s31, 8\ns_add_u32 s17, s17, s18\ns_add_u32 s17, s17, {W_STAT}\nbuffer_load_dwordx4 v[48:51], v52, s[44:47], s17 offen sc1"
        def statline():
            A(f"""ds_read_b32 v24, v9 offset:{SY_ST}
            s_lshl_b32 s17, s26, 4
            s_add_u32 s17, s17, s29
            s_lshl_b32 s17, s17, 7
            s_add_u32 s17, s17, {W_STAT}
            s_mov_b32 exec_hi, 0
            s_waitcnt lgkmcnt(0)
            buffer_store_dword v24, v7, s[44:47], s17 offen sc1
            s_mov_b64 exec, -1""")
        def csprod(fifth=False):
            n = 2 if fifth else 4
            for j in range(n):
                for u in range(2):
                    for t in range(2):
                        A(f"ds_read_b64_tr_b16 {vr(16+8*j+4*u+2*t,2)}, v{(236 if fifth else 232)+j} offset:{32768 + 2048*u + 256*t if fifth else 16384 + 8192*u + 1024*t}")
            A(f"s_mul_i32 s18, s64, 640\ns_add_u32 s17, {'s67' if fifth else 's66'}, s18\ns_waitcnt lgkmcnt(0)")
            for u in range(2):
                for j in range(n): A(f"{self.MF} {vr(212+4*j,4)}, v[228:231], {vr(16+8*j+4*u,4)}, {'0' if u == 0 else vr(212+4*j,4)}")
            A("s_nop 7\nv_cndmask_b32 v212, v216, v212, vcc")
            if not fifth: A("v_cndmask_b32 v220, v224, v220, vcc")
            A("v_perm_b32 v212, v212, v55, v238")
            if not fifth: A("v_perm_b32 v220, v220, v55, v238")
            A("s_mov_b32 exec_hi, 0\nbuffer_store_dword v212, v7, s[44:47], s17 offen sc1")
            if not fifth: A("buffer_store_dword v220, v7, s[44:47], s17 offen offset:256 sc1")
            A("s_mov_b64 exec, -1")
        csd = f"s_mul_i32 s17, s29, 6400\ns_add_u32 s17, s17, {W_CS}\ns_mov_b32 m0, {L_STG}\ns_add_u32 s18, s17, 4096\n" + "\n".join(f"buffer_load_dwordx4 v8, s[44:47], s17 offen offset:{1024*k} sc1 lds" for k in range(4)) \
              + f"\ns_mov_b32 m0, {L_STG + 4096}\ns_nop 0\n" + "\n".join(f"buffer_load_dwordx4 v8, s[44:47], s18 offen offset:{1024*k} sc1 lds" for k in range(3))
        csr = lambda b_, o: "\n".join(f"ds_read_b32 v{b_+k}, v239 offset:{640*k + o}" for k in range(5))
        def csread(): A(csr(16, 0) + "\n" + csr(21, 256) + ("\n" + csr(26, 512) if T5 else ""))
        def cschk(o, tile_off):
            l = self.lab("ck"); b_ = 16 + 5*(o // 256)
            A(f"""s_mov_b32 s19, 0
            {l}:
            s_waitcnt lgkmcnt(0)
            v_xor_b32 v38, v250, v{b_}
            v_xor_b32 v39, v250, v{b_+1}
            v_xor_b32 v40, v250, v{b_+2}
            v_xor_b32 v41, v250, v{b_+3}
            v_xor_b32 v42, v250, v{b_+4}
            v_or3_b32 v38, v38, v39, v40
            v_add_f32 v39, v{b_}, v{b_+1}
            v_or3_b32 v38, v38, v41, v42
            v_add_f32 v40, v{b_+2}, v{b_+3}
            v_and_b32 v38, 0xff, v38
            v_add_f32 v39, v39, v{b_+4}
            v_cmp_ne_u32 vcc, 0, v38
            v_add_f32 v39, v39, v40
            {self.spin_guard(l + "d") or "s_nop 1"}
            s_cbranch_vccz {l}d
            s_sleep 4
            {csd}
            s_waitcnt vmcnt(0)
            {csr(b_, o)}
            s_branch {l}
            {l}d:
            v_mov_b32 v40, v39
            s_nop 1
            v_permlane32_swap_b32 v39, v40
            s_nop 1
            v_add_f32 v39, v39, v40
            v_cvt_pk_bf16_f32 v40, v39, v39
            v_lshlrev_b32 v40, 16, v40
            v_sub_f32 v39, v39, v40
            v_cvt_pk_bf16_f32 v39, v40, v39
            s_mov_b32 exec_hi, 0
            ds_write_b32 v251, v39 offset:{tile_off}
            s_mov_b64 exec, -1""")
        def w2dma():
            if self.w2t and T5: return
            self.w2_task_dma(48, 50, 5, 76)
            if D or self.w2t:
                A("s_cmp_eq_u32 s62, 1\ns_cbranch_scc0 L_hp_d3@")
                self.w2_task_dma(49, 52, 5, 76)
                A("L_hp_d3@:")
        def w2fin():
            if self.w2t and T5: return
            A("s_waitcnt vmcnt(0)")
            self.w2_task_fin(51, 50, 30, 32)
            if D or self.w2t:
                A("s_cmp_eq_u32 s62, 1\ns_cbranch_scc0 L_hp_f3@")
                self.w2_task_fin(53, 52, 30, 212)
                A("L_hp_f3@:")
        def flag():
            if not (self.w2t and T5): A("s_mov_b32 exec_hi, 0\nbuffer_store_dword v55, v7, s[44:47], s0 offen sc1\ns_mov_b64 exec, -1")
        def statchk():
            A(f"""s_mov_b32 s19, 0
            s_mov_b32 s17, 0x01000100
            L_l_sc@:
            v_cmp_ne_u32 vcc, v55, v59
            v_cmp_ne_u32 s[68:69], v55, v63
            v_cmp_ne_u32 s[70:71], v55, v51
            {self.spin_guard("L_l_scd@")}
            s_or_b64 vcc, vcc, s[68:69]
            s_or_b64 vcc, vcc, s[70:71]
            s_cbranch_vccz L_l_scd@
            s_sleep 4
            {stl}
            s_mov_b32 s17, 0x01000100
            s_waitcnt vmcnt(0)
            s_branch L_l_sc@
            L_l_scd@:
            v_perm_b32 v40, v56, v56, s17
            v_lshrrev_b32 v41, 16, v56
            v_perm_b32 v42, v60, v60, s17
            v_lshrrev_b32 v43, 16, v60
            ds_write_b32 v253, v57
            ds_write_b32 v253, v61 offset:256
            ds_write_b32 v253, v58 offset:512
            ds_write_b32 v253, v62 offset:768
            ds_write_b32 v253, v49 offset:{L_SYNC + 512 - L_STAT - 1024}
            ds_write_b64 v252, v[40:41]
            ds_write_b64 v252, v[42:43] offset:512""")
        def xload():
            A(f"""s_lshl_b32 s17, s31, 10
            s_lshl_b32 s18, s20, 2
            s_add_u32 s17, s17, s18
            s_mul_i32 s17, s17, 1280
            s_mul_i32 s18, s15, 160
            s_add_u32 s17, s17, s18""")
            for k in range(5): A(f"buffer_load_dwordx4 {vr(172+8*k,4)}, v{240+k}, s[36:39], s17 offen")
        def f0issue():
            for (dst, n, va, so, ex) in PL: A(f"{ex}\nbuffer_load_dword v{dst}, v{va}, s[44:47], {so} offen sc1\ns_mov_b64 exec, -1")
        def f0chk(): self.poll(PL, 55, first_issued=True)
        W0 = lambda: A("s_waitcnt vmcnt(0)")
        E = dict(w2dma=w2dma, csread=csread, statline=only(0, statline), csprod=csprod, csprod5=(only(1, lambda: csprod(True)) if T5 else None), w2fin=w2fin, flag=only(0, flag),
                 stl=only(1, lambda: A(stl)), csl=only(0, lambda: A(csd)),
                 f0issue=only(0, f0issue), statchk=only(1, statchk), cschk0=lambda: cschk(0, 0), cschk1=lambda: cschk(256, 2048),
                 cschk5=(only(0, lambda: cschk(512, 4096)) if T5 else None), f0chk=only(0, f0chk), xload=xload, fw=only(0, lambda: self.lds_set(12, SY_FW, 16)))
        for n_ in (0, 1, 5, 10): E[f"W{n_}"] = (lambda n_=n_: A(f"s_waitcnt vmcnt({n_})"))
        E["LG"] = lambda: A("s_waitcnt lgkmcnt(0)")
        E["W0_1"] = only(1, E["W0"]); E["W0_0"] = only(0, E["W0"]); E["W3_0"] = only(0, lambda: A("s_waitcnt vmcnt(0)"))
        P = self.hplan or {}
        if not D:
            plan = P.get("W") or ["|", "w2dma", "statline", "csprod", "|", "csprod5", "|", "w2fin", "|", "W0", "|", "flag", "stl", "csl", "|", "W0", "|", "csread", "statchk", "cschk5",
                    "|", "f0issue", "cschk0", "|", "cschk1", "W0", "f0chk", "LG", "|", "xload"]
        else:
            plan = ["|", "w2dma", "statline", "|", "|", "w2fin", "W0", "|", "flag", "|", "stl", "f0issue", "xload", "W5", "statchk", "f0chk", "fw", "LG", "|"]
        i = 0
        for n_ in plan:
            if n_ == "|":
                A("s_barrier"); self.stamp("L", f"B{i}" if not D else ["B0", "X", "B3", "B5", "B7", "B9"][i]); i += 1
            elif n_ not in self.off and E[n_]: E[n_]()
        assert i == (6 if D else 10)
        if self.p1only: self.dump_stamps("L"); A("s_endpgm")
    def hp_gap(self):
        A = self.A
        A.label("L_hp_gap")
        A("s_setprio 0")
        self.l_consts2()
        if self.pgate: self.lds_spin(12, SY_ZF, 4, 16)
        A("s_setprio 3\ns_waitcnt vmcnt(0)")
        for k in range(5):
            x = 172 + 8*k; b = x + 4
            for d in range(4):
                A(f"""v_lshlrev_b32 v{32+2*d}, 16, v{x+d}
                v_and_b32 v{33+2*d}, 0xffff0000, v{x+d}
                v_lshlrev_b32 v40, 16, v{b+d}
                v_and_b32 v41, 0xffff0000, v{b+d}
                v_add_f32 v{32+2*d}, v{32+2*d}, v40
                v_add_f32 v{33+2*d}, v{33+2*d}, v41""")
            A(f"v_xor_b32 v40, 16, v{245+k}\nds_write_b128 v{245+k}, v[32:35]\nds_write_b128 v40, v[36:39]")
        A("s_waitcnt lgkmcnt(0)")
        self.lds_inc(12, SY_P, 16)
        A("s_cmp_eq_u32 s34, 1\ns_cbranch_scc0 L_l_fft")
        self.lds_spin(12, SY_FL, 1, 16)
        self.l_w2dma("a2", 6)
    def l_w2dma(self, tag, count, sfx=''):
        A = self.A
        if tag in ("a", "a2", "b"):
            kr = 16 if tag == "a" else 9
            if kr == 9: A("s_xor_b32 s9, s16, 2")
            A(f"""s_lshl_b32 s18, s{kr}, 3
            s_lshr_b32 s17, {KS0[0] | KS0[1] << 8 | KS0[2] << 16 | KS0[3] << 24:#x}, s18
            s_and_b32 s17, s17, 0xff
            s_add_u32 s17, s17, 1
            s_mul_i32 s8, s17, 40960
            s_mul_i32 s17, s15, 5120
            s_add_u32 s8, s8, s17
            s_add_u32 s8, s8, {W_W2F}""")
            self.lw(7, kr)
            n = 7 if tag == "b" else 6
            A(f"""s_lshl_b32 s17, s24, 1
            s_add_u32 s17, s17, s31
            s_cmp_ge_u32 s17, {n}
            s_cselect_b32 s18, {n}, 0
            s_sub_u32 s17, s17, s18            ; rot
            s_sub_u32 s6, {n}, s17
            s_mul_i32 s4, s17, 5120
            s_add_u32 s4, s4, s7
            s_mul_i32 s5, s17, 40960
            s_add_u32 s5, s5, s8""")
        A(f"s_mov_b32 s18, {count}\nL_l_dma{tag}{sfx}:\ns_mov_b32 m0, s4\ns_add_u32 s17, s5, 4096")
        for nt in range(4): A(f"buffer_load_dwordx4 v8, s[44:47], s5 offen offset:{1024*nt} sc1 lds")
        A(f"""s_add_u32 m0, s4, 4096
        s_add_u32 s4, s4, 5120
        buffer_load_dwordx4 v8, s[44:47], s17 offen sc1 lds
        s_add_u32 s5, s5, 40960
        s_sub_u32 s6, s6, 1
        s_cmp_eq_u32 s6, 0
        s_cselect_b32 s4, s7, s4
        s_cselect_b32 s5, s8, s5
        s_sub_u32 s18, s18, 1
        s_cmp_lg_u32 s18, 0
        s_cbranch_scc1 L_l_dma{tag}{sfx}""")
    def l_gap2(self):
        A = self.A
        A("s_cmp_lt_u32 s16, 2\ns_cbranch_scc1 L_l_gq\ns_cmp_le_u32 s4, 320\ns_cbranch_scc1 L_l_gq")
        A(f"""s_lshl_b32 s17, s16, 2
        v_add_u32 v16, s17, v12
        v_mov_b32 v17, 1
        s_waitcnt vmcnt(0)
        ds_write_b32 v16, v17 offset:{SY_W2}
        ds_write_b32 v16, v17 offset:{SY_W2 - 8}""")
        self.stamp("L", "w2land")
        A.label("L_l_gq")
    def gate(self, t4flag):
        A = self.A; l = self.lab("gt")
        A(f"s_cmp_eq_u32 s34, 1\ns_cbranch_scc0 {l}w")
        self.lds_spin(12, SY_FL, 1, 16)
        A(f"s_sleep {self.zsleepd}\ns_branch {l}e\n{l}w:")
        self.lds_spin(12, SY_WI, 4, 16)
        if t4flag is not None:
            A(f"s_cmp_eq_u32 s33, 1\ns_cbranch_scc0 {l}f")
            if self.kearly:
                self.lds_spin(12, SY_FL, 1, 16)
                A(f"s_sleep {self.z5}")
            A(f"s_branch {l}e\n{l}f:")
            self.lds_spin(12, t4flag, 1, 16)
        A(f"{l}e:")
    def h2poll(self, issue):
        A = self.A
        P = [(56, 1, 47, "s0", "s_mov_b64 exec, 0x0707")]
        if issue:
            A(f"v_lshlrev_b32 v47, 7, v0\ns_lshl_b32 s0, s20, 11\ns_add_u32 s0, s0, {W_F1}\ns_mov_b64 exec, 0x0707\nbuffer_load_dword v56, v47, s[44:47], s0 offen sc1\ns_mov_b64 exec, -1")
        else:
            self.poll(P, 55, first_issued=True, sleep=self.zret)
            self.lds_set(12, SY_H2, 16)
    def l_fft(self):
        self.A.label("L_l_fft")
        self.stamp("L", "w2iss")
        A = self.A; F1, TC, TS, F2 = self.F1, self.TC, self.TS, self.F2
        Z = 172; D1 = 204; P = 172; D3 = 236
        A(f"""s_mov_b32 s17, s21
        s_lshr_b32 s18, s17, 2
        s_lshl_b32 s18, s18, 2             ; 4*rb
        s_and_b32 s5, s17, 1
        s_lshl_b32 s5, s5, 1               ; 2*(cbl&1)
        s_add_u32 s18, s18, s5
        s_add_u32 s18, s18, s23
        s_add_u32 s17, s18, 256
        s_cmp_eq_u32 s2, 24
        s_movk_i32 s18, 320
        s_cselect_b32 s18, s18, -1
        s_cmp_eq_u32 s34, 1
        s_cselect_b32 s17, s17, s18
        s_cmp_lt_u32 s16, 2
        s_cselect_b32 s4, s2, s17
        s_cmp_eq_u32 s16, 1
        s_cbranch_scc0 L_l_nhp""")
        self.gate(None)
        A(f"v_lshlrev_b32 v14, 7, v0\ns_lshl_b32 s17, s20, 11\ns_add_u32 s17, s17, {W_F1}")
        self.poll([(16, 1, 14, "s17", "s_mov_b64 exec, 0x3838")], 55, sleep=self.zret)
        self.lds_set(12, SY_H, 16)
        A(f"""L_l_nhp:
        s_cmp_gt_u32 s4, 320
        s_cbranch_scc1 L_l_nofft
        s_bitcmp1_b32 s4, 0
        s_cselect_b32 s17, 128, 0
        s_add_u32 s17, s17, {W_F1 + 6*128}
        v_and_b32 v14, 15, v0
        v_lshlrev_b32 v14, 11, v14
        v_bfe_u32 v15, v0, 4, 1
        v_lshl_add_u32 v14, v15, 10, v14
        v_mov_b32 v15, v12
        s_cmp_eq_u32 s16, 0
        s_cbranch_scc0 L_l_zspin""")
        self.gate(SY_H)
        self.poll([(16, 1, 14, "s17", "s_mov_b32 exec_hi, 0")], 55, sleep=self.zret)
        self.lds_set(12, SY_ZOK, 16)
        A("s_branch L_l_zok\nL_l_zspin:")
        self.lds_spin(12, SY_ZOK, 1, 16)
        A.label("L_l_zok")
        A("s_and_b32 s18, s16, 2\ns_lshl_b32 s18, s18, 1\nv_add_u32 v15, s18, v12")
        self.stamp("L", "Zok")
        A("s_setprio 3")
        A(f"""v_bfe_u32 v16, v0, 2, 2
        v_lshlrev_b32 v16, 8, v16
        v_lshrrev_b32 v17, 4, v0
        v_lshl_add_u32 v16, v17, 6, v16
        v_and_b32 v18, 3, v0
        v_lshl_add_u32 v16, v18, 4, v16     ; z voffset
        s_lshl_b32 s5, s4, 12
        s_add_u32 s5, s5, {W_Z}
        s_add_u32 s6, s5, {PZ}
        s_cmp_eq_u32 s4, 320
        s_cselect_b32 s6, 0x40000000, s6""")
        for a4 in range(4):
            A(f"buffer_load_dwordx4 {vr(Z+4*a4,4)}, v16, s[44:47], s5 offen offset:{1024*a4} sc1")
            A(f"buffer_load_dwordx4 {vr(Z+16+4*a4,4)}, v16, s[44:47], s6 offen offset:{1024*a4} sc1")
        A("s_mov_b32 s9, s16\ns_cmp_eq_u32 s9, 1\ns_cbranch_scc0 L_l_nzi")
        self.h2poll(True)
        A(f"""L_l_nzi:
        v_and_b32 v18, 15, v0
        v_lshlrev_b32 v18, 4, v18
        v_lshl_add_u32 v18, v17, 9, v18
        s_lshl_b32 s5, s4, 13
        s_and_b32 s17, s16, 1
        s_lshl_b32 s18, s17, 11
        s_add_u32 s5, s5, s18
        s_add_u32 s5, s5, {W_Y}
        s_add_u32 s6, s5, 4096
        """)
        mf = "v_mfma_f32_16x16x32_bf16"
        for a4 in range(4):
            zr, zi = vr(Z+4*a4,4), vr(Z+16+4*a4,4); re, im = vr(D1+4*a4,4), vr(D1+16+4*a4,4)
            if a4 == 0:
                A(f"""s_waitcnt vmcnt(6)
                s_lshl_b32 s17, s34, 1
                s_or_b32 s17, s17, s16
                s_cmp_lt_u32 s17, 2
                s_cbranch_scc1 L_l_nw2f
                s_xor_b32 s17, s16, 2
                s_lshl_b32 s17, s17, 2
                v_add_u32 v16, s17, v12
                ds_write_b32 v16, v12 offset:{SY_W2}
                s_cmp_eq_u32 s34, 1
                s_cbranch_scc1 L_l_nw2f
                ds_write_b32 v16, v12 offset:{SY_W2 + 8}
                L_l_nw2f:""")
                self.stamp("L", "zland")
            A(f"""s_waitcnt vmcnt({6-2*a4})
            {mf} {re}, {zr}, {vr(F1,4)}, 0
            {mf} {im}, {zi}, {vr(F1,4)}, 0
            {mf} {re}, {zi}, {vr(F1+4,4)}, {re}
            {mf} {im}, {zr}, {vr(F1+8,4)}, {im}""")
        A(f"""s_cmp_eq_u32 s9, 1
        s_cbranch_scc0 L_l_h2a
        s_mov_b64 exec, 0x0707
        v_cmp_ne_u32 vcc, v55, v56
        s_mov_b64 exec, -1
        s_nop 0
        s_cbranch_vccnz L_l_h2a
        ds_write_b32 v12, v12 offset:{SY_H2}
        s_mov_b32 s9, 0
        L_l_h2a:""")
        for a4 in range(4):
            if a4 == 3: A("s_nop 0")
            for i in range(4):
                r = D1+4*a4+i; m = r+16; c = TC+4*a4+i; s = TS+4*a4+i
                A(f"""v_mul_f32 v{32+i}, v{r}, v{c}
                v_mul_f32 v{36+i}, v{m}, v{c}
                v_fmac_f32 v{32+i}, v{m}, v{s}
                v_fma_f32 v{36+i}, -v{r}, v{s}, v{36+i}""")
            pr = P + 4*(a4 >> 1) + 2*(a4 & 1); pi = pr + 8
            A(f"""v_cvt_pk_bf16_f32 v{pr}, v32, v33
            v_cvt_pk_bf16_f32 v{pr+1}, v34, v35
            v_cvt_pk_bf16_f32 v{pi}, v36, v37
            v_cvt_pk_bf16_f32 v{pi+1}, v38, v39""")
        A("s_nop 1")
        for k in range(4):
            for T in range(2):
                for jh in range(2):
                    d = vr(D3 + 8*T + 4*jh, 4)
                    f = F2 + 32*jh + 16*(k >> 1) + 8*T + 4*(k & 1)
                    A(f"{mf} {d}, {vr(P+4*k,4)}, {vr(f,4)}, {'0' if k == 0 else d}")
        for i in range(4): A(f"s_mov_b32 s{60+i}, {0x07060500 + i:#x}")
        A("s_nop 1")
        for T in range(2):
            for jh in range(2):
                d = D3+8*T+4*jh
                for i in range(4): A(f"v_perm_b32 v{d+i}, v{d+i}, v55, s{60+i}")
                A(f"buffer_store_dwordx4 {vr(d,4)}, v18, s[44:47], {'s5' if T == 0 else 's6'} offen offset:{256*jh} sc1")
        A("s_cmp_eq_u32 s9, 1\ns_cbranch_scc0 L_l_nofft")
        self.h2poll(True); A("s_waitcnt vmcnt(0)"); self.h2poll(False)
        A.label("L_l_nofft")
        self.stamp("L", "fftdone")
    def l_y(self):
        A = self.A
        A(f"s_setprio {self.yprio}")
        A(f"""v_and_b32 v16, 15, v0               ; jl
        v_lshrrev_b32 v17, 4, v0                  ; e sub
        s_mul_i32 s17, s16, 20
        v_mul_u32_u24 v18, {PROW}, v16
        v_lshl_add_u32 v18, v17, 2, v18
        v_add_u32 v18, {L_P}, v18
        v_bfe_u32 v19, v16, 1, 2
        s_mul_i32 s18, s16, 5""")
        for n in range(5): A(f"s_add_u32 s27, s18, {n}\nv_xor_b32 v{28+n}, s27, v19\nv_lshl_add_u32 v{28+n}, v{28+n}, 4, v18")
        A(f"""s_mul_i32 s4, s15, 80
        s_add_u32 s4, s4, s17
        s_cmp_ge_u32 s15, 4
        s_cbranch_scc1 L_l_mir
        v_lshlrev_b32 v24, 13, v17
        v_lshl_add_u32 v24, v16, 4, v24
        s_lshl_b32 s5, s4, 13
        s_lshl_b32 s17, s20, 9
        s_lshl_b32 s18, s31, 8
        s_add_u32 s17, s17, s18
        s_add_u32 s5, s5, s17
        s_add_u32 s5, s5, {W_Y}
        s_mov_b32 s6, 32768
        s_branch L_l_mird
        L_l_mir:
        v_sub_u32 v26, 3, v17
        v_lshlrev_b32 v26, 13, v26                ; (3 - esub)*8192
        v_sub_u32 v24, 15, v16
        v_lshl_add_u32 v24, v24, 4, v26
        s_cmp_eq_u32 s20, 0
        s_cselect_b32 s17, 32, 31
        s_lshl_b32 s18, s31, 4
        s_sub_u32 s17, s17, s18
        v_sub_u32 v25, s17, v16
        v_and_b32 v25, 31, v25
        v_lshl_add_u32 v25, v25, 4, v26
        s_sub_u32 s17, 637, s4
        s_lshl_b32 s5, s17, 13
        s_add_u32 s5, s5, {W_Y}
        s_sub_u32 s17, 16, s20
        s_and_b32 s17, s17, 15
        s_lshl_b32 s17, s17, 9
        s_add_u32 s8, s5, s17
        s_sub_u32 s17, 15, s20
        s_lshl_b32 s17, s17, 9
        s_sub_u32 s18, 1, s31
        s_lshl_b32 s18, s18, 8
        s_add_u32 s17, s17, s18
        s_add_u32 s5, s5, s17
        s_mov_b32 s6, -32768
        L_l_mird:""")
        self.lds_spin(12, SY_P, 2, 16)
        for n in range(5):
            for i in range(4): A(f"ds_read_b32 v{172+4*n+i}, v{28+n} offset:{16*PROW*i}")
        self.lds_spin(12, SY_G, 1, 16)
        def chk(b, first):
            A(f"v_perm_b32 v20, v{b+1}, v{b}, s60\nv_perm_b32 v21, v{b+3}, v{b+2}, s61")
            A("v_bitop3_b32 v22, v20, v21, v55 bitop3:0x56" if first else "v_bitop3_b32 v20, v20, v21, v55 bitop3:0x56\nv_or_b32 v22, v22, v20")
        A("s_mov_b32 s60, 0x0c0c0400\ns_mov_b32 s61, 0x04000c0c\ns_mov_b32 s19, 0\nL_l_yl:\ns_mov_b32 s62, s5\ns_mov_b32 s63, s8")
        self.stamp("L", "Yok")
        for n in range(5):
            A(f"buffer_load_dwordx4 {vr(192+4*n,4)}, v24, s[44:47], s62 offen sc1\ns_add_u32 s62, s62, s6")
        A("s_cmp_ge_u32 s15, 4\ns_cbranch_scc1 L_l_ex")
        for n in range(5): A(f"s_waitcnt vmcnt({4-n})"); chk(192+4*n, n == 0)
        A("s_branch L_l_yc\nL_l_ex:")
        for n in range(5):
            A(f"buffer_load_dwordx4 {vr(212+4*n,4)}, v25, s[44:47], s63 offen sc1\ns_add_u32 s63, s63, s6")
        for n in range(5): A(f"s_waitcnt vmcnt({9-n})"); chk(192+4*n, n == 0)
        for n in range(5):
            A(f"s_waitcnt vmcnt({4-n})"); chk(212+4*n, False)
            A(f"v_mov_b32 v{192+4*n}, v{212+4*n}\nv_swap_b32 v{193+4*n}, v{195+4*n}")
        A(f"""L_l_yc:
        v_cmp_ne_u32 vcc, 0, v22
        {self.spin_guard("L_l_yd") or "s_nop 1"}
        s_cbranch_vccz L_l_yd
        s_sleep {self.yret}
        s_branch L_l_yl
        L_l_yd:""")
        A("s_waitcnt vmcnt(0) lgkmcnt(0)")
        for n in range(5):
            for i in range(4): A(f"v_add_f32 v{172+4*n+i}, v{172+4*n+i}, v{192+4*n+i}\nds_write_b32 v{28+n}, v{172+4*n+i} offset:{16*PROW*i}")
        A("s_waitcnt lgkmcnt(0)")
        self.stamp("L", "ydone")
        self.lds_inc(12, SY_Y, 16)
        A("""s_or_b32 s17, s2, s16
        s_cmp_eq_u32 s17, 0
        s_cbranch_scc0 L_l_noep
        v_mov_b32 v8, 0
        s_mov_b64 exec, 1
        buffer_store_dword v55, v8, s[44:47], 0 offen sc1
        s_mov_b64 exec, -1
        L_l_noep:""")

    def build(self):
        A = self.A
        self.prologue()
        nl = self.nstamp["L"]
        self.loader()
        self.nstamp["L"] = nl
        self.loader_d()
        self.notld()
        A.label("L_hp")
        self.nstamp["L"] = nl
        self.hp_setup()
        nl = self.nstamp["L"]
        A("s_cmp_eq_u32 s34, 1\ns_cbranch_scc1 L_hp_D\ns_cmp_eq_u32 s33, 0\ns_cbranch_scc1 L_hp_4")
        self.helper("5"); self.hp_gap(); self.l_fft(); self.l_gap2(); self.l_y()
        self.dump_stamps("L")
        A("s_endpgm\nL_hp_D:")
        self.nstamp["L"] = nl
        self.helper("D"); A("s_branch L_hp_gap\nL_hp_4:")
        self.nstamp["L"] = nl
        self.helper("4"); A("s_branch L_hp_gap")
        self.g_phase0()
        self.stamp("G", "p0done")
        A("s_cmp_eq_u32 s34, 1\ns_cbranch_scc1 L_gD\ns_cmp_eq_u32 s33, 0\ns_cbranch_scc1 L_g4")
        n0 = self.nstamp["G"]
        self.g_main("5", 5); self.g_epi_h(5); A("s_branch L_g_issued")
        self.nstamp["G"] = n0
        self.g_main_d(); self.g_epi_z(); A("s_branch L_g_issued")
        self.nstamp["G"] = n0
        self.g_main("4", 4); self.g_epi_h(4)
        self.g_phase2()
        self.dump_stamps("G")
        A.label("L_end")
        hdr = open("cdna_kernels/" + KNAME[:-7] + ".s.ref").read().split("; Override")[0]
        s = hdr + f"; @launch grid=(256,1,1) block=(512,1,1) lds={LDS_BYTES}\n" + '.amdgcn_target "amdgcn-amd-amdhsa--gfx950"\n'
        return s + kernel(KNAME, A.text(), vgpr=256, accum=256).replace("s_endpgm\n.section .rodata", "s_endpgm\n.fill 512, 4, 0xbf810000\n.section .rodata")

if __name__ == "__main__":
    for m in ("", "lb", "s0", "ck"):
        g = Gen(mode=m); open(f"megaV{m}.s", "w").write(g.build()); print(g.names)
    open("megaV_rel.s", "w").write(Gen(dbg=False).build())
    for k, v in {"a": dict(kearly=0), "b": dict(kearly=5, wgate5=5), "c": dict(kearly=2), "d": dict(kearly=4, wgate5=5, z5=12), "e": dict(kearly=5, wgate5=5, npw=6), "f": dict(kearly=3, npw=7, wgate5=5, wgate=5)}.items():
        open(f"megaV_{k}.s", "w").write(Gen(**v).build())
        open(f"megaV_{k}_rel.s", "w").write(Gen(dbg=False, **v).build())
```
